```python
import torch

def _softmax(x, axis=-1):
    return torch.softmax(x, dim=axis)
def _gelu(x):
    return torch.nn.functional.gelu(x, approximate="tanh")
def _silu(x):
    return torch.nn.functional.silu(x)
def _sigmoid(x):
    return torch.sigmoid(x)
def _layernorm(x, axis=-1, eps=1e-5):
    m = x.mean(dim=axis, keepdim=True)
    v = x.var(dim=axis, keepdim=True, unbiased=False)
    return (x - m) / torch.sqrt(v + eps)
def _scatter_add(tgt, idx, src, axis=0):
    return tgt.clone().index_add_(axis, idx, src)
def _segment_sum(src, seg, n):
    out = torch.zeros((n,) + src.shape[1:], dtype=src.dtype)
    return out.index_add_(0, seg, src)
def _pad(x, pw):
    flat = tuple(v for pair in reversed(pw) for v in pair)
    return torch.nn.functional.pad(x, flat)

kernel_name = 'interleave_layers__sliding_block__glu_gated_glu__prompt'

def setup_inputs():

    _w = (lambda a: (lambda t: t.to(torch.bfloat16) if t.is_floating_point() else t)(torch.as_tensor(a)))
    def _A_setup():
        B, S, D = 1, 2048, 640
        return {
            "x": _w((lambda *s: torch.randn(*s, dtype=torch.bfloat16) * 0.05)(B, S, D)),
            "wqkv": _w((lambda *s: torch.randn(*s, dtype=torch.bfloat16) * 0.05)(D, 3 * D)),
            "wo": _w((lambda *s: torch.randn(*s, dtype=torch.bfloat16) * 0.05)(D, D)),
        }
    _A_in = _A_setup()

    def _B_setup():
        B, S, D, F = 1, 2048, 640, 1536
        return {
            "x": _w((lambda *s: torch.randn(*s, dtype=torch.bfloat16) * 0.05)(B, S, D)),
            "w_gate": _w((lambda *s: torch.randn(*s, dtype=torch.bfloat16) * 0.05)(D, F)),
            "w_up": _w((lambda *s: torch.randn(*s, dtype=torch.bfloat16) * 0.05)(D, F)),
            "w_down": _w((lambda *s: torch.randn(*s, dtype=torch.bfloat16) * 0.05)(F, D)),
        }
    _B_in = _B_setup()

    return {
        "A_x": _A_in["x"],
        "A_wqkv": _A_in["wqkv"],
        "A_wo": _A_in["wo"],
        "B_x": _B_in["x"],
        "B_w_gate": _B_in["w_gate"],
        "B_w_up": _B_in["w_up"],
        "B_w_down": _B_in["w_down"],
    }

def reference(A_x, A_wqkv, A_wo, B_x, B_w_gate, B_w_up, B_w_down):
    def _A_ref(x, wqkv, wo):
        B, S, D = x.shape
        H = 32; Dh = D // H; W = 256
        qkv = (lambda x, *d: x.permute(*d))((x @ wqkv).reshape(B, S, 3, H, Dh), 2, 0, 3, 1, 4)
        q, k, v = qkv[0], qkv[1], qkv[2]
        scores = torch.einsum("bhqd,bhkd->bhqk", q, k) * (Dh ** -0.5)
        idx = torch.arange(S)
        mask = (idx[:, None] - idx[None, :] >= 0) & (idx[:, None] - idx[None, :] < W)
        scores = torch.where(mask[None, None], scores, -1e9)
        p = _softmax(scores, axis=-1)
        o = torch.einsum("bhqk,bhkd->bhqd", p, v)
        return (lambda x, *d: x.permute(*d))(o, 0, 2, 1, 3).reshape(B, S, D) @ wo

    def _B_ref(x, w_gate, w_up, w_down):
        g = torch.einsum("bsd,df->bsf", x, w_gate)
        u = torch.einsum("bsd,df->bsf", x, w_up)
        h = _sigmoid(g) * u
        return torch.einsum("bsf,fd->bsd", h, w_down)

    x = A_x
    x = x + _A_ref(_layernorm(x, axis=-1), A_wqkv, A_wo)
    x = x + _B_ref(_layernorm(x, axis=-1), B_w_gate, B_w_up, B_w_down)
    x = x + _A_ref(_layernorm(x, axis=-1), A_wqkv, A_wo)
    x = x + _B_ref(_layernorm(x, axis=-1), B_w_gate, B_w_up, B_w_down)
    return x
```

```python
import re

TRANS = ('v_exp_', 'v_log_', 'v_rcp_', 'v_rsq_', 'v_sqrt_', 'v_sin_', 'v_cos_')
NODST_S = ('s_cmp', 's_waitcnt', 's_barrier', 's_branch', 's_cbranch', 's_nop', 's_endpgm', 's_setprio',
           's_sleep', 's_bitcmp')


def regs_of(op):
    op = op.strip()
    if op.startswith('-'):
        op = op[1:]
    m = re.fullmatch(r'abs\((.*)\)', op)
    if m:
        op = m.group(1)
    if op.startswith('|') and op.endswith('|'):
        op = op[1:-1]
    m = re.fullmatch(r'([vsa])\[(\d+):(\d+)\]', op)
    if m:
        return [f'{m.group(1)}{i}' for i in range(int(m.group(2)), int(m.group(3)) + 1)]
    m = re.fullmatch(r'([vsa])(\d+)', op)
    if m:
        return [op]
    if op in ('vcc', 'exec', 'm0'):
        return [op]
    if op in ('vcc_lo', 'vcc_hi'):
        return ['vcc']
    if op in ('exec_lo', 'exec_hi'):
        return ['exec']
    return []


def split_ops(s):
    out, depth, cur = [], 0, ''
    for ch in s:
        if ch in '[(':
            depth += 1
        if ch in '])':
            depth -= 1
        if ch == ',' and depth == 0:
            out.append(cur.strip())
            cur = ''
        else:
            cur += ch
    if cur.strip():
        out.append(cur.strip())
    return out


class Ins:
    __slots__ = ('pos', 'kind', 'wr', 'rd', 'passes', 'srcc', 'srcab', 'mn', 'trans', 'wide_store', 'sdata', 'dpp')


class Asm:
    def __init__(self):
        self.out = []
        self.hist = []
        self.pos = 0
        self.vmq = []
        self.lgq = []
        self.uid = 0

    def raw(self, s):
        self.out.append(s)

    def comment(self, s):
        self.out.append('    ; ' + s)

    def label(self, name):
        self.flush()
        self.out.append(name + ':')

    def newlabel(self, p='L'):
        self.uid += 1
        return f'{p}_{self.uid}'

    def nop(self, n):
        while n > 0:
            k = min(n, 16)
            self.out.append(f'    s_nop {k - 1}')
            self.pos += k
            n -= k

    def flush(self):
        need = 0
        for h in self.hist:
            d = self.pos - h.pos
            if h.kind == 'mfma':
                req = 12 if h.passes >= 8 else 8
            elif h.kind == 'valu':
                req = 5
            elif h.kind == 'salu' and 'm0' in h.wr:
                req = 1
            elif h.wide_store:
                req = 2
            else:
                req = 0
            need = max(need, req - d)
        if need > 0:
            self.nop(need)
        self.hist = []

    def parse(self, text):
        text = text.strip()
        mn, _, rest = text.partition(' ')
        ops = split_ops(rest)
        mods = []
        if ops:
            last = ops[-1].split()
            ops[-1] = last[0]
            mods = last[1:]
        I = Ins()
        I.mn = mn
        I.wr, I.rd = set(), set()
        I.passes = 0
        I.srcc, I.srcab = set(), set()
        I.trans = False
        I.wide_store = False
        I.sdata = set()
        I.dpp = any(m.startswith('row_') or m.startswith('quad_perm') for m in mods) or mn.endswith('_dpp')
        R = [regs_of(o) for o in ops]
        if mn.startswith('v_mfma'):
            I.kind = 'mfma'
            I.passes = 8 if '32x32' in mn else 4
            I.wr.update(R[0])
            I.srcab.update(R[1] + R[2])
            I.srcc.update(R[3])
            I.rd.update(R[1] + R[2] + R[3])
        elif mn.startswith('v_'):
            I.kind = 'valu'
            I.trans = mn.startswith(TRANS)
            if 'permlane' in mn and 'swap' in mn:
                I.wr.update(R[0] + R[1])
                I.rd.update(R[0] + R[1])
            elif '_co_' in mn:
                I.wr.update(R[0] + R[1])
                for r in R[2:]:
                    I.rd.update(r)
            else:
                I.wr.update(R[0])
                for r in R[1:]:
                    I.rd.update(r)
                if mn.startswith(('v_fmac', 'v_writelane')):
                    I.rd.update(R[0])
                if mn.startswith('v_cndmask') and len(ops) == 3:
                    I.rd.add('vcc')
        elif mn.startswith('ds_'):
            I.kind = 'ds'
            if mn.startswith(('ds_write', 'ds_add', 'ds_max', 'ds_min')):
                for r in R:
                    I.rd.update(r)
            else:
                I.wr.update(R[0])
                for r in R[1:]:
                    I.rd.update(r)
        elif mn.startswith(('buffer_', 'global_', 'flat_')):
            I.kind = 'vmem'
            is_lds = ('lds' in mods) or ('_lds_' in mn)
            if 'store' in mn or 'atomic' in mn:
                for r in R:
                    I.rd.update(r)
                if mn.endswith(('x3', 'x4')):
                    I.wide_store = True
                    I.sdata = set(R[0] if mn.startswith('buffer_') else R[1])
            elif is_lds:
                for r in R:
                    I.rd.update(r)
                I.rd.add('m0')
            else:
                I.wr.update(R[0])
                for r in R[1:]:
                    I.rd.update(r)
        elif mn.startswith('s_load') or mn.startswith('s_buffer_load'):
            I.kind = 'smem'
            I.wr.update(R[0])
            for r in R[1:]:
                I.rd.update(r)
        elif mn.startswith('s_'):
            I.kind = 'salu'
            if mn.startswith(NODST_S):
                for r in R:
                    I.rd.update(r)
            else:
                I.wr.update(R[0])
                for r in R[1:]:
                    I.rd.update(r)
                if 'saveexec' in mn:
                    I.wr.add('exec')
        else:
            raise ValueError('unknown instr ' + text)
        return I

    @staticmethod
    def need(p, c):
        n = 0
        pv = {r for r in p.wr if r[0] in 'va'}
        ps = {r for r in p.wr if r[0] == 's' or r == 'vcc'}
        if p.kind == 'valu':
            if c.kind == 'mfma' and pv & c.rd:
                n = max(n, 2)
            if c.kind == 'valu':
                if p.trans and not c.trans and (pv & (c.rd | c.wr)):
                    n = max(n, 1)
                if 'permlane' in c.mn and pv & c.rd:
                    n = max(n, 2)
                if c.dpp and pv & c.rd:
                    n = max(n, 2)
                if c.mn.startswith(('v_readlane', 'v_readfirstlane')) and pv & c.rd:
                    n = max(n, 1)
                if ps & c.rd:
                    n = max(n, 4 if c.mn.startswith(('v_readlane', 'v_writelane')) else 2)
            if c.kind == 'vmem' and ps & c.rd:
                n = max(n, 5)
            if c.kind in ('salu', 'smem') and ps & c.rd:
                n = max(n, 2)
        if p.kind == 'mfma':
            big = p.passes >= 8
            if c.kind == 'mfma':
                if pv & c.srcab:
                    n = max(n, 12 if big else 8)
                if pv & c.srcc:
                    if not (c.srcc == pv and c.passes == p.passes):
                        n = max(n, 10 if big else 6)
                if (pv & c.wr) and not (c.srcc == pv):
                    n = max(n, 10 if big else 6)
            elif c.kind in ('valu', 'vmem', 'ds'):
                if pv & (c.rd | c.wr):
                    n = max(n, 12 if big else 8)
                if c.kind == 'valu' and (p.srcc & c.wr):
                    n = max(n, 7 if big else 3)
        if p.kind == 'salu' and 'm0' in p.wr and 'm0' in c.rd and c.kind == 'vmem':
            n = max(n, 1)
        if p.wide_store and (p.sdata & c.wr):
            n = max(n, 2)
        return n

    def __call__(self, text, tag=None):
        I = self.parse(text)
        req = 0
        for h in self.hist:
            d = self.pos - h.pos
            r = self.need(h, I)
            req = max(req, r - d)
        if req > 0:
            self.nop(req)
        self.out.append('    ' + text)
        I.pos = self.pos + 1
        self.pos += 1
        self.hist.append(I)
        self.hist = [h for h in self.hist if self.pos - h.pos < 24]
        if I.kind == 'vmem':
            self.vmq.append(tag)
        elif I.kind == 'ds':
            self.lgq.append(tag)
        if I.mn.startswith(('s_branch', 's_cbranch')):
            pass
        return I

    def branch(self, text):
        self.flush()
        self(text)

    def _cnt(self, q, tags):
        if not isinstance(tags, (list, set)):
            tags = [tags]
        last = -1
        for i, t in enumerate(q):
            if t in tags:
                last = i
        if last < 0:
            return None
        return len(q) - 1 - last

    def wait(self, vm=None, lg=None, vm_all=False, lg_all=False):
        parts = []
        if vm_all:
            parts.append('vmcnt(0)')
            self.vmq = []
        elif vm is not None:
            n = self._cnt(self.vmq, vm)
            if n is not None:
                n = min(n, 63)
                parts.append(f'vmcnt({n})')
                self.vmq = self.vmq[len(self.vmq) - n:] if n else []
        if lg_all:
            parts.append('lgkmcnt(0)')
            self.lgq = []
        elif lg is not None:
            n = self._cnt(self.lgq, lg)
            if n is not None:
                n = min(n, 15)
                parts.append(f'lgkmcnt({n})')
                self.lgq = self.lgq[len(self.lgq) - n:] if n else []
        if parts:
            self('s_waitcnt ' + ' '.join(parts))

    def text(self):
        return '\n'.join(self.out) + '\n'
```

```python
import sys, math
sys.path.insert(0, 'gen')
from asmlib import Asm

S, D, H, DH, F = 2048, 640, 32, 20, 1536
WQKV = 0x0
WO_ = 0x260000
WGU = 0x330000
WD_ = 0x6F0000
CSQ = 0x8D0000
CSG = 0x8D2000
XF = [0x900000, 0xC00000, 0xF00000, 0x1200000]
ST = [0x1500000 + i * 0x20000 for i in range(4)]
QM = 0x1600000
KM = 0x1800000
QT = 0x1A00000
KT_ = 0x1A80000
VT = 0x1B00000
OF = 0x1F00000
HF = 0x2200000
WS_SIZE = 0x10000000

LOG2E = 1.4426950408889634


def f32hex(x):
    import struct
    return '0x%08x' % struct.unpack('<I', struct.pack('<f', x))[0]


kernels = []


def begin(a, name):
    a.raw('.text')
    a.raw(f'.globl {name}')
    a.raw('.p2align 8')
    a.raw(f'.type {name},@function')
    a.raw(f'{name}:')


def ws_srd(a, sreg=4, slot=72, size=WS_SIZE):
    a(f's_load_dwordx2 s[{sreg}:{sreg+1}], s[0:1], {slot}')


def fin_srd(a, sreg, size):
    a(f's_and_b32 s{sreg+1}, s{sreg+1}, 0xffff')
    a(f's_mov_b32 s{sreg+2}, {size}')
    a(f's_mov_b32 s{sreg+3}, 0x00020000')


def R4(i):
    return f'v[{i}:{i+3}]' if i < 256 else f'a[{i-256}:{i-253}]'


def bf16r(a, v):
    a(f'v_cvt_pk_bf16_f32 v{v}, v{v}, v{v}')
    a(f'v_lshlrev_b32 v{v}, 16, v{v}')


class G:
    pass


def gemm_core(a, g, swap):
    KS = g.K // 64
    NS = g.NS
    SB = g.nitems * 1024

    def dma(st, sl):
        for j in range(g.per_wave):
            a(f's_add_u32 m0, s{g.s_l + j}, {sl * SB}')
            t = g.s_tmp + (j & 1)
            a(f's_add_u32 s{t}, s{g.s_g + j}, {st * 2048}')
            a(f'buffer_load_dwordx4 v{g.v_l16}, s[4:7], s{t} offen lds', tag=('dma', st))

    def lds_read(dst, vbase, off, tag):
        hi = off >> 16
        a(f'ds_read_b128 {R4(dst)}, v{vbase + hi} offset:{off & 0xffff}', tag=tag)

    def reads(st):
        sl = st % NS
        p = st & 1
        for kt in range(2):
            for i in range(g.mtw):
                lds_read(g.fa(p, i, kt), g.v_a, sl * SB + (i * 2 + kt) * 1024, ('rd', st))
            for b in range(g.ntw):
                lds_read(g.fb(p, b, kt), g.v_b, sl * SB + (g.MT * 2 + b * 2 + kt) * 1024, ('rd', st))

    def mfmas(st):
        p = st & 1
        for kt in range(2):
            for i in range(g.mtw):
                for b in range(g.ntw):
                    acc = g.acc(i, b)
                    A = g.fa(p, i, kt)
                    B = g.fb(p, b, kt)
                    c = '0' if (st == 0 and kt == 0) else f'v[{acc}:{acc+3}]'
                    if swap:
                        a(f'v_mfma_f32_16x16x32_bf16 v[{acc}:{acc+3}], {R4(A)}, {R4(B)}, {c}')
                    else:
                        a(f'v_mfma_f32_16x16x32_bf16 v[{acc}:{acc+3}], {R4(B)}, {R4(A)}, {c}')

    for st in range(min(NS, KS)):
        dma(st, st)
    if g.mid_prologue:
        g.mid_prologue()
    for st in range(KS):
        a.wait(vm=('dma', st), lg_all=True)
        a('s_barrier')
        if st >= 1 and st + NS - 1 < KS:
            dma(st + NS - 1, (st - 1) % NS)
        reads(st)
        if st >= 1:
            mfmas(st - 1)
    a.wait(lg_all=True)
    mfmas(KS - 1)


def gemm_setup(a, g, name, MB, NB, need_out=False):
    NWG = MB * NB
    begin(a, name)
    a(f's_cmp_ge_u32 s2, {NWG}')
    a.branch(f's_cbranch_scc1 {name}_end')
    ws_srd(a, 4)
    if need_out:
        a('s_load_dwordx2 s[8:9], s[0:1], 56')
    a('v_lshrrev_b32 v2, 6, v0')
    a('v_readfirstlane_b32 s12, v2')
    a('v_and_b32 v1, 63, v0')
    a(f'v_lshlrev_b32 v{g.v_l16}, 4, v1')
    lb = int(math.log2(MB))
    a(f's_and_b32 s13, s2, {MB - 1}')
    a(f's_lshr_b32 s14, s2, {lb}')
    if g.WN == 1:
        a('s_mov_b32 s15, s12')
        a('s_mov_b32 s16, 0')
    elif g.WM == 1:
        a('s_mov_b32 s15, 0')
        a('s_mov_b32 s16, s12')
    else:
        a('s_lshr_b32 s15, s12, 1')
        a('s_and_b32 s16, s12, 1')
    KT = g.K // 32
    for j in range(g.per_wave):
        a(f's_add_u32 s17, s12, {4 * j}')
        if 4 * j + 3 >= g.nitems:
            a(f's_min_u32 s17, s17, {g.nitems - 1}')
        a(f's_lshl_b32 s{g.s_l + j}, s17, 10')
        a('s_lshr_b32 s18, s17, 1')
        a('s_and_b32 s19, s17, 1')
        a(f's_mul_i32 s20, s13, {g.MT}')
        a('s_add_u32 s20, s20, s18')
        a(f's_mul_i32 s20, s20, {KT * 1024}')
        a(f's_add_u32 s20, s20, {g.a_base}')
        a(f's_mul_i32 s21, s14, {g.NT}')
        a('s_add_u32 s21, s21, s18')
        a(f's_sub_u32 s21, s21, {g.MT}')
        a(f's_mul_i32 s21, s21, {KT * 1024}')
        a(f's_add_u32 s21, s21, {g.b_base}')
        a(f's_cmp_lt_u32 s18, {g.MT}')
        a('s_cselect_b32 s20, s20, s21')
        a('s_lshl_b32 s19, s19, 10')
        a(f's_add_u32 s{g.s_g + j}, s20, s19')
    a(f's_mul_i32 s17, s15, {g.mtw * 2048}')
    a(f's_mul_i32 s18, s16, {g.ntw * 2048}')
    for h in range(3):
        a(f'v_add_u32 v{g.v_a + h}, s17, v{g.v_l16}')
        a(f'v_add_u32 v{g.v_b + h}, s18, v{g.v_l16}')
        if h:
            a(f'v_add_u32 v{g.v_a + h}, {h << 16}, v{g.v_a + h}')
            a(f'v_add_u32 v{g.v_b + h}, {h << 16}, v{g.v_b + h}')
    a('s_waitcnt lgkmcnt(0)')
    fin_srd(a, 4, WS_SIZE)
    if need_out:
        fin_srd(a, 8, S * D * 2)


def alloc(g, extra_base):
    g.v_l16 = 3
    g.v_a = 4
    g.v_b = 7
    g.mtw = g.MT // g.WM
    g.ntw = g.NT // g.WN
    g.nitems = 2 * (g.MT + g.NT)
    g.per_wave = (g.nitems + 3) // 4
    g.s_g = 24
    g.s_l = 56
    g.s_tmp = 22
    nacc = g.mtw * g.ntw * 4
    g.acc0 = extra_base
    g.acc = lambda i, b: g.acc0 + (i * g.ntw + b) * 4
    g.f0 = g.acc0 + nacc
    setsz = (g.mtw + g.ntw) * 2 * 4
    g.fa = lambda p, i, kt: g.f0 + p * setsz + (i * 2 + kt) * 4
    g.fb = lambda p, b, kt: g.f0 + p * setsz + (g.mtw * 2 + b * 2 + kt) * 4
    g.vend = g.f0 + 2 * setsz
    g.mid_prologue = None


def ln_stats_issue(a, g, st_base, vt):
    a(f'v_and_b32 v2, 127, v0')
    a(f'v_lshlrev_b32 v2, 6, v2')
    a(f's_lshl_b32 s17, s13, 13')
    a(f's_add_u32 s17, s17, {st_base}')
    for i in range(4):
        a(f'buffer_load_dwordx4 v[{vt+4*i}:{vt+4*i+3}], v2, s[4:7], s17 offen offset:{16*i}', tag='stats')


def ln_stats_finish(a, g, vt, lds_off):
    a.wait(vm='stats')
    for i in range(1, 8):
        a(f'v_add_f32 v{vt}, v{vt}, v{vt+2*i}')
        a(f'v_add_f32 v{vt+1}, v{vt+1}, v{vt+2*i+1}')
    inv = f32hex(1.0 / D)
    a(f'v_mul_f32 v{vt}, {inv}, v{vt}')
    a(f'v_mul_f32 v{vt+1}, {inv}, v{vt+1}')
    a(f'v_fma_f32 v{vt+1}, -v{vt}, v{vt}, v{vt+1}')
    a(f'v_max_f32 v{vt+1}, 0, v{vt+1}')
    bf16r(a, vt)
    bf16r(a, vt + 1)
    a(f'v_add_f32 v{vt+1}, {f32hex(1e-5)}, v{vt+1}')
    bf16r(a, vt + 1)
    a(f'v_sqrt_f32 v{vt+1}, v{vt+1}')
    bf16r(a, vt + 1)
    a(f'v_rcp_f32 v{vt+1}, v{vt+1}')
    a(f'v_and_b32 v{vt+2}, 127, v0')
    a(f'v_lshlrev_b32 v{vt+2}, 3, v{vt+2}')
    a(f'v_add_u32 v{vt+2}, {lds_off}, v{vt+2}')
    a(f'ds_write_b64 v{vt+2}, v[{vt}:{vt+1}]')


def gen_qkv(name, x_base, st_base):
    a = Asm()
    g = G()
    g.MT, g.NT, g.WM, g.WN, g.K, g.NS = 8, 8, 2, 2, 640, 4
    g.a_base, g.b_base = x_base, WQKV
    MISC = 10
    alloc(g, 48)
    STL = g.NS * g.nitems * 1024
    lds = STL + 1024
    MB, NB = 16, 15
    gemm_setup(a, g, name, MB, NB)
    VT_, VCS = 10, 26
    ln_stats_issue(a, g, st_base, VT_)
    a('v_lshrrev_b32 v2, 4, v1')
    a(f's_cmp_ge_u32 s14, 10')
    a.branch(f's_cbranch_scc1 {name}_v')
    a('v_lshlrev_b32 v42, 4, v2')
    a('s_lshl_b32 s17, s14, 9')
    a('s_lshl_b32 s18, s16, 8')
    a('s_add_u32 s17, s17, s18')
    a(f's_add_u32 s17, s17, {CSQ}')
    for b in range(4):
        a(f'buffer_load_dwordx4 v[{VCS+4*b}:{VCS+4*b+3}], v42, s[4:7], s17 offen offset:{64*b}', tag='cs')
    g.mid_prologue = lambda: ln_stats_finish(a, g, VT_, STL)
    gemm_core(a, g, swap=False)
    a.wait(vm='cs')
    a('v_and_b32 v43, 15, v1')
    a('v_lshlrev_b32 v44, 3, v43')
    a('s_lshl_b32 s17, s15, 9')
    a(f's_add_u32 s17, s17, {STL}')
    a('v_add_u32 v44, s17, v44')
    for i in range(4):
        a(f'ds_read_b64 v[{VT_+2*i}:{VT_+2*i+1}], v44 offset:{i*128}', tag='tst')
    a.wait(lg_all=True)
    for i in range(4):
        for b in range(4):
            acc = g.acc(i, b)
            for r in range(4):
                a(f'v_fma_f32 v{acc+r}, -v{VT_+2*i}, v{VCS+4*b+r}, v{acc+r}')
                a(f'v_mul_f32 v{acc+r}, v{VT_+2*i+1}, v{acc+r}')
    a('s_cmp_ge_u32 s14, 5')
    a('s_cselect_b32 s17, 1, 0')
    a('s_mul_i32 s18, s17, 5')
    a('s_sub_u32 s18, s14, s18')
    a('s_lshl_b32 s19, s13, 7')
    a('s_lshl_b32 s20, s15, 6')
    a('s_add_u32 s19, s19, s20')
    a('s_cmp_eq_u32 s18, 4')
    a.branch(f's_cbranch_scc1 {name}_tail')
    a('v_lshrrev_b32 v44, 1, v2')
    a('v_lshlrev_b32 v44, 16, v44')
    a('v_lshlrev_b32 v45, 5, v43')
    a('v_add_u32 v44, v44, v45')
    a('v_and_b32 v45, 1, v2')
    a('v_lshlrev_b32 v45, 4, v45')
    a('v_add_u32 v44, v44, v45')
    a('s_lshl_b32 s20, s17, 21')
    a(f's_add_u32 s20, s20, {QM}')
    a('s_lshl_b32 s21, s18, 19')
    a('s_add_u32 s20, s20, s21')
    a('s_lshl_b32 s21, s16, 18')
    a('s_add_u32 s20, s20, s21')
    a('s_lshl_b32 s21, s19, 5')
    a('s_add_u32 s20, s20, s21')
    a(f's_add_u32 s21, s20, {2*65536}')
    for i in range(4):
        for bp in range(2):
            a0, a1 = g.acc(i, 2 * bp), g.acc(i, 2 * bp + 1)
            t = VT_ + 8 + ((i * 2 + bp) & 1) * 4
            a(f'v_cvt_pk_bf16_f32 v{t}, v{a0}, v{a0+1}')
            a(f'v_cvt_pk_bf16_f32 v{t+1}, v{a0+2}, v{a0+3}')
            a(f'v_cvt_pk_bf16_f32 v{t+2}, v{a1}, v{a1+1}')
            a(f'v_cvt_pk_bf16_f32 v{t+3}, v{a1+2}, v{a1+3}')
            a(f'buffer_store_dwordx4 v[{t}:{t+3}], v44, s[4:7], s{20+bp} offen offset:{i*512}')
    a('s_endpgm')
    a.label(f'{name}_tail')
    a('v_lshlrev_b32 v44, 15, v2')
    a('v_lshlrev_b32 v45, 3, v43')
    a('v_add_u32 v44, v44, v45')
    a('s_lshl_b32 s20, s17, 19')
    a(f's_add_u32 s20, s20, {QT}')
    a('s_lshl_b32 s21, s16, 18')
    a('s_add_u32 s20, s20, s21')
    a('s_lshl_b32 s21, s19, 3')
    a('s_add_u32 s20, s20, s21')
    for bp in range(2):
        for t in range(2):
            a(f's_add_u32 s{40+bp*2+t}, s20, {(bp*8 + t) * 16384}')
    for i in range(4):
        for b in range(4):
            a0 = g.acc(i, b)
            t = VT_ + 8 + ((i * 4 + b) & 3) * 2
            a(f'v_cvt_pk_bf16_f32 v{t}, v{a0}, v{a0+1}')
            a(f'v_cvt_pk_bf16_f32 v{t+1}, v{a0+2}, v{a0+3}')
            a(f'buffer_store_dwordx2 v[{t}:{t+1}], v44, s[4:7], s{40+b} offen offset:{i*128}')
    a('s_endpgm')
    a.label(f'{name}_v')
    a.vmq = ['stats'] * 4
    a('v_and_b32 v43, 15, v1')
    a('v_lshlrev_b32 v42, 2, v43')
    a('s_lshl_b32 s17, s14, 9')
    a('s_lshl_b32 s18, s16, 8')
    a('s_add_u32 s17, s17, s18')
    a(f's_add_u32 s17, s17, {CSQ}')
    for b in range(4):
        a(f'buffer_load_dword v{VCS+b}, v42, s[4:7], s17 offen offset:{64*b}', tag='cs')
    g.mid_prologue = lambda: ln_stats_finish(a, g, VT_, STL)
    gemm_core(a, g, swap=True)
    a.wait(vm='cs')
    a('s_sub_u32 s17, s14, 10')
    a('s_lshl_b32 s17, s17, 7')
    a('s_lshl_b32 s18, s16, 6')
    a('s_add_u32 s17, s17, s18')
    a('v_add_u32 v44, s17, v43')
    a('v_and_b32 v45, 1, v2')
    a('v_lshlrev_b32 v45, 4, v45')
    a('v_lshrrev_b32 v46, 1, v2')
    a('v_lshlrev_b32 v46, 3, v46')
    a('v_add_u32 v45, v45, v46')
    a('s_mov_b32 s18, 3277')
    for b in range(4):
        vo = VCS + 4 + b
        a(f'v_add_u32 v46, {16*b}, v44')
        a('v_mul_lo_u32 v47, v46, s18')
        a('v_lshrrev_b32 v47, 16, v47')
        a(f'v_mul_u32_u24 v{vo}, 20, v47')
        a(f'v_sub_u32 v{vo}, v46, v{vo}')
        a(f'v_lshlrev_b32 v{vo}, 5, v{vo}')
        a('v_lshlrev_b32 v47, 17, v47')
        a(f'v_add_u32 v{vo}, v{vo}, v47')
        a(f'v_add_u32 v{vo}, v{vo}, v45')
    a('s_lshl_b32 s20, s13, 13')
    a('s_lshl_b32 s21, s15, 12')
    a('s_add_u32 s20, s20, s21')
    a(f's_add_u32 s20, s20, {VT}')
    a('v_lshlrev_b32 v44, 5, v2')
    a('s_lshl_b32 s17, s15, 9')
    a(f's_add_u32 s17, s17, {STL}')
    a('v_add_u32 v44, s17, v44')
    for i in range(4):
        a(f'ds_read_b128 v[{VT_}:{VT_+3}], v44 offset:{i*128}', tag='tst')
        a(f'ds_read_b128 v[{VT_+4}:{VT_+7}], v44 offset:{i*128+16}', tag='tst')
        a.wait(lg_all=True)
        for b in range(4):
            acc = g.acc(i, b)
            for r in range(4):
                a(f'v_fma_f32 v{acc+r}, -v{VT_+2*r}, v{VCS+b}, v{acc+r}')
                a(f'v_mul_f32 v{acc+r}, v{VT_+2*r+1}, v{acc+r}')
            t = VT_ + 8 + (b & 3) * 2
            a(f'v_cvt_pk_bf16_f32 v{t}, v{acc}, v{acc+1}')
            a(f'v_cvt_pk_bf16_f32 v{t+1}, v{acc+2}, v{acc+3}')
            a(f'buffer_store_dwordx2 v[{t}:{t+1}], v{VCS+4+b}, s[4:7], s20 offen offset:{i*1024}')
    a.label(f'{name}_end')
    a('s_endpgm')
    kernels.append((name, MB * NB, 256, lds, g.vend, 80, a.text()))


def gen_res(name, K, a_base, b_base, xin, xout, st_out, final=False):
    a = Asm()
    g = G()
    g.MT, g.NT, g.WM, g.WN, g.K, g.NS = 4, 5, 4, 1, K, 8
    g.a_base, g.b_base = a_base, b_base
    alloc(g, 32)
    lds = g.NS * g.nitems * 1024
    MB, NB = 32, 8
    gemm_setup(a, g, name, MB, NB, need_out=final)
    VR = 10
    a('s_lshl_b32 s17, s13, 2')
    a('s_add_u32 s17, s17, s15')
    a('s_mul_i32 s18, s14, 5')
    for b in range(5):
        a(f's_add_u32 s19, s18, {b}')
        a('s_lshr_b32 s20, s19, 1')
        a('s_and_b32 s21, s19, 1')
        a('s_lshl_b32 s21, s21, 3')
        a('s_mul_i32 s22, s17, 20')
        a('s_add_u32 s22, s22, s20')
        a('s_lshl_b32 s22, s22, 10')
        a(f's_add_u32 s{40+b}, s22, s21')
        if final:
            a(f's_mul_i32 s22, s17, {16*1280}')
            a('s_lshl_b32 s20, s20, 6')
            a('s_add_u32 s22, s22, s20')
            a(f's_add_u32 s{46+b}, s22, s21')
        a(f's_add_u32 s22, s{40+b}, {xin}')
        a(f'buffer_load_dwordx2 v[{VR+2*b}:{VR+2*b+1}], v{g.v_l16}, s[4:7], s22 offen', tag='res')
    gemm_core(a, g, swap=False)
    a.wait(vm='res')
    VS = 20
    a(f'v_mov_b32 v{VS}, 0')
    a(f'v_mov_b32 v{VS+1}, 0')
    if final:
        a('v_and_b32 v24, 15, v1')
        a('v_mul_u32_u24 v24, 1280, v24')
        a('v_lshrrev_b32 v25, 4, v1')
        a('v_lshlrev_b32 v25, 4, v25')
        a('v_add_u32 v24, v24, v25')
    for b in range(5):
        acc = g.acc(0, b)
        a(f'v_cvt_pk_bf16_f32 v{acc}, v{acc}, v{acc+1}')
        a(f'v_cvt_pk_bf16_f32 v{acc+2}, v{acc+2}, v{acc+3}')
        a(f'v_and_b32 v{acc+1}, 0xffff0000, v{acc}')
        a(f'v_lshlrev_b32 v{acc}, 16, v{acc}')
        a(f'v_and_b32 v{acc+3}, 0xffff0000, v{acc+2}')
        a(f'v_lshlrev_b32 v{acc+2}, 16, v{acc+2}')
        r0, r1 = VR + 2 * b, VR + 2 * b + 1
        a(f'v_lshlrev_b32 v22, 16, v{r0}')
        a(f'v_and_b32 v23, 0xffff0000, v{r0}')
        a(f'v_add_f32 v{acc}, v{acc}, v22')
        a(f'v_add_f32 v{acc+1}, v{acc+1}, v23')
        a(f'v_lshlrev_b32 v22, 16, v{r1}')
        a(f'v_and_b32 v23, 0xffff0000, v{r1}')
        a(f'v_add_f32 v{acc+2}, v{acc+2}, v22')
        a(f'v_add_f32 v{acc+3}, v{acc+3}, v23')
        a(f'v_cvt_pk_bf16_f32 v{r0}, v{acc}, v{acc+1}')
        a(f'v_cvt_pk_bf16_f32 v{r1}, v{acc+2}, v{acc+3}')
        if final:
            a(f'buffer_store_dwordx2 v[{r0}:{r1}], v24, s[8:11], s{46+b} offen')
        else:
            a(f's_add_u32 s22, s{40+b}, {xout}')
            a(f'buffer_store_dwordx2 v[{r0}:{r1}], v{g.v_l16}, s[4:7], s22 offen')
            for r in (r0, r1):
                a(f'v_lshlrev_b32 v22, 16, v{r}')
                a(f'v_and_b32 v23, 0xffff0000, v{r}')
                a(f'v_add_f32 v{VS}, v{VS}, v22')
                a(f'v_fma_f32 v{VS+1}, v22, v22, v{VS+1}')
                a(f'v_add_f32 v{VS}, v{VS}, v23')
                a(f'v_fma_f32 v{VS+1}, v23, v23, v{VS+1}')
    if not final:
        for sw in ('v_permlane16_swap_b32', 'v_permlane32_swap_b32'):
            for r in (VS, VS + 1):
                a(f'v_mov_b32 v22, v{r}')
                a(f'{sw} v22, v{r}')
                a(f'v_add_f32 v{r}, v{r}, v22')
        a('v_lshlrev_b32 v22, 6, v1')
        a('s_lshl_b32 s22, s17, 10')
        a('s_lshl_b32 s23, s14, 3')
        a('s_add_u32 s22, s22, s23')
        a(f's_add_u32 s22, s22, {st_out}')
        a('s_mov_b64 exec, 0xffff')
        a(f'buffer_store_dwordx2 v[{VS}:{VS+1}], v22, s[4:7], s22 offen')
    a.label(f'{name}_end')
    a('s_endpgm')
    kernels.append((name, MB * NB, 256, lds, g.vend, 80, a.text()))


def gen_gu(name, x_base, st_base):
    a = Asm()
    g = G()
    g.MT, g.NT, g.WM, g.WN, g.K, g.NS = 8, 12, 4, 1, 640, 3
    g.a_base, g.b_base = x_base, WGU
    alloc(g, 80)
    STL = g.NS * g.nitems * 1024
    lds = STL + 1024
    MB, NB = 16, 16
    gemm_setup(a, g, name, MB, NB)
    VT_, VCS = 10, 28
    ln_stats_issue(a, g, st_base, VT_)
    a('v_lshrrev_b32 v2, 4, v1')
    a('v_lshlrev_b32 v26, 4, v2')
    a(f's_mul_i32 s17, s14, {12*64}')
    a(f's_add_u32 s17, s17, {CSG}')
    for b in range(12):
        a(f'buffer_load_dwordx4 v[{VCS+4*b}:{VCS+4*b+3}], v26, s[4:7], s17 offen offset:{64*b}', tag='cs')
    g.mid_prologue = lambda: ln_stats_finish(a, g, VT_, STL)
    gemm_core(a, g, swap=False)
    a.wait(vm='cs')
    a('v_and_b32 v27, 15, v1')
    a('v_lshlrev_b32 v27, 3, v27')
    a('s_lshl_b32 s17, s15, 8')
    a(f's_add_u32 s17, s17, {STL}')
    a('v_add_u32 v27, s17, v27')
    for i in range(2):
        a(f'ds_read_b64 v[{VT_+2*i}:{VT_+2*i+1}], v27 offset:{i*128}', tag='tst')
    a.wait(lg_all=True)
    for i in range(2):
        a(f'v_mul_f32 v{VT_+4+i}, {f32hex(-LOG2E)}, v{VT_+2*i+1}')
    a('s_lshl_b32 s17, s13, 3')
    a('s_lshl_b32 s18, s15, 1')
    a('s_add_u32 s17, s17, s18')
    a('s_mul_i32 s17, s17, 48')
    a('s_mul_i32 s18, s14, 3')
    a('s_add_u32 s17, s17, s18')
    a('s_lshl_b32 s17, s17, 10')
    a(f's_add_u32 s17, s17, {HF}')
    a(f's_add_u32 s18, s17, {48*1024}')
    for i in range(2):
        for fg in range(3):
            t = VT_ + 8 + ((i * 3 + fg) & 1) * 4
            for tt in range(2):
                ag, au = g.acc(i, fg * 4 + tt), g.acc(i, fg * 4 + 2 + tt)
                cg, cu = VCS + 4 * (fg * 4 + tt), VCS + 4 * (fg * 4 + 2 + tt)
                for r in range(4):
                    a(f'v_fma_f32 v{ag+r}, -v{VT_+2*i}, v{cg+r}, v{ag+r}')
                    a(f'v_mul_f32 v{ag+r}, v{VT_+4+i}, v{ag+r}')
                    a(f'v_exp_f32 v{ag+r}, v{ag+r}')
                    a(f'v_fma_f32 v{au+r}, -v{VT_+2*i}, v{cu+r}, v{au+r}')
                    a(f'v_mul_f32 v{au+r}, v{VT_+2*i+1}, v{au+r}')
                    a(f'v_add_f32 v{ag+r}, 1.0, v{ag+r}')
                    a(f'v_rcp_f32 v{ag+r}, v{ag+r}')
                for r in range(4):
                    a(f'v_mul_f32 v{au+r}, v{au+r}, v{ag+r}')
                a(f'v_cvt_pk_bf16_f32 v{t+2*tt}, v{au}, v{au+1}')
                a(f'v_cvt_pk_bf16_f32 v{t+2*tt+1}, v{au+2}, v{au+3}')
            a(f'buffer_store_dwordx4 v[{t}:{t+3}], v{g.v_l16}, s[4:7], s{17+i} offen offset:{fg*1024}')
    a.label(f'{name}_end')
    a('s_endpgm')
    kernels.append((name, MB * NB, 256, lds, g.vend, 80, a.text()))


def gen_attn(name):
    a = Asm()
    NWG = 512
    begin(a, name)
    a(f's_cmp_ge_u32 s2, {NWG}')
    a.branch(f's_cbranch_scc1 {name}_end')
    ws_srd(a, 4)
    SB = 16
    OB = 160
    KV = 176
    QB = 248
    a('v_lshrrev_b32 v2, 6, v0')
    a('v_readfirstlane_b32 s12, v2')
    a('v_and_b32 v1, 63, v0')
    a('v_and_b32 v3, 31, v1')
    a('v_lshrrev_b32 v4, 5, v1')
    a('v_lshlrev_b32 v5, 5, v3')
    a('v_lshlrev_b32 v6, 4, v4')
    a('v_add_u32 v5, v5, v6')
    a('v_lshlrev_b32 v7, 3, v3')
    a('v_min_u32 v8, 20, v3')
    a('v_lshlrev_b32 v8, 5, v8')
    a('v_add_u32 v8, v8, v6')
    a('s_lshr_b32 s13, s2, 4')
    a('s_and_b32 s14, s2, 15')
    a('s_lshl_b32 s14, s14, 2')
    a('s_add_u32 s14, s14, s12')
    a('s_lshl_b32 s15, s14, 5')
    a('s_lshl_b32 s16, s13, 11')
    a('s_waitcnt lgkmcnt(0)')
    fin_srd(a, 4, WS_SIZE)
    a('s_add_u32 s17, s16, s15')
    a('s_lshl_b32 s18, s17, 5')
    a(f's_add_u32 s18, s18, {QM}')
    a(f'buffer_load_dwordx4 v[{QB}:{QB+3}], v5, s[4:7], s18 offen', tag='q')
    a('s_lshl_b32 s18, s17, 3')
    a(f's_add_u32 s18, s18, {QT}')
    a(f'buffer_load_dwordx2 v[{QB+4}:{QB+5}], v7, s[4:7], s18 offen', tag='q')
    for t in range(9):
        a(f's_add_i32 s19, s15, {-256 + 32*t}')
        a('s_max_i32 s19, s19, 0')
        a('s_add_u32 s19, s19, s16')
        a('s_lshl_b32 s20, s19, 5')
        a(f's_add_u32 s20, s20, {KM}')
        a(f'buffer_load_dwordx4 v[{KV+6*t+2}:{KV+6*t+5}], v5, s[4:7], s20 offen' if False else
          f'buffer_load_dwordx4 v[{KV+8*t}:{KV+8*t+3}], v5, s[4:7], s20 offen', tag=('k', t))
        a('s_lshl_b32 s20, s19, 3')
        a(f's_add_u32 s20, s20, {KT_}')
        a(f'buffer_load_dwordx2 v[{KV+8*t+4}:{KV+8*t+5}], v7, s[4:7], s20 offen', tag=('k', t))
    NEG = '0xff7fffff'
    a('v_lshlrev_b32 v9, 2, v4')
    a('v_sub_u32 v9, v3, v9')
    a(f'v_mov_b32 v10, {NEG}')
    for r in range(16):
        c = 8 * (r >> 2) + (r & 3)
        a(f'v_cmp_le_i32 vcc, {c}, v9')
        a(f'v_cndmask_b32 v{SB+8*16+r}, v10, 0, vcc' if False else f'v_cndmask_b32 v{SB+8*16+r}, v10, v11, vcc' if False else f'v_cndmask_b32_e64 v{SB+8*16+r}, v10, 0, vcc')
        a(f'v_cndmask_b32_e64 v{SB+r}, 0, v10, vcc')
    a.wait(vm='q')
    a('v_cmp_eq_u32 vcc, 0, v4')
    a(f'v_cndmask_b32_e64 v{QB+4}, 0, v{QB+4}, vcc')
    a(f'v_cndmask_b32_e64 v{QB+5}, 0, v{QB+5}, vcc')
    for t in range(9):
        a.wait(vm=('k', t))
        s0 = SB + 16 * t
        c = f'v[{s0}:{s0+15}]' if t in (0, 8) else '0'
        a(f'v_mfma_f32_32x32x16_bf16 v[{s0}:{s0+15}], v[{KV+8*t}:{KV+8*t+3}], v[{QB}:{QB+3}], {c}')
        a(f'v_mfma_f32_32x32x8_bf16 v[{s0}:{s0+15}], v[{KV+8*t+4}:{KV+8*t+5}], v[{QB+4}:{QB+5}], v[{s0}:{s0+15}]')
    a('s_lshl_b32 s21, s13, 17')
    a(f's_add_u32 s21, s21, {VT}')
    for t in range(9):
        a(f's_add_i32 s19, s15, {-256 + 32*t}')
        a('s_max_i32 s19, s19, 0')
        a('s_lshl_b32 s19, s19, 6')
        a('s_add_u32 s19, s19, s21')
        for s in range(2):
            a(f'buffer_load_dwordx4 v[{KV+8*t+4*s}:{KV+8*t+4*s+3}], v8, s[4:7], s19 offen offset:{1024*s}', tag=('v', t))
    for t in range(8):
        L = a.newlabel('skip')
        a(f's_cmp_ge_i32 s15, {256 - 32*t}')
        a.branch(f's_cbranch_scc1 {L}')
        for r in range(16):
            a(f'v_mov_b32 v{SB+16*t+r}, v10')
        a.label(L)
    regs = [SB + i for i in range(144)]
    a(f'v_max3_f32 v11, v{regs[0]}, v{regs[1]}, v{regs[2]}')
    a(f'v_max3_f32 v12, v{regs[3]}, v{regs[4]}, v{regs[5]}')
    i = 6
    k = 0
    while i + 1 < 144:
        d = 11 + (k & 1)
        a(f'v_max3_f32 v{d}, v{d}, v{regs[i]}, v{regs[i+1]}')
        i += 2
        k += 1
    a('v_max_f32 v11, v11, v12')
    a('v_mov_b32 v12, v11')
    a('v_permlane32_swap_b32 v11, v12')
    a('v_max_f32 v11, v11, v12')
    cs = (DH ** -0.5) * LOG2E
    a(f's_mov_b32 s22, {f32hex(cs)}')
    a('v_mul_f32 v11, s22, v11')
    for t in range(9):
        s0 = SB + 16 * t
        for r in range(16):
            a(f'v_fma_f32 v{s0+r}, v{s0+r}, s22, -v11')
        for r in range(16):
            a(f'v_exp_f32 v{s0+r}, v{s0+r}')
        for r in range(8):
            a(f'v_cvt_pk_bf16_f32 v{s0+r}, v{s0+2*r}, v{s0+2*r+1}')
    for t in range(9):
        a.wait(vm=('v', t))
        s0 = SB + 16 * t
        for s in range(2):
            c = '0' if (t == 0 and s == 0) else f'v[{OB}:{OB+15}]'
            a(f'v_mfma_f32_32x32x16_bf16 v[{OB}:{OB+15}], v[{KV+8*t+4*s}:{KV+8*t+4*s+3}], v[{s0+4*s}:{s0+4*s+3}], {c}')
    a(f'v_mov_b32 v11, v{OB+8}')
    a(f'v_mov_b32 v12, v{OB+8}')
    a('v_permlane32_swap_b32 v11, v12')
    a('v_rcp_f32 v12, v12')
    for r in range(12):
        a(f'v_mul_f32 v{OB+r}, v{OB+r}, v12')
    for r in range(6):
        a(f'v_cvt_pk_bf16_f32 v{OB+r}, v{OB+2*r}, v{OB+2*r+1}')
    a('v_lshrrev_b32 v13, 4, v3')
    a(f'v_mul_u32_u24 v13, {20*1024}, v13')
    a('v_and_b32 v14, 15, v3')
    a('v_lshlrev_b32 v14, 4, v14')
    a('v_add_u32 v13, v13, v14')
    a('v_lshlrev_b32 v14, 8, v4')
    a('v_add_u32 v14, v14, v13')
    a('s_lshr_b32 s17, s15, 4')
    a(f's_mul_i32 s17, s17, {20*1024}')
    a(f's_add_u32 s17, s17, {OF}')
    a('s_lshr_b32 s18, s13, 1')
    a('s_lshl_b32 s18, s18, 10')
    a('s_and_b32 s19, s13, 1')
    a('s_lshl_b32 s20, s19, 9')
    a('s_add_u32 s18, s18, s20')
    a('s_add_u32 s18, s18, s17')
    a(f'buffer_store_dwordx4 v[{OB}:{OB+3}], v14, s[4:7], s18 offen')
    a('s_lshr_b32 s18, s13, 3')
    a('s_add_u32 s18, s18, 16')
    a('s_lshl_b32 s18, s18, 10')
    a('s_lshr_b32 s20, s13, 1')
    a('s_and_b32 s20, s20, 3')
    a('s_lshl_b32 s20, s20, 8')
    a('s_add_u32 s18, s18, s20')
    a('s_lshl_b32 s19, s19, 3')
    a('s_add_u32 s18, s18, s19')
    a('s_add_u32 s18, s18, s17')
    a('s_mov_b32 exec_hi, 0')
    a(f'buffer_store_dwordx2 v[{OB+4}:{OB+5}], v13, s[4:7], s18 offen')
    a.label(f'{name}_end')
    a('s_endpgm')
    kernels.append((name, NWG, 256, 0, 256, 32, a.text()))


def magic(d):
    return (2 ** 32 + d - 1) // d


def map_tile(a, kind, vn0, vT, vi0, t0, t1, t2):
    if kind in 'AGU':
        a(f'v_lshrrev_b32 v{t0}, 5, v{vn0}')
        a(f'v_bfe_u32 v{t1}, v{vn0}, 2, 1')
        a(f'v_bfe_u32 v{vi0}, v{vn0}, 3, 2')
        a(f'v_lshlrev_b32 v{vi0}, 2, v{vi0}')
        sh = 1 if kind == 'A' else 2
        a(f'v_lshlrev_b32 v{vT}, {sh}, v{t0}')
        a(f'v_add_u32 v{vT}, v{vT}, v{t1}')
        if kind == 'U':
            a(f'v_add_u32 v{vT}, 2, v{vT}')
    else:
        a(f's_mov_b32 s30, {magic(640)}')
        a(f'v_mul_hi_u32 v{t0}, v{vn0}, s30')
        a(f'v_mul_u32_u24 v{t1}, 640, v{t0}')
        a(f'v_sub_u32 v{t1}, v{vn0}, v{t1}')
        a('s_mov_b32 s30, 3277')
        a(f'v_mul_lo_u32 v{t2}, v{t1}, s30')
        a(f'v_lshrrev_b32 v{t2}, 16, v{t2}')
        a(f'v_mul_u32_u24 v{vi0}, 20, v{t2}')
        a(f'v_sub_u32 v{vi0}, v{t1}, v{vi0}')
        a(f'v_cmp_gt_u32 vcc, 16, v{vi0}')
        a(f'v_and_b32 v{vT}, 1, v{t2}')
        a(f'v_lshlrev_b32 v{vT}, 4, v{vT}')
        a(f'v_add_u32 v{vi0}, v{vi0}, v{vT}')
        a(f'v_and_b32 v{vT}, 7, v{t2}')
        a(f'v_lshlrev_b32 v{vT}, 2, v{vT}')
        a(f'v_cndmask_b32 v{vi0}, v{vT}, v{vi0}, vcc')
        a(f'v_lshrrev_b32 v{vT}, 3, v{t2}')
        a(f'v_add_u32 v{vT}, 16, v{vT}')
        a(f'v_lshrrev_b32 v{t2}, 1, v{t2}')
        a(f'v_cndmask_b32 v{t2}, v{vT}, v{t2}, vcc')
        a(f'v_lshlrev_b32 v{vT}, 1, v{t2}')
        a(f'v_bfe_u32 v{t2}, v{vi0}, 2, 1')
        a(f'v_add_u32 v{vT}, v{vT}, v{t2}')
        a(f'v_mul_u32_u24 v{t2}, 40, v{t0}')
        a(f'v_add_u32 v{vT}, v{vT}, v{t2}')
        a(f'v_lshrrev_b32 v{vi0}, 3, v{vi0}')
        a(f'v_lshlrev_b32 v{vi0}, 2, v{vi0}')
        a(f'v_cmp_eq_u32 vcc, 2, v{t0}')
        a(f'v_lshrrev_b32 v{t2}, 4, v{t1}')
        a(f'v_add_u32 v{t2}, 80, v{t2}')
        a(f'v_cndmask_b32 v{vT}, v{vT}, v{t2}, vcc')
        a(f'v_and_b32 v{t2}, 15, v{t1}')
        a(f'v_cndmask_b32 v{vi0}, v{vi0}, v{t2}, vcc')


def gen_prep(name):
    a = Asm()
    begin(a, name)
    roles = [
        ('wqkv', 150, 8, 640, 1920, 'Q', WQKV),
        ('wo', 50, 16, 640, 640, 'A', WO_),
        ('wg', 120, 32, 640, 1536, 'G', WGU),
        ('wu', 120, 40, 640, 1536, 'U', WGU),
        ('wd', 120, 48, 1536, 640, 'A', WD_),
    ]
    cs_roles = [('csq', 30, 8, 1920, 'Q', CSQ), ('csg', 24, 32, 1536, 'G', CSG), ('csu', 24, 40, 1536, 'U', CSG)]
    NWG = sum(r[1] for r in roles) + sum(r[1] for r in cs_roles) + 32
    a(f's_cmp_ge_u32 s2, {NWG}')
    a.branch(f's_cbranch_scc1 {name}_end')
    ws_srd(a, 4)
    base = 0
    starts = {}
    for r in roles + cs_roles:
        starts[r[0]] = base
        base += r[1]
    starts['x'] = base
    order = [r[0] for r in roles + cs_roles] + ['x']
    for lab in reversed(order[1:]):
        a(f's_cmp_ge_u32 s2, {starts[lab]}')
        a.branch(f's_cbranch_scc1 {name}_{lab}')
    SEL_LO, SEL_HI = 0x05040100, 0x07060302
    for (lab, nwg, slot, K, N, kind, dst) in roles:
        a.label(f'{name}_{lab}')
        a(f's_load_dwordx2 s[8:9], s[0:1], {slot}')
        NQ = N // 4
        KT = K // 32
        a(f's_sub_u32 s12, s2, {starts[lab]}')
        a('s_lshl_b32 s12, s12, 8')
        a('v_add_u32 v1, s12, v0')
        a(f's_mov_b32 s13, {magic(NQ)}')
        a('v_mul_hi_u32 v2, v1, s13')
        a(f'v_mul_u32_u24 v3, {NQ}, v2')
        a('v_sub_u32 v3, v1, v3')
        a('v_lshlrev_b32 v4, 2, v3')
        map_tile(a, kind, 4, 5, 6, 7, 8, 9)
        a(f'v_mul_u32_u24 v5, {KT}, v5')
        a('v_lshrrev_b32 v7, 2, v2')
        a('v_add_u32 v5, v5, v7')
        a('v_lshlrev_b32 v5, 6, v5')
        a('v_and_b32 v7, 3, v2')
        a('v_lshlrev_b32 v7, 4, v7')
        a('v_add_u32 v5, v5, v7')
        a('v_add_u32 v5, v5, v6')
        a('v_lshlrev_b32 v5, 4, v5')
        a('v_lshlrev_b32 v3, 3, v3')
        if lab == 'wo':
            a('v_lshrrev_b32 v7, 1, v2')
            a('v_mul_u32_u24 v7, 20, v7')
            a('v_and_b32 v8, 1, v2')
            a('v_lshlrev_b32 v8, 2, v8')
            a('v_add_u32 v7, v7, v8')
            a('v_add_u32 v8, 8, v7')
            a('v_subrev_u32 v9, 64, v2')
            a('v_mul_u32_u24 v9, 40, v9')
            a('v_add_u32 v9, 16, v9')
            a('v_add_u32 v10, 20, v9')
            a('v_cmp_gt_u32 vcc, 64, v2')
            a('v_cndmask_b32 v7, v9, v7, vcc')
            a('v_cndmask_b32 v8, v10, v8, vcc')
        else:
            a('v_lshlrev_b32 v7, 3, v2')
            a('v_add_u32 v8, 4, v7')
        a(f's_mov_b32 s13, {N*2}')
        a('v_mul_lo_u32 v7, v7, s13')
        a('v_mul_lo_u32 v8, v8, s13')
        a('v_add_u32 v7, v7, v3')
        a('v_add_u32 v8, v8, v3')
        a('s_waitcnt lgkmcnt(0)')
        fin_srd(a, 4, WS_SIZE)
        fin_srd(a, 8, K * N * 2)
        for c in range(8):
            a(f's_mov_b32 s{14+(c&3)}, {(c&3)*N*2}')
            a(f'buffer_load_dwordx2 v[{16+2*c}:{17+2*c}], v{7+(c>>2)}, s[8:11], s{14+(c&3)} offen', tag='w')
        a(f's_mov_b32 s20, {SEL_LO}')
        a(f's_mov_b32 s21, {SEL_HI}')
        a(f's_mov_b32 s22, {dst}')
        a.wait(vm='w')
        for n in range(4):
            for cp in range(4):
                A = 16 + 2 * (2 * cp) + (n >> 1)
                B = 16 + 2 * (2 * cp + 1) + (n >> 1)
                a(f'v_perm_b32 v{32+4*n+cp}, v{B}, v{A}, s{20+(n&1)}')
            a(f'buffer_store_dwordx4 v[{32+4*n}:{35+4*n}], v5, s[4:7], s22 offen offset:{16*n}')
        a('s_endpgm')
    for (lab, nwg, slot, N, kind, dst) in cs_roles:
        a.label(f'{name}_{lab}')
        a(f's_load_dwordx2 s[8:9], s[0:1], {slot}')
        a(f's_sub_u32 s12, s2, {starts[lab]}')
        a('s_lshl_b32 s12, s12, 6')
        a('v_lshrrev_b32 v1, 4, v0')
        a('v_and_b32 v2, 15, v0')
        a(f'v_mul_u32_u24 v3, {40}, v1')
        a(f's_mov_b32 s13, {N*2}')
        a('v_mul_lo_u32 v3, v3, s13')
        a('v_lshlrev_b32 v4, 3, v2')
        a('v_add_u32 v3, v3, v4')
        a('s_lshl_b32 s14, s12, 1')
        a('v_add_u32 v3, s14, v3')
        a('s_waitcnt lgkmcnt(0)')
        fin_srd(a, 4, WS_SIZE)
        fin_srd(a, 8, 640 * N * 2)
        for r in range(40):
            a(f's_mov_b32 s{14+(r&3)}, {r*N*2}')
            a(f'buffer_load_dwordx2 v[{16+2*r}:{17+2*r}], v3, s[8:11], s{14+(r&3)} offen', tag=('c', r))
        for e in range(4):
            a(f'v_mov_b32 v{8+e}, 0')
        for r in range(40):
            a.wait(vm=('c', r))
            for w in range(2):
                a(f'v_lshlrev_b32 v12, 16, v{16+2*r+w}')
                a(f'v_and_b32 v13, 0xffff0000, v{16+2*r+w}')
                a(f'v_add_f32 v{8+2*w}, v{8+2*w}, v12')
                a(f'v_add_f32 v{9+2*w}, v{9+2*w}, v13')
        a('v_lshlrev_b32 v4, 4, v0')
        a('ds_write_b128 v4, v[8:11]')
        a.wait(lg_all=True)
        a('s_barrier')
        a('v_lshlrev_b32 v4, 2, v0')
        for kc in range(16):
            a(f'ds_read_b32 v{16+kc}, v4 offset:{kc*256}', tag='r')
        a('v_lshrrev_b32 v2, 2, v0')
        a('v_lshlrev_b32 v2, 2, v2')
        a('v_add_u32 v2, s12, v2')
        map_tile(a, kind, 2, 5, 6, 7, 8, 9)
        a('v_lshlrev_b32 v5, 4, v5')
        a('v_add_u32 v5, v5, v6')
        a('v_and_b32 v6, 3, v0')
        a('v_add_u32 v5, v5, v6')
        a('v_lshlrev_b32 v5, 2, v5')
        a.wait(lg_all=True)
        for kc in range(1, 16):
            a(f'v_add_f32 v16, v16, v{16+kc}')
        a(f's_mov_b32 s22, {dst}')
        a('v_cmp_gt_u32 vcc, 64, v0')
        a('s_and_saveexec_b64 s[24:25], vcc')
        a.branch(f's_cbranch_execz {name}_end')
        a('buffer_store_dword v16, v5, s[4:7], s22 offen')
        a('s_endpgm')
    a.label(f'{name}_x')
    a('s_load_dwordx2 s[8:9], s[0:1], 0')
    a('v_lshrrev_b32 v2, 6, v0')
    a('v_readfirstlane_b32 s12, v2')
    a('v_and_b32 v1, 63, v0')
    a(f's_sub_u32 s13, s2, {starts["x"]}')
    a('s_lshl_b32 s14, s13, 2')
    a('s_add_u32 s14, s14, s12')
    a('v_and_b32 v3, 15, v1')
    a('v_mul_u32_u24 v3, 1280, v3')
    a('v_lshrrev_b32 v4, 4, v1')
    a('v_lshlrev_b32 v4, 4, v4')
    a('v_add_u32 v3, v3, v4')
    a(f's_mul_i32 s15, s14, {16*1280}')
    a('v_lshlrev_b32 v5, 4, v1')
    a('s_waitcnt lgkmcnt(0)')
    fin_srd(a, 4, WS_SIZE)
    fin_srd(a, 8, S * D * 2)
    for kt in range(20):
        a(f'buffer_load_dwordx4 v[{16+4*kt}:{19+4*kt}], v3, s[8:11], s15 offen offset:{64*kt}', tag=('x', kt))
    a(f's_mul_i32 s16, s14, {20*1024}')
    a(f's_add_u32 s16, s16, {XF[0]}')
    a('v_mov_b32 v8, 0')
    a('v_mov_b32 v9, 0')
    for kt in range(20):
        a.wait(vm=('x', kt))
        a(f's_add_u32 s{17+(kt&1)}, s16, {kt*1024}')
        a(f'buffer_store_dwordx4 v[{16+4*kt}:{19+4*kt}], v5, s[4:7], s{17+(kt&1)} offen')
        for w in range(4):
            a(f'v_lshlrev_b32 v12, 16, v{16+4*kt+w}')
            a(f'v_and_b32 v13, 0xffff0000, v{16+4*kt+w}')
            a('v_add_f32 v8, v8, v12')
            a('v_fma_f32 v9, v12, v12, v9')
            a('v_add_f32 v8, v8, v13')
            a('v_fma_f32 v9, v13, v13, v9')
    for sw in ('v_permlane16_swap_b32', 'v_permlane32_swap_b32'):
        for r in (8, 9):
            a(f'v_mov_b32 v12, v{r}')
            a(f'{sw} v12, v{r}')
            a(f'v_add_f32 v{r}, v{r}, v12')
    a('s_lshl_b32 s17, s13, 8')
    a('v_add_u32 v6, s17, v0')
    a('v_lshrrev_b32 v7, 1, v6')
    a('v_lshlrev_b32 v7, 10, v7')
    a('v_and_b32 v6, 1, v6')
    a('v_lshlrev_b32 v6, 4, v6')
    a('v_add_u32 v7, v7, v6')
    for i in range(4):
        a(f'v_mov_b32 v{100+i}, 0x3f803f80')
    a(f's_mov_b32 s18, {VT + 640}')
    a('buffer_store_dwordx4 v[100:103], v7, s[4:7], s18 offen')
    for i in range(10, 16):
        a(f'v_mov_b32 v{i}, 0')
    a('v_lshlrev_b32 v6, 6, v1')
    a('s_lshl_b32 s17, s14, 10')
    a(f's_add_u32 s17, s17, {ST[0]}')
    a('s_mov_b64 exec, 0xffff')
    a('buffer_store_dwordx4 v[8:11], v6, s[4:7], s17 offen')
    for i in range(1, 4):
        a(f'buffer_store_dwordx4 v[12:15], v6, s[4:7], s17 offen offset:{16*i}')
    a.label(f'{name}_end')
    a('s_endpgm')
    kernels.append((name, NWG, 256, 8192, 128, 40, a.text()))


def build():
    gen_prep('prep_kernel')
    gen_qkv('qkv1_kernel', XF[0], ST[0])
    gen_attn('attn_kernel')
    gen_res('wo1_kernel', 640, OF, WO_, XF[0], XF[1], ST[1])
    gen_gu('gu1_kernel', XF[1], ST[1])
    gen_res('dn1_kernel', 1536, HF, WD_, XF[1], XF[2], ST[2])
    gen_qkv('qkv2_kernel', XF[2], ST[2])
    gen_res('wo2_kernel', 640, OF, WO_, XF[2], XF[3], ST[3])
    gen_gu('gu2_kernel', XF[3], ST[3])
    gen_res('dn2_kernel', 1536, HF, WD_, XF[3], None, None, final=True)
    order = ['prep_kernel', 'qkv1_kernel', 'attn_kernel', 'wo1_kernel', 'gu1_kernel', 'dn1_kernel',
             'qkv2_kernel', 'attn_kernel', 'wo2_kernel', 'gu2_kernel', 'dn2_kernel']
    kd = {k[0]: k for k in kernels}
    hdr = open('interleave_layers__sliding_block__glu_gated_glu__prompt.s.ref').read().split('\n')
    out = [l for l in hdr if l.startswith(';') and '@launch' not in l and 'Override' not in l and 'grid=ceil' not in l]
    for n in order:
        k = kd[n]
        out.append(f'; @launch kernel={n} grid=({k[1]},1,1) block=({k[2]},1,1) lds={k[3]}')
    out.append('.amdgcn_target "amdgcn-amd-amdhsa--gfx950"')
    for k in kernels:
        out.append(k[6])
    out.append('.section .rodata,"a"')
    for k in kernels:
        nv = (k[4] + 7) // 8 * 8
        out.append('.p2align 6')
        out.append(f'.amdhsa_kernel {k[0]}')
        out.append(f'  .amdhsa_next_free_vgpr {nv}')
        out.append(f'  .amdhsa_next_free_sgpr {k[5]}')
        out.append(f'  .amdhsa_accum_offset {min(nv, 256)}')
        out.append('  .amdhsa_group_segment_fixed_size 0')
        out.append('  .amdhsa_kernarg_size 80')
        out.append('  .amdhsa_user_sgpr_count 2')
        out.append('  .amdhsa_user_sgpr_kernarg_segment_ptr 1')
        out.append('  .amdhsa_system_sgpr_workgroup_id_x 1')
        out.append('.end_amdhsa_kernel')
    open('interleave_layers__sliding_block__glu_gated_glu__prompt.s', 'w').write('\n'.join(out) + '\n')
    for k in kernels:
        print(k[0], 'grid', k[1], 'lds', k[3], 'vgpr', k[4])


if __name__ == '__main__':
    build()
```

```python
import sys, math
sys.path.insert(0, 'gen')
from asmlib import Asm

S, D, H, DH, F = 2048, 640, 32, 20, 1536
WQKV = 0x0
WO_ = 0x260000
WGU = 0x330000
WD_ = 0x6F0000
CSQ = 0x8D0000
CSG = 0x8D2000
XF = [0x900000, 0xC00000, 0xF00000, 0x1200000]
ST = [0x1500000 + i * 0x20000 for i in range(4)]
QM = 0x1600000
KM = 0x1800000
QT = 0x1A00000
KT_ = 0x1A80000
VT = 0x1B00000
OF = 0x1F00000
HF = 0x2200000
WS_SIZE = 0x10000000

LOG2E = 1.4426950408889634


def f32hex(x):
    import struct
    return '0x%08x' % struct.unpack('<I', struct.pack('<f', x))[0]


kernels = []
import os
STAMP = os.environ.get('STAMP', '')
stamp_n = [0]


def stamp(a, name):
    if STAMP != name:
        return
    i = stamp_n[0]
    stamp_n[0] += 1
    a(f's_memtime s[{80+2*i}:{81+2*i}]')
    a('s_waitcnt lgkmcnt(0)')


def stamp_out(a, name):
    if STAMP != name:
        return
    n = stamp_n[0]
    L = a.newlabel('so')
    a('s_mov_b64 exec, -1')
    a(f's_cmp_lg_u32 s2, {os.environ.get("STAMP_WG", "0")}')
    a.branch(f's_cbranch_scc1 {L}')
    a('s_load_dwordx2 s[76:77], s[0:1], 64')
    a('s_waitcnt lgkmcnt(0)')
    a('s_and_b32 s77, s77, 0xffff')
    a('s_mov_b32 s78, 256')
    a('s_mov_b32 s79, 0x00020000')
    a('v_lshrrev_b32 v0, 6, v0')
    a('v_lshlrev_b32 v0, 6, v0')
    for i in range(n):
        a(f'v_mov_b32 v1, s{80+2*i}')
        a(f'buffer_store_dword v1, v0, s[76:79], 0 offen offset:{4*i}')
    a.label(L)
    stamp_n[0] = 0


def begin(a, name):
    a.raw('.text')
    a.raw(f'.globl {name}')
    a.raw('.p2align 8')
    a.raw(f'.type {name},@function')
    a.raw(f'{name}:')


def ws_srd(a, sreg=4, slot=72, size=WS_SIZE):
    a(f's_load_dwordx2 s[{sreg}:{sreg+1}], s[0:1], {slot}')


def fin_srd(a, sreg, size):
    a(f's_and_b32 s{sreg+1}, s{sreg+1}, 0xffff')
    a(f's_mov_b32 s{sreg+2}, {size}')
    a(f's_mov_b32 s{sreg+3}, 0x00020000')


def R4(i):
    return f'v[{i}:{i+3}]' if i < 256 else f'a[{i-256}:{i-253}]'


def bf16r(a, v):
    a(f'v_cvt_pk_bf16_f32 v{v}, v{v}, v{v}')
    a(f'v_lshlrev_b32 v{v}, 16, v{v}')


class G:
    pass


NL = 2


def gemm_core(a, g, swap):
    KS = g.K // 64
    NS = g.NS
    SB = g.nitems * 1024

    def lds_read(dst, vbase, off, tag):
        hi = off >> 16
        a(f'ds_read_b128 {R4(dst)}, v{vbase + hi} offset:{off & 0xffff}', tag=tag)

    def read_list(st, kt):
        sl = st % NS
        L = []
        for i in range(g.mtw):
            L.append(lambda i=i: lds_read(g.fa(kt, i), g.v_a, sl * SB + (i * 2 + kt) * 1024, ('rd', st, kt)))
        for b in range(g.ntw):
            L.append(lambda b=b: lds_read(g.fb(kt, b), g.v_b, sl * SB + (g.MT * 2 + b * 2 + kt) * 1024, ('rd', st, kt)))
        return L

    def mfmas(st, kt, R):
        nm = g.mtw * g.ntw
        nr = len(R)
        span = max(1, int(nm * 0.6))
        cnt = 0
        si = 0
        for i in range(g.mtw):
            for b in range(g.ntw):
                acc = g.acc(i, b)
                A = g.fa(kt, i)
                B = g.fb(kt, b)
                c = '0' if (st == 0 and kt == 0) else f'v[{acc}:{acc+3}]'
                if swap:
                    a(f'v_mfma_f32_16x16x32_bf16 v[{acc}:{acc+3}], {R4(A)}, {R4(B)}, {c}')
                else:
                    a(f'v_mfma_f32_16x16x32_bf16 v[{acc}:{acc+3}], {R4(B)}, {R4(A)}, {c}')
                cnt += 1
                while si < nr and (si * span) / nr < cnt:
                    R[si]()
                    si += 1
        while si < nr:
            R[si]()
            si += 1

    stamp(a, g.name)
    if g.mid_prologue:
        g.mid_prologue()
    a.wait(lg_all=True)
    a('s_barrier')
    stamp(a, g.name)
    for f in read_list(0, 0):
        f()
    for st in range(KS):
        a.wait(lg=('rd', st, 0))
        mfmas(st, 0, read_list(st, 1))
        a.wait(lg_all=True)
        if st + 1 < KS:
            a('s_barrier')
            if st + 1 in (1, 4, KS - 1):
                stamp(a, g.name)
        mfmas(st, 1, read_list(st + 1, 0) if st + 1 < KS else [])
    stamp(a, g.name)


def loader_path(a, g):
    KS = g.K // 64
    NS = g.NS
    SB = g.nitems * 1024
    KT = g.K // 32
    npairs = g.MT + g.NT
    per = (npairs + NL - 1) // NL
    a('s_sub_u32 s12, s12, 4')
    for j in range(per):
        a(f's_add_u32 s18, s12, {NL * j}')
        if NL * j + NL - 1 >= npairs:
            a(f's_min_u32 s18, s18, {npairs - 1}')
        a(f's_lshl_b32 s{g.s_l + j}, s18, 11')
        a(f's_mul_i32 s20, s13, {g.MT}')
        a('s_add_u32 s20, s20, s18')
        a(f's_mul_i32 s20, s20, {KT * 1024}')
        a(f's_add_u32 s20, s20, {g.a_base}')
        a(f's_mul_i32 s21, s14, {g.NT}')
        a('s_add_u32 s21, s21, s18')
        a(f's_sub_u32 s21, s21, {g.MT}')
        a(f's_mul_i32 s21, s21, {KT * 1024}')
        a(f's_add_u32 s21, s21, {g.b_base}')
        a(f's_cmp_lt_u32 s18, {g.MT}')
        a(f's_cselect_b32 s{g.s_g + j}, s20, s21')

    def dma(st):
        sl = st % NS
        for j in range(per):
            a(f's_add_u32 m0, s{g.s_l + j}, {sl * SB}')
            t = g.s_tmp + (j & 1)
            a(f's_add_u32 s{t}, s{g.s_g + j}, {st * 2048}')
            a(f'buffer_load_dwordx4 v{g.v_l16}, s[4:7], s{t} offen lds', tag=('dma', st))
            a(f'buffer_load_dwordx4 v{g.v_l16}, s[4:7], s{t} offen offset:1024 lds', tag=('dma', st))

    for st in range(min(NS, KS)):
        dma(st)
    for st in range(KS):
        a.wait(vm=('dma', st))
        a('s_barrier')
        if st >= 1 and st + NS - 1 < KS:
            dma(st + NS - 1)
    a('s_endpgm')


def gemm_setup(a, g, name, MB, NB, need_out=False):
    NWG = MB * NB
    g.name = name
    begin(a, name)
    a(f's_cmp_ge_u32 s2, {NWG}')
    a.branch(f's_cbranch_scc1 {name}_end')
    ws_srd(a, 4)
    if need_out:
        a('s_load_dwordx2 s[8:9], s[0:1], 56')
    a('v_lshrrev_b32 v2, 6, v0')
    a('v_readfirstlane_b32 s12, v2')
    a('v_and_b32 v1, 63, v0')
    a(f'v_lshlrev_b32 v{g.v_l16}, 4, v1')
    BA = g.band
    nbands = MB // BA
    XPB = 8 // nbands
    per = MB * NB // 8
    a('s_and_b32 s17, s2, 7')
    a('s_lshr_b32 s18, s2, 3')
    a(f's_and_b32 s19, s17, {XPB - 1}')
    a(f's_lshr_b32 s17, s17, {int(math.log2(XPB))}')
    a(f's_mul_i32 s19, s19, {per}')
    a('s_add_u32 s18, s18, s19')
    a(f's_and_b32 s13, s18, {BA - 1}')
    a(f's_lshl_b32 s17, s17, {int(math.log2(BA))}')
    a('s_add_u32 s13, s13, s17')
    a(f's_lshr_b32 s14, s18, {int(math.log2(BA))}')
    a('s_waitcnt lgkmcnt(0)')
    fin_srd(a, 4, WS_SIZE)
    a('s_cmp_lt_u32 s12, 4')
    a.branch(f's_cbranch_scc1 {name}_comp')
    loader_path(a, g)
    a.label(f'{name}_comp')
    a.vmq = []
    if need_out:
        fin_srd(a, 8, S * D * 2)
    if g.WN == 1:
        a('s_mov_b32 s15, s12')
        a('s_mov_b32 s16, 0')
    elif g.WM == 1:
        a('s_mov_b32 s15, 0')
        a('s_mov_b32 s16, s12')
    else:
        a('s_lshr_b32 s15, s12, 1')
        a('s_and_b32 s16, s12, 1')
    a(f's_mul_i32 s17, s15, {g.mtw * 2048}')
    a(f's_mul_i32 s18, s16, {g.ntw * 2048}')
    for h in range(3):
        a(f'v_add_u32 v{g.v_a + h}, s17, v{g.v_l16}')
        a(f'v_add_u32 v{g.v_b + h}, s18, v{g.v_l16}')
        if h:
            a(f'v_add_u32 v{g.v_a + h}, {h << 16}, v{g.v_a + h}')
            a(f'v_add_u32 v{g.v_b + h}, {h << 16}, v{g.v_b + h}')


def alloc(g, extra_base):
    g.v_l16 = 3
    g.v_a = 4
    g.v_b = 7
    g.mtw = g.MT // g.WM
    g.ntw = g.NT // g.WN
    g.nitems = 2 * (g.MT + g.NT)
    g.s_g = 24
    g.s_l = 56
    g.s_tmp = 22
    nacc = g.mtw * g.ntw * 4
    g.acc0 = extra_base
    g.acc = lambda i, b: g.acc0 + (i * g.ntw + b) * 4
    g.f0 = g.acc0 + nacc
    setsz = (g.mtw + g.ntw) * 4
    g.fa = lambda p, i: g.f0 + p * setsz + i * 4
    g.fb = lambda p, b: g.f0 + p * setsz + (g.mtw + b) * 4
    g.vend = g.f0 + 2 * setsz
    g.mid_prologue = None


def ln_stats_issue(a, g, st_base, vt):
    a(f'v_and_b32 v2, 127, v0')
    a(f'v_lshlrev_b32 v2, 6, v2')
    a(f's_lshl_b32 s17, s13, 13')
    a(f's_add_u32 s17, s17, {st_base}')
    for i in range(4):
        a(f'buffer_load_dwordx4 v[{vt+4*i}:{vt+4*i+3}], v2, s[4:7], s17 offen offset:{16*i}', tag='stats')


def ln_stats_finish(a, g, vt, lds_off):
    a.wait(vm='stats')
    for i in range(1, 8):
        a(f'v_add_f32 v{vt}, v{vt}, v{vt+2*i}')
        a(f'v_add_f32 v{vt+1}, v{vt+1}, v{vt+2*i+1}')
    inv = f32hex(1.0 / D)
    a(f'v_mul_f32 v{vt}, {inv}, v{vt}')
    a(f'v_mul_f32 v{vt+1}, {inv}, v{vt+1}')
    a(f'v_fma_f32 v{vt+1}, -v{vt}, v{vt}, v{vt+1}')
    a(f'v_max_f32 v{vt+1}, 0, v{vt+1}')
    bf16r(a, vt)
    bf16r(a, vt + 1)
    a(f'v_add_f32 v{vt+1}, {f32hex(1e-5)}, v{vt+1}')
    bf16r(a, vt + 1)
    a(f'v_sqrt_f32 v{vt+1}, v{vt+1}')
    bf16r(a, vt + 1)
    a(f'v_rcp_f32 v{vt+1}, v{vt+1}')
    a(f'v_and_b32 v{vt+2}, 127, v0')
    a(f'v_lshlrev_b32 v{vt+2}, 3, v{vt+2}')
    a(f'v_add_u32 v{vt+2}, {lds_off}, v{vt+2}')
    a(f'ds_write_b64 v{vt+2}, v[{vt}:{vt+1}]')


def gen_qkv(name, x_base, st_base):
    a = Asm()
    g = G()
    g.MT, g.NT, g.WM, g.WN, g.K, g.NS = 8, 8, 2, 2, 640, 4
    g.a_base, g.b_base = x_base, WQKV
    g.band = 4
    g.pro = 3
    MISC = 10
    alloc(g, 48)
    STL = g.NS * g.nitems * 1024
    lds = STL + 1024
    MB, NB = 16, 15
    gemm_setup(a, g, name, MB, NB)
    VT_, VCS = 10, 26
    ln_stats_issue(a, g, st_base, VT_)
    a('v_lshrrev_b32 v2, 4, v1')
    a(f's_cmp_ge_u32 s14, 10')
    a.branch(f's_cbranch_scc1 {name}_v')
    a('v_lshlrev_b32 v42, 4, v2')
    a('s_lshl_b32 s17, s14, 9')
    a('s_lshl_b32 s18, s16, 8')
    a('s_add_u32 s17, s17, s18')
    a(f's_add_u32 s17, s17, {CSQ}')
    for b in range(4):
        a(f'buffer_load_dwordx4 v[{VCS+4*b}:{VCS+4*b+3}], v42, s[4:7], s17 offen offset:{64*b}', tag='cs')
    g.mid_prologue = lambda: ln_stats_finish(a, g, VT_, STL)
    gemm_core(a, g, swap=False)
    a.wait(vm='cs')
    a('v_and_b32 v43, 15, v1')
    a('v_lshlrev_b32 v44, 3, v43')
    a('s_lshl_b32 s17, s15, 9')
    a(f's_add_u32 s17, s17, {STL}')
    a('v_add_u32 v44, s17, v44')
    for i in range(4):
        a(f'ds_read_b64 v[{VT_+2*i}:{VT_+2*i+1}], v44 offset:{i*128}', tag='tst')
    a.wait(lg_all=True)
    for i in range(4):
        for b in range(4):
            acc = g.acc(i, b)
            for r in range(4):
                a(f'v_fma_f32 v{acc+r}, -v{VT_+2*i}, v{VCS+4*b+r}, v{acc+r}')
                a(f'v_mul_f32 v{acc+r}, v{VT_+2*i+1}, v{acc+r}')
    a('s_cmp_ge_u32 s14, 5')
    a('s_cselect_b32 s17, 1, 0')
    a('s_mul_i32 s18, s17, 5')
    a('s_sub_u32 s18, s14, s18')
    a('s_lshl_b32 s19, s13, 7')
    a('s_lshl_b32 s20, s15, 6')
    a('s_add_u32 s19, s19, s20')
    a('s_cmp_eq_u32 s18, 4')
    a.branch(f's_cbranch_scc1 {name}_tail')
    a('v_lshrrev_b32 v44, 1, v2')
    a('v_lshlrev_b32 v44, 16, v44')
    a('v_lshlrev_b32 v45, 5, v43')
    a('v_add_u32 v44, v44, v45')
    a('v_and_b32 v45, 1, v2')
    a('v_lshlrev_b32 v45, 4, v45')
    a('v_add_u32 v44, v44, v45')
    a('s_lshl_b32 s20, s17, 21')
    a(f's_add_u32 s20, s20, {QM}')
    a('s_lshl_b32 s21, s18, 19')
    a('s_add_u32 s20, s20, s21')
    a('s_lshl_b32 s21, s16, 18')
    a('s_add_u32 s20, s20, s21')
    a('s_lshl_b32 s21, s19, 5')
    a('s_add_u32 s20, s20, s21')
    a(f's_add_u32 s21, s20, {2*65536}')
    for i in range(4):
        for bp in range(2):
            a0, a1 = g.acc(i, 2 * bp), g.acc(i, 2 * bp + 1)
            t = VT_ + 8 + ((i * 2 + bp) & 1) * 4
            a(f'v_cvt_pk_bf16_f32 v{t}, v{a0}, v{a0+1}')
            a(f'v_cvt_pk_bf16_f32 v{t+1}, v{a0+2}, v{a0+3}')
            a(f'v_cvt_pk_bf16_f32 v{t+2}, v{a1}, v{a1+1}')
            a(f'v_cvt_pk_bf16_f32 v{t+3}, v{a1+2}, v{a1+3}')
            a(f'buffer_store_dwordx4 v[{t}:{t+3}], v44, s[4:7], s{20+bp} offen offset:{i*512}')
    if STAMP == name:
        a.wait(vm_all=True)
        stamp(a, name)
        stamp_out(a, name)
    a('s_endpgm')
    a.label(f'{name}_tail')
    a('v_lshlrev_b32 v44, 15, v2')
    a('v_lshlrev_b32 v45, 3, v43')
    a('v_add_u32 v44, v44, v45')
    a('s_lshl_b32 s20, s17, 19')
    a(f's_add_u32 s20, s20, {QT}')
    a('s_lshl_b32 s21, s16, 18')
    a('s_add_u32 s20, s20, s21')
    a('s_lshl_b32 s21, s19, 3')
    a('s_add_u32 s20, s20, s21')
    for bp in range(2):
        for t in range(2):
            a(f's_add_u32 s{40+bp*2+t}, s20, {(bp*8 + t) * 16384}')
    for i in range(4):
        for b in range(4):
            a0 = g.acc(i, b)
            t = VT_ + 8 + ((i * 4 + b) & 3) * 2
            a(f'v_cvt_pk_bf16_f32 v{t}, v{a0}, v{a0+1}')
            a(f'v_cvt_pk_bf16_f32 v{t+1}, v{a0+2}, v{a0+3}')
            a(f'buffer_store_dwordx2 v[{t}:{t+1}], v44, s[4:7], s{40+b} offen offset:{i*128}')
    a('s_endpgm')
    a.label(f'{name}_v')
    a.vmq = ['stats'] * 4
    a('v_and_b32 v43, 15, v1')
    a('v_lshlrev_b32 v42, 2, v43')
    a('s_lshl_b32 s17, s14, 9')
    a('s_lshl_b32 s18, s16, 8')
    a('s_add_u32 s17, s17, s18')
    a(f's_add_u32 s17, s17, {CSQ}')
    for b in range(4):
        a(f'buffer_load_dword v{VCS+b}, v42, s[4:7], s17 offen offset:{64*b}', tag='cs')
    g.mid_prologue = lambda: ln_stats_finish(a, g, VT_, STL)
    gemm_core(a, g, swap=True)
    a.wait(vm='cs')
    a('s_sub_u32 s17, s14, 10')
    a('s_lshl_b32 s17, s17, 7')
    a('s_lshl_b32 s18, s16, 6')
    a('s_add_u32 s17, s17, s18')
    a('v_add_u32 v44, s17, v43')
    a('v_and_b32 v45, 1, v2')
    a('v_lshlrev_b32 v45, 4, v45')
    a('v_lshrrev_b32 v46, 1, v2')
    a('v_lshlrev_b32 v46, 3, v46')
    a('v_add_u32 v45, v45, v46')
    a('s_mov_b32 s18, 3277')
    for b in range(4):
        vo = VCS + 4 + b
        a(f'v_add_u32 v46, {16*b}, v44')
        a('v_mul_lo_u32 v47, v46, s18')
        a('v_lshrrev_b32 v47, 16, v47')
        a(f'v_mul_u32_u24 v{vo}, 20, v47')
        a(f'v_sub_u32 v{vo}, v46, v{vo}')
        a(f'v_lshlrev_b32 v{vo}, 5, v{vo}')
        a('v_lshlrev_b32 v47, 17, v47')
        a(f'v_add_u32 v{vo}, v{vo}, v47')
        a(f'v_add_u32 v{vo}, v{vo}, v45')
    a('s_lshl_b32 s20, s13, 13')
    a('s_lshl_b32 s21, s15, 12')
    a('s_add_u32 s20, s20, s21')
    a(f's_add_u32 s20, s20, {VT}')
    a('v_lshlrev_b32 v44, 5, v2')
    a('s_lshl_b32 s17, s15, 9')
    a(f's_add_u32 s17, s17, {STL}')
    a('v_add_u32 v44, s17, v44')
    for i in range(4):
        a(f'ds_read_b128 v[{VT_}:{VT_+3}], v44 offset:{i*128}', tag='tst')
        a(f'ds_read_b128 v[{VT_+4}:{VT_+7}], v44 offset:{i*128+16}', tag='tst')
        a.wait(lg_all=True)
        for b in range(4):
            acc = g.acc(i, b)
            for r in range(4):
                a(f'v_fma_f32 v{acc+r}, -v{VT_+2*r}, v{VCS+b}, v{acc+r}')
                a(f'v_mul_f32 v{acc+r}, v{VT_+2*r+1}, v{acc+r}')
            t = VT_ + 8 + (b & 3) * 2
            a(f'v_cvt_pk_bf16_f32 v{t}, v{acc}, v{acc+1}')
            a(f'v_cvt_pk_bf16_f32 v{t+1}, v{acc+2}, v{acc+3}')
            a(f'buffer_store_dwordx2 v[{t}:{t+1}], v{VCS+4+b}, s[4:7], s20 offen offset:{i*1024}')
    a.label(f'{name}_end')
    a('s_endpgm')
    kernels.append((name, MB * NB, 256 + 64 * NL, lds, g.vend, 100, a.text()))


def gen_res(name, K, a_base, b_base, xin, xout, st_out, final=False):
    a = Asm()
    g = G()
    g.MT, g.NT, g.WM, g.WN, g.K, g.NS = 4, 5, 4, 1, K, 8
    g.a_base, g.b_base = a_base, b_base
    g.band = 8
    g.pro = 5
    alloc(g, 32)
    lds = g.NS * g.nitems * 1024
    MB, NB = 32, 8
    gemm_setup(a, g, name, MB, NB, need_out=final)
    VR = 10
    a('s_lshl_b32 s17, s13, 2')
    a('s_add_u32 s17, s17, s15')
    a('s_mul_i32 s18, s14, 5')
    for b in range(5):
        a(f's_add_u32 s19, s18, {b}')
        a('s_lshr_b32 s20, s19, 1')
        a('s_and_b32 s21, s19, 1')
        a('s_lshl_b32 s21, s21, 3')
        a('s_mul_i32 s22, s17, 20')
        a('s_add_u32 s22, s22, s20')
        a('s_lshl_b32 s22, s22, 10')
        a(f's_add_u32 s{40+b}, s22, s21')
        if final:
            a(f's_mul_i32 s22, s17, {16*1280}')
            a('s_lshl_b32 s20, s20, 6')
            a('s_add_u32 s22, s22, s20')
            a(f's_add_u32 s{46+b}, s22, s21')
        a(f's_add_u32 s22, s{40+b}, {xin}')
        a(f'buffer_load_dwordx2 v[{VR+2*b}:{VR+2*b+1}], v{g.v_l16}, s[4:7], s22 offen', tag='res')
    gemm_core(a, g, swap=False)
    a.wait(vm='res')
    VS = 20
    a(f'v_mov_b32 v{VS}, 0')
    a(f'v_mov_b32 v{VS+1}, 0')
    if final:
        a('v_and_b32 v24, 15, v1')
        a('v_mul_u32_u24 v24, 1280, v24')
        a('v_lshrrev_b32 v25, 4, v1')
        a('v_lshlrev_b32 v25, 4, v25')
        a('v_add_u32 v24, v24, v25')
    for b in range(5):
        acc = g.acc(0, b)
        a(f'v_cvt_pk_bf16_f32 v{acc}, v{acc}, v{acc+1}')
        a(f'v_cvt_pk_bf16_f32 v{acc+2}, v{acc+2}, v{acc+3}')
        a(f'v_and_b32 v{acc+1}, 0xffff0000, v{acc}')
        a(f'v_lshlrev_b32 v{acc}, 16, v{acc}')
        a(f'v_and_b32 v{acc+3}, 0xffff0000, v{acc+2}')
        a(f'v_lshlrev_b32 v{acc+2}, 16, v{acc+2}')
        r0, r1 = VR + 2 * b, VR + 2 * b + 1
        a(f'v_lshlrev_b32 v22, 16, v{r0}')
        a(f'v_and_b32 v23, 0xffff0000, v{r0}')
        a(f'v_add_f32 v{acc}, v{acc}, v22')
        a(f'v_add_f32 v{acc+1}, v{acc+1}, v23')
        a(f'v_lshlrev_b32 v22, 16, v{r1}')
        a(f'v_and_b32 v23, 0xffff0000, v{r1}')
        a(f'v_add_f32 v{acc+2}, v{acc+2}, v22')
        a(f'v_add_f32 v{acc+3}, v{acc+3}, v23')
        a(f'v_cvt_pk_bf16_f32 v{r0}, v{acc}, v{acc+1}')
        a(f'v_cvt_pk_bf16_f32 v{r1}, v{acc+2}, v{acc+3}')
        if final:
            a(f'buffer_store_dwordx2 v[{r0}:{r1}], v24, s[8:11], s{46+b} offen')
        else:
            a(f's_add_u32 s22, s{40+b}, {xout}')
            a(f'buffer_store_dwordx2 v[{r0}:{r1}], v{g.v_l16}, s[4:7], s22 offen')
            for r in (r0, r1):
                a(f'v_lshlrev_b32 v22, 16, v{r}')
                a(f'v_and_b32 v23, 0xffff0000, v{r}')
                a(f'v_add_f32 v{VS}, v{VS}, v22')
                a(f'v_fma_f32 v{VS+1}, v22, v22, v{VS+1}')
                a(f'v_add_f32 v{VS}, v{VS}, v23')
                a(f'v_fma_f32 v{VS+1}, v23, v23, v{VS+1}')
    if not final:
        for sw in ('v_permlane16_swap_b32', 'v_permlane32_swap_b32'):
            for r in (VS, VS + 1):
                a(f'v_mov_b32 v22, v{r}')
                a(f'{sw} v22, v{r}')
                a(f'v_add_f32 v{r}, v{r}, v22')
        a('v_lshlrev_b32 v22, 6, v1')
        a('s_lshl_b32 s22, s17, 10')
        a('s_lshl_b32 s23, s14, 3')
        a('s_add_u32 s22, s22, s23')
        a(f's_add_u32 s22, s22, {st_out}')
        a('s_mov_b64 exec, 0xffff')
        a(f'buffer_store_dwordx2 v[{VS}:{VS+1}], v22, s[4:7], s22 offen')
    if STAMP == name:
        a.wait(vm_all=True)
        stamp(a, name)
        stamp_out(a, name)
    a.label(f'{name}_end')
    a('s_endpgm')
    kernels.append((name, MB * NB, 256 + 64 * NL, lds, g.vend, 100, a.text()))


def gen_gu(name, x_base, st_base):
    a = Asm()
    g = G()
    g.MT, g.NT, g.WM, g.WN, g.K, g.NS = 8, 12, 4, 1, 640, 3
    g.a_base, g.b_base = x_base, WGU
    g.band = 8
    g.pro = 2
    alloc(g, 32)
    STL = g.NS * g.nitems * 1024
    CSL = STL + 1024
    lds = STL + 2048
    MB, NB = 16, 16
    gemm_setup(a, g, name, MB, NB)
    VT_, VCS = 10, g.f0
    ln_stats_issue(a, g, st_base, VT_)
    a('v_lshlrev_b32 v26, 2, v0')
    a(f's_mul_i32 s17, s14, {12*64}')
    a(f's_add_u32 s17, s17, {CSG}')
    a('buffer_load_dword v27, v26, s[4:7], s17 offen', tag='cs')

    def mp():
        ln_stats_finish(a, g, VT_, STL)
        a.wait(vm='cs')
        a(f'v_add_u32 v26, {CSL}, v26')
        a('ds_write_b32 v26, v27')
    g.mid_prologue = mp
    gemm_core(a, g, swap=False)
    a('v_lshrrev_b32 v2, 4, v1')
    a('v_lshlrev_b32 v26, 4, v2')
    a(f'v_add_u32 v26, {CSL}, v26')
    for b in range(12):
        a(f'ds_read_b128 v[{VCS+4*b}:{VCS+4*b+3}], v26 offset:{64*b}', tag='tst')
    a('v_and_b32 v27, 15, v1')
    a('v_lshlrev_b32 v27, 3, v27')
    a('s_lshl_b32 s17, s15, 8')
    a(f's_add_u32 s17, s17, {STL}')
    a('v_add_u32 v27, s17, v27')
    for i in range(2):
        a(f'ds_read_b64 v[{VT_+2*i}:{VT_+2*i+1}], v27 offset:{i*128}', tag='tst')
    a.wait(lg_all=True)
    for i in range(2):
        a(f'v_mul_f32 v{VT_+4+i}, {f32hex(-LOG2E)}, v{VT_+2*i+1}')
    a('s_lshl_b32 s17, s13, 3')
    a('s_lshl_b32 s18, s15, 1')
    a('s_add_u32 s17, s17, s18')
    a('s_mul_i32 s17, s17, 48')
    a('s_mul_i32 s18, s14, 3')
    a('s_add_u32 s17, s17, s18')
    a('s_lshl_b32 s17, s17, 10')
    a(f's_add_u32 s17, s17, {HF}')
    a(f's_add_u32 s18, s17, {48*1024}')
    for i in range(2):
        for fg in range(3):
            t = VT_ + 8 + ((i * 3 + fg) & 1) * 4
            for tt in range(2):
                ag, au = g.acc(i, fg * 4 + tt), g.acc(i, fg * 4 + 2 + tt)
                cg, cu = VCS + 4 * (fg * 4 + tt), VCS + 4 * (fg * 4 + 2 + tt)
                for r in range(4):
                    a(f'v_fma_f32 v{ag+r}, -v{VT_+2*i}, v{cg+r}, v{ag+r}')
                    a(f'v_mul_f32 v{ag+r}, v{VT_+4+i}, v{ag+r}')
                    a(f'v_exp_f32 v{ag+r}, v{ag+r}')
                    a(f'v_fma_f32 v{au+r}, -v{VT_+2*i}, v{cu+r}, v{au+r}')
                    a(f'v_mul_f32 v{au+r}, v{VT_+2*i+1}, v{au+r}')
                    a(f'v_add_f32 v{ag+r}, 1.0, v{ag+r}')
                    a(f'v_rcp_f32 v{ag+r}, v{ag+r}')
                for r in range(4):
                    a(f'v_mul_f32 v{au+r}, v{au+r}, v{ag+r}')
                a(f'v_cvt_pk_bf16_f32 v{t+2*tt}, v{au}, v{au+1}')
                a(f'v_cvt_pk_bf16_f32 v{t+2*tt+1}, v{au+2}, v{au+3}')
            a(f'buffer_store_dwordx4 v[{t}:{t+3}], v{g.v_l16}, s[4:7], s{17+i} offen offset:{fg*1024}')
    if STAMP == name:
        a.wait(vm_all=True)
        stamp(a, name)
        stamp_out(a, name)
    a.label(f'{name}_end')
    a('s_endpgm')
    kernels.append((name, MB * NB, 256 + 64 * NL, lds, g.vend, 100, a.text()))


def gen_attn(name):
    a = Asm()
    NWG = 512
    begin(a, name)
    a(f's_cmp_ge_u32 s2, {NWG}')
    a.branch(f's_cbranch_scc1 {name}_end')
    ws_srd(a, 4)
    SB = 16
    OB = 160
    KV = 176
    QB = 248
    L_KM, L_KT, L_V = 0, 12 * 1024, 15 * 1024
    lds = L_V + 24 * 1024
    a('v_lshrrev_b32 v2, 6, v0')
    a('v_readfirstlane_b32 s12, v2')
    a('v_and_b32 v1, 63, v0')
    a('v_and_b32 v3, 31, v1')
    a('v_lshrrev_b32 v4, 5, v1')
    a('v_lshlrev_b32 v5, 5, v3')
    a('v_lshlrev_b32 v6, 4, v4')
    a('v_add_u32 v5, v5, v6')
    a('v_lshlrev_b32 v7, 3, v3')
    a('v_min_u32 v8, 20, v3')
    a('v_lshlrev_b32 v8, 5, v8')
    a('v_add_u32 v8, v8, v6')
    a('v_lshlrev_b32 v15, 4, v1')
    a('s_and_b32 s13, s2, 7')
    a('s_lshl_b32 s13, s13, 2')
    a('s_lshr_b32 s14, s2, 7')
    a('s_add_u32 s13, s13, s14')
    a('s_lshr_b32 s14, s2, 3')
    a('s_and_b32 s14, s14, 15')
    a('s_lshl_b32 s23, s14, 7')
    a('s_lshl_b32 s15, s12, 5')
    a('s_add_u32 s15, s15, s23')
    a('s_lshl_b32 s16, s13, 11')
    a('s_waitcnt lgkmcnt(0)')
    fin_srd(a, 4, WS_SIZE)
    stamp(a, name)
    for i in range(3):
        a(f's_add_i32 s19, s15, {-256 + 128*i}')
        a('s_max_i32 s19, s19, 0')
        a('s_add_u32 s19, s19, s16')
        a('s_lshl_b32 s20, s19, 5')
        a(f's_add_u32 s20, s20, {KM}')
        a(f's_lshl_b32 s21, s12, 10')
        a(f's_add_u32 m0, s21, {L_KM + 4096*i}')
        a('buffer_load_dwordx4 v5, s[4:7], s20 offen lds', tag='k')
    a('s_min_u32 s21, s12, 2')
    a('s_lshl_b32 s19, s21, 7')
    a('s_add_u32 s19, s19, s23')
    a('s_add_i32 s19, s19, -256')
    a('s_max_i32 s19, s19, 0')
    a('s_add_u32 s19, s19, s16')
    a('s_lshl_b32 s20, s19, 3')
    a(f's_add_u32 s20, s20, {KT_}')
    a('s_lshl_b32 s21, s21, 10')
    a(f's_add_u32 m0, s21, {L_KT}')
    a('buffer_load_dwordx4 v15, s[4:7], s20 offen lds', tag='k')
    a('s_add_u32 s17, s16, s15')
    a('s_lshl_b32 s18, s17, 5')
    a(f's_add_u32 s18, s18, {QM}')
    a(f'buffer_load_dwordx4 v[{QB}:{QB+3}], v5, s[4:7], s18 offen', tag='q')
    a('s_lshl_b32 s18, s17, 3')
    a(f's_add_u32 s18, s18, {QT}')
    a(f'buffer_load_dwordx2 v[{QB+4}:{QB+5}], v7, s[4:7], s18 offen', tag='q')
    a('s_lshl_b32 s24, s13, 17')
    a(f's_add_u32 s24, s24, {VT}')
    a('s_lshl_b32 s25, s12, 4')
    a('s_add_u32 s25, s25, s23')
    for i in range(6):
        a(f's_add_i32 s19, s25, {-256 + 64*i}')
        a('s_max_i32 s19, s19, 0')
        a('s_lshl_b32 s19, s19, 6')
        a('s_add_u32 s19, s19, s24')
        a(f's_lshl_b32 s21, s12, 10')
        a(f's_add_u32 m0, s21, {L_V + 4096*i}')
        a('buffer_load_dwordx4 v8, s[4:7], s19 offen lds', tag='v')
    NEG = '0xff7fffff'
    a('v_lshlrev_b32 v9, 2, v4')
    a('v_sub_u32 v9, v3, v9')
    a(f'v_mov_b32 v10, {NEG}')
    for r in range(16):
        c = 8 * (r >> 2) + (r & 3)
        a(f'v_cmp_le_i32 vcc, {c}, v9')
        a(f'v_cndmask_b32_e64 v{SB+8*16+r}, v10, 0, vcc')
        a(f'v_cndmask_b32_e64 v{SB+r}, 0, v10, vcc')
    a('s_lshl_b32 s21, s12, 10')
    a('v_add_u32 v13, s21, v15')
    a('s_lshl_b32 s21, s12, 8')
    a('v_add_u32 v14, s21, v7')
    a('s_lshl_b32 s21, s12, 11')
    a('v_add_u32 v2, s21, v15')
    a.wait(vm='q')
    a('s_barrier')
    stamp(a, name)
    for t in range(9):
        a(f'ds_read_b128 v[{KV+8*t}:{KV+8*t+3}], v13 offset:{L_KM + 1024*t}', tag=('k', t))
        a(f'ds_read_b64 v[{KV+8*t+4}:{KV+8*t+5}], v14 offset:{L_KT + 256*t}', tag=('k', t))
        if t == 6:
            break
    a('v_cmp_eq_u32 vcc, 0, v4')
    a(f'v_cndmask_b32_e64 v{QB+4}, 0, v{QB+4}, vcc')
    a(f'v_cndmask_b32_e64 v{QB+5}, 0, v{QB+5}, vcc')
    for t in range(9):
        a.wait(lg=('k', t))
        s0 = SB + 16 * t
        c = f'v[{s0}:{s0+15}]' if t in (0, 8) else '0'
        a(f'v_mfma_f32_32x32x16_bf16 v[{s0}:{s0+15}], v[{KV+8*t}:{KV+8*t+3}], v[{QB}:{QB+3}], {c}')
        a(f'v_mfma_f32_32x32x8_bf16 v[{s0}:{s0+15}], v[{KV+8*t+4}:{KV+8*t+5}], v[{QB+4}:{QB+5}], v[{s0}:{s0+15}]')
        if t < 2:
            t2 = 7 + t
            a(f'ds_read_b128 v[{KV+8*t2}:{KV+8*t2+3}], v13 offset:{L_KM + 1024*t2}', tag=('k', t2))
            a(f'ds_read_b64 v[{KV+8*t2+4}:{KV+8*t2+5}], v14 offset:{L_KT + 256*t2}', tag=('k', t2))
    for t in range(8):
        L = a.newlabel('skip')
        a(f's_cmp_ge_i32 s15, {256 - 32*t}')
        a.branch(f's_cbranch_scc1 {L}')
        for r in range(16):
            a(f'v_mov_b32 v{SB+16*t+r}, v10')
        a.label(L)
    stamp(a, name)
    regs = [SB + i for i in range(144)]
    a(f'v_max3_f32 v11, v{regs[0]}, v{regs[1]}, v{regs[2]}')
    a(f'v_max3_f32 v12, v{regs[3]}, v{regs[4]}, v{regs[5]}')
    i = 6
    k = 0
    while i + 1 < 144:
        d = 11 + (k & 1)
        a(f'v_max3_f32 v{d}, v{d}, v{regs[i]}, v{regs[i+1]}')
        i += 2
        k += 1
    a('v_max_f32 v11, v11, v12')
    a('v_mov_b32 v12, v11')
    a('v_permlane32_swap_b32 v11, v12')
    a('v_max_f32 v11, v11, v12')
    cs = (DH ** -0.5) * LOG2E
    a(f's_mov_b32 s22, {f32hex(cs)}')
    a('v_mul_f32 v11, s22, v11')
    a.wait(vm_all=True)
    a('s_barrier')
    for t in range(9):
        s0 = SB + 16 * t
        for s in range(2):
            a(f'ds_read_b128 v[{KV+8*t+4*s}:{KV+8*t+4*s+3}], v2 offset:{L_V + 2048*t + 1024*s}', tag=('v', t))
        for r in range(16):
            a(f'v_fma_f32 v{s0+r}, v{s0+r}, s22, -v11')
        for r in range(16):
            a(f'v_exp_f32 v{s0+r}, v{s0+r}')
        for r in range(8):
            a(f'v_cvt_pk_bf16_f32 v{s0+r}, v{s0+2*r}, v{s0+2*r+1}')
        a.wait(lg=('v', t))
        for s in range(2):
            c = '0' if (t == 0 and s == 0) else f'v[{OB}:{OB+15}]'
            a(f'v_mfma_f32_32x32x16_bf16 v[{OB}:{OB+15}], v[{KV+8*t+4*s}:{KV+8*t+4*s+3}], v[{s0+4*s}:{s0+4*s+3}], {c}')
    stamp(a, name)
    a(f'v_mov_b32 v11, v{OB+8}')
    a(f'v_mov_b32 v12, v{OB+8}')
    a('v_permlane32_swap_b32 v11, v12')
    a('v_rcp_f32 v12, v12')
    for r in range(12):
        a(f'v_mul_f32 v{OB+r}, v{OB+r}, v12')
    for r in range(6):
        a(f'v_cvt_pk_bf16_f32 v{OB+r}, v{OB+2*r}, v{OB+2*r+1}')
    a('v_lshrrev_b32 v13, 4, v3')
    a(f'v_mul_u32_u24 v13, {20*1024}, v13')
    a('v_and_b32 v14, 15, v3')
    a('v_lshlrev_b32 v14, 4, v14')
    a('v_add_u32 v13, v13, v14')
    a('v_lshlrev_b32 v14, 8, v4')
    a('v_add_u32 v14, v14, v13')
    a('s_lshr_b32 s17, s15, 4')
    a(f's_mul_i32 s17, s17, {20*1024}')
    a(f's_add_u32 s17, s17, {OF}')
    a('s_lshr_b32 s18, s13, 1')
    a('s_lshl_b32 s18, s18, 10')
    a('s_and_b32 s19, s13, 1')
    a('s_lshl_b32 s20, s19, 9')
    a('s_add_u32 s18, s18, s20')
    a('s_add_u32 s18, s18, s17')
    a(f'buffer_store_dwordx4 v[{OB}:{OB+3}], v14, s[4:7], s18 offen')
    a('s_lshr_b32 s18, s13, 3')
    a('s_add_u32 s18, s18, 16')
    a('s_lshl_b32 s18, s18, 10')
    a('s_lshr_b32 s20, s13, 1')
    a('s_and_b32 s20, s20, 3')
    a('s_lshl_b32 s20, s20, 8')
    a('s_add_u32 s18, s18, s20')
    a('s_lshl_b32 s19, s19, 3')
    a('s_add_u32 s18, s18, s19')
    a('s_add_u32 s18, s18, s17')
    a('s_mov_b32 exec_hi, 0')
    a(f'buffer_store_dwordx2 v[{OB+4}:{OB+5}], v13, s[4:7], s18 offen')
    if STAMP == name:
        a.wait(vm_all=True)
        stamp(a, name)
        stamp_out(a, name)
    a.label(f'{name}_end')
    a('s_endpgm')
    kernels.append((name, NWG, 256, lds, 256, 100, a.text()))


def magic(d):
    return (2 ** 32 + d - 1) // d


def map_tile(a, kind, vn0, vT, vi0, t0, t1, t2):
    if kind in 'AGU':
        a(f'v_lshrrev_b32 v{t0}, 5, v{vn0}')
        a(f'v_bfe_u32 v{t1}, v{vn0}, 2, 1')
        a(f'v_bfe_u32 v{vi0}, v{vn0}, 3, 2')
        a(f'v_lshlrev_b32 v{vi0}, 2, v{vi0}')
        sh = 1 if kind == 'A' else 2
        a(f'v_lshlrev_b32 v{vT}, {sh}, v{t0}')
        a(f'v_add_u32 v{vT}, v{vT}, v{t1}')
        if kind == 'U':
            a(f'v_add_u32 v{vT}, 2, v{vT}')
    else:
        a(f's_mov_b32 s30, {magic(640)}')
        a(f'v_mul_hi_u32 v{t0}, v{vn0}, s30')
        a(f'v_mul_u32_u24 v{t1}, 640, v{t0}')
        a(f'v_sub_u32 v{t1}, v{vn0}, v{t1}')
        a('s_mov_b32 s30, 3277')
        a(f'v_mul_lo_u32 v{t2}, v{t1}, s30')
        a(f'v_lshrrev_b32 v{t2}, 16, v{t2}')
        a(f'v_mul_u32_u24 v{vi0}, 20, v{t2}')
        a(f'v_sub_u32 v{vi0}, v{t1}, v{vi0}')
        a(f'v_cmp_gt_u32 vcc, 16, v{vi0}')
        a(f'v_and_b32 v{vT}, 1, v{t2}')
        a(f'v_lshlrev_b32 v{vT}, 4, v{vT}')
        a(f'v_add_u32 v{vi0}, v{vi0}, v{vT}')
        a(f'v_and_b32 v{vT}, 7, v{t2}')
        a(f'v_lshlrev_b32 v{vT}, 2, v{vT}')
        a(f'v_cndmask_b32 v{vi0}, v{vT}, v{vi0}, vcc')
        a(f'v_lshrrev_b32 v{vT}, 3, v{t2}')
        a(f'v_add_u32 v{vT}, 16, v{vT}')
        a(f'v_lshrrev_b32 v{t2}, 1, v{t2}')
        a(f'v_cndmask_b32 v{t2}, v{vT}, v{t2}, vcc')
        a(f'v_lshlrev_b32 v{vT}, 1, v{t2}')
        a(f'v_bfe_u32 v{t2}, v{vi0}, 2, 1')
        a(f'v_add_u32 v{vT}, v{vT}, v{t2}')
        a(f'v_mul_u32_u24 v{t2}, 40, v{t0}')
        a(f'v_add_u32 v{vT}, v{vT}, v{t2}')
        a(f'v_lshrrev_b32 v{vi0}, 3, v{vi0}')
        a(f'v_lshlrev_b32 v{vi0}, 2, v{vi0}')
        a(f'v_cmp_eq_u32 vcc, 2, v{t0}')
        a(f'v_lshrrev_b32 v{t2}, 4, v{t1}')
        a(f'v_add_u32 v{t2}, 80, v{t2}')
        a(f'v_cndmask_b32 v{vT}, v{vT}, v{t2}, vcc')
        a(f'v_and_b32 v{t2}, 15, v{t1}')
        a(f'v_cndmask_b32 v{vi0}, v{vi0}, v{t2}, vcc')


def gen_prep(name):
    a = Asm()
    begin(a, name)
    roles = [
        ('wqkv', 150, 8, 640, 1920, 'Q', WQKV),
        ('wo', 50, 16, 640, 640, 'A', WO_),
        ('wg', 120, 32, 640, 1536, 'G', WGU),
        ('wu', 120, 40, 640, 1536, 'U', WGU),
        ('wd', 120, 48, 1536, 640, 'A', WD_),
    ]
    cs_roles = [('csq', 30, 8, 1920, 'Q', CSQ), ('csg', 24, 32, 1536, 'G', CSG), ('csu', 24, 40, 1536, 'U', CSG)]
    NWG = sum(r[1] for r in roles) + sum(r[1] for r in cs_roles) + 32
    a(f's_cmp_ge_u32 s2, {NWG}')
    a.branch(f's_cbranch_scc1 {name}_end')
    ws_srd(a, 4)
    base = 0
    starts = {}
    for r in roles + cs_roles:
        starts[r[0]] = base
        base += r[1]
    starts['x'] = base
    order = [r[0] for r in roles + cs_roles] + ['x']
    for lab in reversed(order[1:]):
        a(f's_cmp_ge_u32 s2, {starts[lab]}')
        a.branch(f's_cbranch_scc1 {name}_{lab}')
    SEL_LO, SEL_HI = 0x05040100, 0x07060302
    for (lab, nwg, slot, K, N, kind, dst) in roles:
        a.label(f'{name}_{lab}')
        a(f's_load_dwordx2 s[8:9], s[0:1], {slot}')
        NQ = N // 4
        KT = K // 32
        a(f's_sub_u32 s12, s2, {starts[lab]}')
        a('s_lshl_b32 s12, s12, 8')
        a('v_add_u32 v1, s12, v0')
        a(f's_mov_b32 s13, {magic(NQ)}')
        a('v_mul_hi_u32 v2, v1, s13')
        a(f'v_mul_u32_u24 v3, {NQ}, v2')
        a('v_sub_u32 v3, v1, v3')
        a('v_lshlrev_b32 v4, 2, v3')
        map_tile(a, kind, 4, 5, 6, 7, 8, 9)
        a(f'v_mul_u32_u24 v5, {KT}, v5')
        a('v_lshrrev_b32 v7, 2, v2')
        a('v_add_u32 v5, v5, v7')
        a('v_lshlrev_b32 v5, 6, v5')
        a('v_and_b32 v7, 3, v2')
        a('v_lshlrev_b32 v7, 4, v7')
        a('v_add_u32 v5, v5, v7')
        a('v_add_u32 v5, v5, v6')
        a('v_lshlrev_b32 v5, 4, v5')
        a('v_lshlrev_b32 v3, 3, v3')
        if lab == 'wo':
            a('v_lshrrev_b32 v7, 1, v2')
            a('v_mul_u32_u24 v7, 20, v7')
            a('v_and_b32 v8, 1, v2')
            a('v_lshlrev_b32 v8, 2, v8')
            a('v_add_u32 v7, v7, v8')
            a('v_add_u32 v8, 8, v7')
            a('v_subrev_u32 v9, 64, v2')
            a('v_mul_u32_u24 v9, 40, v9')
            a('v_add_u32 v9, 16, v9')
            a('v_add_u32 v10, 20, v9')
            a('v_cmp_gt_u32 vcc, 64, v2')
            a('v_cndmask_b32 v7, v9, v7, vcc')
            a('v_cndmask_b32 v8, v10, v8, vcc')
        else:
            a('v_lshlrev_b32 v7, 3, v2')
            a('v_add_u32 v8, 4, v7')
        a(f's_mov_b32 s13, {N*2}')
        a('v_mul_lo_u32 v7, v7, s13')
        a('v_mul_lo_u32 v8, v8, s13')
        a('v_add_u32 v7, v7, v3')
        a('v_add_u32 v8, v8, v3')
        a('s_waitcnt lgkmcnt(0)')
        fin_srd(a, 4, WS_SIZE)
        fin_srd(a, 8, K * N * 2)
        for c in range(8):
            a(f's_mov_b32 s{14+(c&3)}, {(c&3)*N*2}')
            a(f'buffer_load_dwordx2 v[{16+2*c}:{17+2*c}], v{7+(c>>2)}, s[8:11], s{14+(c&3)} offen', tag='w')
        a(f's_mov_b32 s20, {SEL_LO}')
        a(f's_mov_b32 s21, {SEL_HI}')
        a(f's_mov_b32 s22, {dst}')
        a.wait(vm='w')
        for n in range(4):
            for cp in range(4):
                A = 16 + 2 * (2 * cp) + (n >> 1)
                B = 16 + 2 * (2 * cp + 1) + (n >> 1)
                a(f'v_perm_b32 v{32+4*n+cp}, v{B}, v{A}, s{20+(n&1)}')
            a(f'buffer_store_dwordx4 v[{32+4*n}:{35+4*n}], v5, s[4:7], s22 offen offset:{16*n}')
        a('s_endpgm')
    for (lab, nwg, slot, N, kind, dst) in cs_roles:
        a.label(f'{name}_{lab}')
        a(f's_load_dwordx2 s[8:9], s[0:1], {slot}')
        a(f's_sub_u32 s12, s2, {starts[lab]}')
        a('s_lshl_b32 s12, s12, 6')
        a('v_lshrrev_b32 v1, 4, v0')
        a('v_and_b32 v2, 15, v0')
        a(f'v_mul_u32_u24 v3, {40}, v1')
        a(f's_mov_b32 s13, {N*2}')
        a('v_mul_lo_u32 v3, v3, s13')
        a('v_lshlrev_b32 v4, 3, v2')
        a('v_add_u32 v3, v3, v4')
        a('s_lshl_b32 s14, s12, 1')
        a('v_add_u32 v3, s14, v3')
        a('s_waitcnt lgkmcnt(0)')
        fin_srd(a, 4, WS_SIZE)
        fin_srd(a, 8, 640 * N * 2)
        for r in range(40):
            a(f's_mov_b32 s{14+(r&3)}, {r*N*2}')
            a(f'buffer_load_dwordx2 v[{16+2*r}:{17+2*r}], v3, s[8:11], s{14+(r&3)} offen', tag=('c', r))
        for e in range(4):
            a(f'v_mov_b32 v{8+e}, 0')
        for r in range(40):
            a.wait(vm=('c', r))
            for w in range(2):
                a(f'v_lshlrev_b32 v12, 16, v{16+2*r+w}')
                a(f'v_and_b32 v13, 0xffff0000, v{16+2*r+w}')
                a(f'v_add_f32 v{8+2*w}, v{8+2*w}, v12')
                a(f'v_add_f32 v{9+2*w}, v{9+2*w}, v13')
        a('v_lshlrev_b32 v4, 4, v0')
        a('ds_write_b128 v4, v[8:11]')
        a.wait(lg_all=True)
        a('s_barrier')
        a('v_lshlrev_b32 v4, 2, v0')
        for kc in range(16):
            a(f'ds_read_b32 v{16+kc}, v4 offset:{kc*256}', tag='r')
        a('v_lshrrev_b32 v2, 2, v0')
        a('v_lshlrev_b32 v2, 2, v2')
        a('v_add_u32 v2, s12, v2')
        map_tile(a, kind, 2, 5, 6, 7, 8, 9)
        a('v_lshlrev_b32 v5, 4, v5')
        a('v_add_u32 v5, v5, v6')
        a('v_and_b32 v6, 3, v0')
        a('v_add_u32 v5, v5, v6')
        a('v_lshlrev_b32 v5, 2, v5')
        a.wait(lg_all=True)
        for kc in range(1, 16):
            a(f'v_add_f32 v16, v16, v{16+kc}')
        a(f's_mov_b32 s22, {dst}')
        a('v_cmp_gt_u32 vcc, 64, v0')
        a('s_and_saveexec_b64 s[24:25], vcc')
        a.branch(f's_cbranch_execz {name}_end')
        a('buffer_store_dword v16, v5, s[4:7], s22 offen')
        a('s_endpgm')
    a.label(f'{name}_x')
    a('s_load_dwordx2 s[8:9], s[0:1], 0')
    a('v_lshrrev_b32 v2, 6, v0')
    a('v_readfirstlane_b32 s12, v2')
    a('v_and_b32 v1, 63, v0')
    a(f's_sub_u32 s13, s2, {starts["x"]}')
    a('s_lshl_b32 s14, s13, 2')
    a('s_add_u32 s14, s14, s12')
    a('v_and_b32 v3, 15, v1')
    a('v_mul_u32_u24 v3, 1280, v3')
    a('v_lshrrev_b32 v4, 4, v1')
    a('v_lshlrev_b32 v4, 4, v4')
    a('v_add_u32 v3, v3, v4')
    a(f's_mul_i32 s15, s14, {16*1280}')
    a('v_lshlrev_b32 v5, 4, v1')
    a('s_waitcnt lgkmcnt(0)')
    fin_srd(a, 4, WS_SIZE)
    fin_srd(a, 8, S * D * 2)
    for kt in range(20):
        a(f'buffer_load_dwordx4 v[{16+4*kt}:{19+4*kt}], v3, s[8:11], s15 offen offset:{64*kt}', tag=('x', kt))
    a(f's_mul_i32 s16, s14, {20*1024}')
    a(f's_add_u32 s16, s16, {XF[0]}')
    a('v_mov_b32 v8, 0')
    a('v_mov_b32 v9, 0')
    for kt in range(20):
        a.wait(vm=('x', kt))
        a(f's_add_u32 s{17+(kt&1)}, s16, {kt*1024}')
        a(f'buffer_store_dwordx4 v[{16+4*kt}:{19+4*kt}], v5, s[4:7], s{17+(kt&1)} offen')
        for w in range(4):
            a(f'v_lshlrev_b32 v12, 16, v{16+4*kt+w}')
            a(f'v_and_b32 v13, 0xffff0000, v{16+4*kt+w}')
            a('v_add_f32 v8, v8, v12')
            a('v_fma_f32 v9, v12, v12, v9')
            a('v_add_f32 v8, v8, v13')
            a('v_fma_f32 v9, v13, v13, v9')
    for sw in ('v_permlane16_swap_b32', 'v_permlane32_swap_b32'):
        for r in (8, 9):
            a(f'v_mov_b32 v12, v{r}')
            a(f'{sw} v12, v{r}')
            a(f'v_add_f32 v{r}, v{r}, v12')
    a('s_lshl_b32 s17, s13, 8')
    a('v_add_u32 v6, s17, v0')
    a('v_lshrrev_b32 v7, 1, v6')
    a('v_lshlrev_b32 v7, 10, v7')
    a('v_and_b32 v6, 1, v6')
    a('v_lshlrev_b32 v6, 4, v6')
    a('v_add_u32 v7, v7, v6')
    for i in range(4):
        a(f'v_mov_b32 v{100+i}, 0x3f803f80')
    a(f's_mov_b32 s18, {VT + 640}')
    a('buffer_store_dwordx4 v[100:103], v7, s[4:7], s18 offen')
    for i in range(10, 16):
        a(f'v_mov_b32 v{i}, 0')
    a('v_lshlrev_b32 v6, 6, v1')
    a('s_lshl_b32 s17, s14, 10')
    a(f's_add_u32 s17, s17, {ST[0]}')
    a('s_mov_b64 exec, 0xffff')
    a('buffer_store_dwordx4 v[8:11], v6, s[4:7], s17 offen')
    for i in range(1, 4):
        a(f'buffer_store_dwordx4 v[12:15], v6, s[4:7], s17 offen offset:{16*i}')
    a.label(f'{name}_end')
    a('s_endpgm')
    kernels.append((name, NWG, 256, 8192, 128, 40, a.text()))


def build():
    gen_prep('prep_kernel')
    gen_qkv('qkv1_kernel', XF[0], ST[0])
    gen_attn('attn_kernel')
    gen_res('wo1_kernel', 640, OF, WO_, XF[0], XF[1], ST[1])
    gen_gu('gu1_kernel', XF[1], ST[1])
    gen_res('dn1_kernel', 1536, HF, WD_, XF[1], XF[2], ST[2])
    gen_qkv('qkv2_kernel', XF[2], ST[2])
    gen_res('wo2_kernel', 640, OF, WO_, XF[2], XF[3], ST[3])
    gen_gu('gu2_kernel', XF[3], ST[3])
    gen_res('dn2_kernel', 1536, HF, WD_, XF[3], None, None, final=True)
    order = ['prep_kernel', 'qkv1_kernel', 'attn_kernel', 'wo1_kernel', 'gu1_kernel', 'dn1_kernel',
             'qkv2_kernel', 'attn_kernel', 'wo2_kernel', 'gu2_kernel', 'dn2_kernel']
    kd = {k[0]: k for k in kernels}
    hdr = open('interleave_layers__sliding_block__glu_gated_glu__prompt.s.ref').read().split('\n')
    out = [l for l in hdr if l.startswith(';') and '@launch' not in l and 'Override' not in l and 'grid=ceil' not in l]
    for n in order:
        k = kd[n]
        out.append(f'; @launch kernel={n} grid=({k[1]},1,1) block=({k[2]},1,1) lds={k[3]}')
    out.append('.amdgcn_target "amdgcn-amd-amdhsa--gfx950"')
    for k in kernels:
        out.append(k[6])
    out.append('.section .rodata,"a"')
    for k in kernels:
        nv = (k[4] + 7) // 8 * 8
        out.append('.p2align 6')
        out.append(f'.amdhsa_kernel {k[0]}')
        out.append(f'  .amdhsa_next_free_vgpr {nv}')
        out.append(f'  .amdhsa_next_free_sgpr {k[5]}')
        out.append(f'  .amdhsa_accum_offset {min(nv, 256)}')
        out.append('  .amdhsa_group_segment_fixed_size 0')
        out.append('  .amdhsa_kernarg_size 80')
        out.append('  .amdhsa_user_sgpr_count 2')
        out.append('  .amdhsa_user_sgpr_kernarg_segment_ptr 1')
        out.append('  .amdhsa_system_sgpr_workgroup_id_x 1')
        out.append('.end_amdhsa_kernel')
    open(os.environ.get('OUT', 'interleave_layers__sliding_block__glu_gated_glu__prompt.s'), 'w').write('\n'.join(out) + '\n')
    for k in kernels:
        print(k[0], 'grid', k[1], 'lds', k[3], 'vgpr', k[4])


if __name__ == '__main__':
    build()
```

```python
import re

TRANS = ('v_exp_', 'v_log_', 'v_rcp_', 'v_rsq_', 'v_sqrt_', 'v_sin_', 'v_cos_')
NODST_S = ('s_cmp', 's_waitcnt', 's_barrier', 's_branch', 's_cbranch', 's_nop', 's_endpgm', 's_setprio',
           's_sleep', 's_bitcmp')


def regs_of(op):
    op = op.strip()
    if op.startswith('-'):
        op = op[1:]
    m = re.fullmatch(r'abs\((.*)\)', op)
    if m:
        op = m.group(1)
    if op.startswith('|') and op.endswith('|'):
        op = op[1:-1]
    m = re.fullmatch(r'([vsa])\[(\d+):(\d+)\]', op)
    if m:
        return [f'{m.group(1)}{i}' for i in range(int(m.group(2)), int(m.group(3)) + 1)]
    m = re.fullmatch(r'([vsa])(\d+)', op)
    if m:
        return [op]
    if op in ('vcc', 'exec', 'm0'):
        return [op]
    if op in ('vcc_lo', 'vcc_hi'):
        return ['vcc']
    if op in ('exec_lo', 'exec_hi'):
        return ['exec']
    return []


def split_ops(s):
    out, depth, cur = [], 0, ''
    for ch in s:
        if ch in '[(':
            depth += 1
        if ch in '])':
            depth -= 1
        if ch == ',' and depth == 0:
            out.append(cur.strip())
            cur = ''
        else:
            cur += ch
    if cur.strip():
        out.append(cur.strip())
    return out


class Ins:
    __slots__ = ('pos', 'kind', 'wr', 'rd', 'passes', 'srcc', 'srcab', 'mn', 'trans', 'wide_store', 'sdata', 'dpp', 'dotab')


class Asm:
    def __init__(self):
        self.out = []
        self.hist = []
        self.pos = 0
        self.vmq = []
        self.lgq = []
        self.uid = 0

    def raw(self, s):
        self.out.append(s)

    def comment(self, s):
        self.out.append('    ; ' + s)

    def label(self, name):
        self.flush()
        self.out.append(name + ':')

    def newlabel(self, p='L'):
        self.uid += 1
        return f'{p}_{self.uid}'

    def nop(self, n):
        while n > 0:
            k = min(n, 16)
            self.out.append(f'    s_nop {k - 1}')
            self.pos += k
            n -= k

    def flush(self):
        need = 0
        for h in self.hist:
            d = self.pos - h.pos
            if h.kind == 'mfma':
                req = 12 if h.passes >= 8 else 8
            elif h.kind == 'valu':
                req = 5
            elif h.kind == 'salu' and 'm0' in h.wr:
                req = 1
            elif h.wide_store:
                req = 2
            else:
                req = 0
            need = max(need, req - d)
        if need > 0:
            self.nop(need)
        self.hist = []

    def parse(self, text):
        text = text.strip()
        mn, _, rest = text.partition(' ')
        ops = split_ops(rest)
        mods = []
        if ops:
            last = ops[-1].split()
            ops[-1] = last[0]
            mods = last[1:]
        I = Ins()
        I.mn = mn
        I.wr, I.rd = set(), set()
        I.passes = 0
        I.srcc, I.srcab = set(), set()
        I.trans = False
        I.wide_store = False
        I.sdata = set()
        I.dpp = any(m.startswith('row_') or m.startswith('quad_perm') for m in mods) or mn.endswith('_dpp')
        R = [regs_of(o) for o in ops]
        I.dotab = set(R[1] + R[2]) if mn.startswith('v_dot') else set()
        if mn.startswith('v_mfma'):
            I.kind = 'mfma'
            I.passes = 8 if '32x32' in mn else 4
            I.wr.update(R[0])
            I.srcab.update(R[1] + R[2])
            I.srcc.update(R[3])
            I.rd.update(R[1] + R[2] + R[3])
        elif mn.startswith('v_'):
            I.kind = 'valu'
            I.trans = mn.startswith(TRANS)
            if 'permlane' in mn and 'swap' in mn:
                I.wr.update(R[0] + R[1])
                I.rd.update(R[0] + R[1])
            elif '_co_' in mn:
                I.wr.update(R[0] + R[1])
                for r in R[2:]:
                    I.rd.update(r)
            else:
                I.wr.update(R[0])
                for r in R[1:]:
                    I.rd.update(r)
                if mn.startswith(('v_fmac', 'v_writelane')):
                    I.rd.update(R[0])
                if mn.startswith('v_cndmask') and len(ops) == 3:
                    I.rd.add('vcc')
        elif mn.startswith('ds_'):
            I.kind = 'ds'
            if mn.startswith(('ds_write', 'ds_add', 'ds_max', 'ds_min')):
                for r in R:
                    I.rd.update(r)
            else:
                I.wr.update(R[0])
                for r in R[1:]:
                    I.rd.update(r)
        elif mn.startswith(('buffer_', 'global_', 'flat_')):
            I.kind = 'vmem'
            is_lds = ('lds' in mods) or ('_lds_' in mn)
            if 'store' in mn or 'atomic' in mn:
                for r in R:
                    I.rd.update(r)
                if mn.endswith(('x3', 'x4')):
                    I.wide_store = True
                    I.sdata = set(R[0] if mn.startswith('buffer_') else R[1])
            elif is_lds:
                for r in R:
                    I.rd.update(r)
                I.rd.add('m0')
            else:
                I.wr.update(R[0])
                for r in R[1:]:
                    I.rd.update(r)
        elif mn.startswith('s_load') or mn.startswith('s_buffer_load'):
            I.kind = 'smem'
            I.wr.update(R[0])
            for r in R[1:]:
                I.rd.update(r)
        elif mn.startswith('s_'):
            I.kind = 'salu'
            if mn.startswith(NODST_S):
                for r in R:
                    I.rd.update(r)
            else:
                I.wr.update(R[0])
                for r in R[1:]:
                    I.rd.update(r)
                if 'saveexec' in mn:
                    I.wr.add('exec')
        else:
            raise ValueError('unknown instr ' + text)
        return I

    @staticmethod
    def need(p, c):
        n = 0
        pv = {r for r in p.wr if r[0] in 'va'}
        ps = {r for r in p.wr if r[0] == 's' or r == 'vcc'}
        if p.kind == 'valu':
            if c.kind == 'mfma' and pv & c.rd:
                n = max(n, 2)
            if c.kind == 'valu':
                if p.trans and not c.trans and (pv & (c.rd | c.wr)):
                    n = max(n, 1)
                if 'permlane' in c.mn and pv & c.rd:
                    n = max(n, 2)
                if c.dpp and pv & c.rd:
                    n = max(n, 2)
                if c.mn.startswith(('v_readlane', 'v_readfirstlane')) and pv & c.rd:
                    n = max(n, 1)
                if ps & c.rd:
                    n = max(n, 4 if c.mn.startswith(('v_readlane', 'v_writelane')) else 2)
            if p.mn.startswith('v_dot') and pv & (c.rd | c.wr):
                if not (c.mn == p.mn and not (pv & c.dotab)):
                    n = max(n, 3)
            if c.kind == 'vmem' and ps & c.rd:
                n = max(n, 5)
            if c.kind in ('salu', 'smem') and ps & c.rd:
                n = max(n, 2)
        if p.kind == 'mfma':
            big = p.passes >= 8
            if c.kind == 'mfma':
                if pv & c.srcab:
                    n = max(n, 12 if big else 8)
                if pv & c.srcc:
                    if not (c.srcc == pv and c.passes == p.passes):
                        n = max(n, 10 if big else 6)
                if (pv & c.wr) and not (c.srcc == pv):
                    n = max(n, 10 if big else 6)
            elif c.kind in ('valu', 'vmem', 'ds'):
                if pv & (c.rd | c.wr):
                    n = max(n, 12 if big else 8)
                if c.kind == 'valu' and (p.srcc & c.wr):
                    n = max(n, 7 if big else 3)
        if p.kind == 'salu' and 'm0' in p.wr and 'm0' in c.rd and c.kind == 'vmem':
            n = max(n, 1)
        if p.wide_store and (p.sdata & c.wr):
            n = max(n, 2)
        return n

    def __call__(self, text, tag=None):
        I = self.parse(text)
        req = 0
        for h in self.hist:
            d = self.pos - h.pos
            r = self.need(h, I)
            req = max(req, r - d)
        if req > 0:
            self.nop(req)
        self.out.append('    ' + text)
        I.pos = self.pos + 1
        self.pos += 1
        self.hist.append(I)
        self.hist = [h for h in self.hist if self.pos - h.pos < 24]
        if I.kind == 'vmem':
            self.vmq.append(tag)
        elif I.kind == 'ds':
            self.lgq.append(tag)
        if I.mn.startswith(('s_branch', 's_cbranch')):
            pass
        return I

    def branch(self, text):
        self.flush()
        self(text)

    def _cnt(self, q, tags):
        if not isinstance(tags, (list, set)):
            tags = [tags]
        last = -1
        for i, t in enumerate(q):
            if t in tags:
                last = i
        if last < 0:
            return None
        return len(q) - 1 - last

    def wait(self, vm=None, lg=None, vm_all=False, lg_all=False):
        parts = []
        if vm_all:
            parts.append('vmcnt(0)')
            self.vmq = []
        elif vm is not None:
            n = self._cnt(self.vmq, vm)
            if n is not None:
                n = min(n, 63)
                parts.append(f'vmcnt({n})')
                self.vmq = self.vmq[len(self.vmq) - n:] if n else []
        if lg_all:
            parts.append('lgkmcnt(0)')
            self.lgq = []
        elif lg is not None:
            n = self._cnt(self.lgq, lg)
            if n is not None:
                n = min(n, 15)
                parts.append(f'lgkmcnt({n})')
                self.lgq = self.lgq[len(self.lgq) - n:] if n else []
        if parts:
            self('s_waitcnt ' + ' '.join(parts))

    def text(self):
        return '\n'.join(self.out) + '\n'
```

```python
import sys, math, os, struct
sys.path.insert(0, 'gen')
from asmlib import Asm

S, D, H, DH, F = 2048, 640, 32, 20, 1536
XF = [None, 0x000000, 0x300000, 0x600000]
QM = 0x1000000
KM = 0x1200000
QT = 0x1400000
KT_ = 0x1480000
VT = 0x1500000
OF = 0x1900000
HF = 0x1C00000
WS_SIZE = 0x10000000
LOG2E = 1.4426950408889634
NL = 4
BIGOFF = 0x40000000


def f32hex(x):
    return '0x%08x' % struct.unpack('<I', struct.pack('<f', x))[0]


kernels = []
STAMP = os.environ.get('STAMP', '')
stamp_n = [0]


def stamp(a, name):
    if STAMP != name:
        return
    i = stamp_n[0]
    stamp_n[0] += 1
    a(f's_memtime s[{80+2*i}:{81+2*i}]')
    a('s_waitcnt lgkmcnt(0)')
    a.lgq = []


def stamp_out(a, name):
    if STAMP != name:
        return
    a.wait(vm_all=True)
    stamp(a, name)
    n = stamp_n[0]
    L = a.newlabel('so')
    a('s_mov_b64 exec, -1')
    a(f's_cmp_lg_u32 s2, {os.environ.get("STAMP_WG", "0")}')
    a.branch(f's_cbranch_scc1 {L}')
    a('s_load_dwordx2 s[76:77], s[0:1], 64')
    a('s_waitcnt lgkmcnt(0)')
    a('s_and_b32 s77, s77, 0xffff')
    a('s_mov_b32 s78, 256')
    a('s_mov_b32 s79, 0x00020000')
    a('v_lshrrev_b32 v0, 6, v0')
    a('v_lshlrev_b32 v0, 6, v0')
    for i in range(n):
        a(f'v_mov_b32 v1, s{80+2*i}')
        a(f'buffer_store_dword v1, v0, s[76:79], 0 offen offset:{4*i}')
    a.label(L)
    stamp_n[0] = 0


def begin(a, name):
    a.raw('.text')
    a.raw(f'.globl {name}')
    a.raw('.p2align 8')
    a.raw(f'.type {name},@function')
    a.raw(f'{name}:')


def fin_srd(a, sreg, size):
    a(f's_and_b32 s{sreg+1}, s{sreg+1}, 0xffff')
    a(f's_mov_b32 s{sreg+2}, {size}')
    a(f's_mov_b32 s{sreg+3}, 0x00020000')


def RR(i, n):
    return f'v[{i}:{i+n-1}]' if i < 256 else f'a[{i-256}:{i-256+n-1}]'


def bf16r(a, v):
    a(f'v_cvt_pk_bf16_f32 v{v}, v{v}, v{v}')
    a(f'v_lshlrev_b32 v{v}, 16, v{v}')


class G:
    pass


def setup_geom(g):
    g.mtw = g.MT // g.WM
    g.NT = sum(im['nt'] for im in g.images)
    g.ntw = g.NT // g.WN
    off = g.MT * 2048
    for im in g.images:
        im['pp'] = im['nt'] * 2 + im['pad']
        im['rb'] = im['pp'] * 16
        im['off'] = off
        off += 64 * im['rb']
    g.SB = off
    g.KS = g.K // 64
    g.STL = g.NS * g.SB
    g.CSL = g.STL + 1024
    g.lds = g.CSL + 1024
    g.tmap = []
    for ii, im in enumerate(g.images):
        for t in range(im['nt']):
            g.tmap.append((ii, t))


def loader_path(a, g):
    KS, NS, SB = g.KS, g.NS, g.SB
    KT = g.K // 32
    a('s_sub_u32 s12, s12, 4')
    npa = g.MT // NL
    for j in range(npa):
        a(f's_add_u32 s18, s12, {NL * j}')
        a(f's_lshl_b32 s{56 + j}, s18, 11')
        a(f's_mul_i32 s20, s13, {g.MT}')
        a('s_add_u32 s20, s20, s18')
        if g.a_nat:
            a(f's_mul_i32 s{24 + j}, s20, {16 * 1280}')
        else:
            a(f's_mul_i32 s20, s20, {KT * 1024}')
            a(f's_add_u32 s{24 + j}, s20, {g.a_base}')
    if g.a_nat:
        a('v_and_b32 v4, 15, v1')
        a('v_mul_u32_u24 v4, 1280, v4')
        a('v_lshrrev_b32 v5, 4, v1')
        a('v_lshlrev_b32 v5, 4, v5')
        a('v_add_u32 v4, v4, v5')
    VB = 16
    binst = []
    vr = VB
    for ii, im in enumerate(g.images):
        pp = im['pp']
        nq = (pp + NL - 1) // NL
        M = (65536 + pp - 1) // pp
        for j in range(nq):
            a(f's_add_u32 s18, s12, {NL * j}')
            if NL * j + NL - 1 >= pp:
                a(f's_min_u32 s18, s18, {pp - 1}')
            a(f's_lshl_b32 s{60 + len(binst) % 1}, s18, 10') if False else None
            a('s_lshl_b32 s19, s18, 6')
            a('v_add_u32 v6, s19, v1')
            a(f'v_mul_u32_u24 v7, {M}, v6')
            a('v_lshrrev_b32 v7, 16, v7')
            a(f'v_mul_u32_u24 v8, {pp}, v7')
            a('v_sub_u32 v8, v6, v8')
            a('v_and_b32 v9, 0x33, v7')
            a('v_and_b32 v10, 4, v7')
            a('v_lshlrev_b32 v10, 1, v10')
            a('v_or_b32 v9, v9, v10')
            a('v_and_b32 v10, 8, v7')
            a('v_lshrrev_b32 v10, 1, v10')
            a('v_or_b32 v9, v9, v10')
            a(f'v_mul_u32_u24 v9, {im["N"] * 2}, v9')
            a(f'v_lshl_add_u32 v{vr}, v8, 4, v9')
            if im['pad']:
                a(f'v_cmp_gt_u32 vcc, {im["nt"] * 2}, v8')
                a(f'v_mov_b32 v10, {BIGOFF}')
                a(f'v_cndmask_b32 v{vr}, v10, v{vr}, vcc')
            binst.append((ii, j, vr))
            vr += 1
    a('s_lshl_b32 s17, s12, 10')
    for ii, im in enumerate(g.images):
        a(f's_mul_i32 s{48 + ii}, s14, {im["nt"] * 32}')
    VS = vr + (vr & 1)
    VF = (VS + 2 * npa + 3) // 4 * 4
    VC = VF + 16
    ncs = g.NT // NL if g.ln else 0
    VO = VC + 4 * ncs
    VA_ = VO + 4
    if g.ln:
        for j in range(2 * npa):
            a(f'v_mov_b32 v{VS + j}, 0')
        for j in range(4):
            a(f'v_mov_b32 v{VO + j}, 0x3f803f80')
        a('s_mov_b32 s23, 0x3f803f80')
        a('s_lshl_b32 s18, s12, 11')
        for h in range(3):
            a(f'v_add_u32 v{VA_ + h}, s18, v3')
            if h:
                a(f'v_add_u32 v{VA_ + h}, {h << 16}, v{VA_ + h}')
        im0 = g.images[0]
        a('v_lshrrev_b32 v6, 4, v1')
        a('v_and_b32 v7, 1, v6')
        a('v_lshlrev_b32 v7, 2, v7')
        a('v_lshrrev_b32 v6, 1, v6')
        a('v_lshl_add_u32 v7, v6, 4, v7')
        a('v_bfe_u32 v6, v1, 2, 2')
        a('v_add_u32 v7, v7, v6')
        a(f'v_mul_u32_u24 v7, {im0["rb"]}, v7')
        a('v_and_b32 v6, 3, v1')
        a('v_lshl_add_u32 v7, v6, 3, v7')
        a(f's_mul_i32 s18, s12, {ncs}')
        a('s_lshl_b32 s19, s18, 5')
        a(f's_add_u32 s19, s19, {im0["off"]}')
        if len(g.images) > 1:
            im1 = g.images[1]
            a(f's_sub_u32 s20, s18, {im0["nt"]}')
            a('s_lshl_b32 s20, s20, 5')
            a(f's_add_u32 s20, s20, {im1["off"]}')
            a(f's_cmp_lt_u32 s18, {im0["nt"]}')
            a('s_cselect_b32 s19, s19, s20')
        for h in range(3):
            a(f'v_add_u32 v{VA_ + 3 + h}, s19, v7')
            if h:
                a(f'v_add_u32 v{VA_ + 3 + h}, {h << 16}, v{VA_ + 3 + h}')

    def dma(st):
        sl = st % NS
        for j in range(npa):
            if g.a_nat:
                for kt in range(2):
                    a(f's_add_u32 m0, s{56 + j}, {sl * SB + kt * 1024}')
                    a(f's_add_u32 s21, s{24 + j}, {st * 128 + kt * 64}')
                    a('buffer_load_dwordx4 v4, s[8:11], s21 offen lds', tag=('dma', st))
            else:
                a(f's_add_u32 m0, s{56 + j}, {sl * SB}')
                a(f's_add_u32 s21, s{24 + j}, {st * 2048}')
                a('buffer_load_dwordx4 v3, s[4:7], s21 offen lds', tag=('dma', st))
                a('buffer_load_dwordx4 v3, s[4:7], s21 offen offset:1024 lds', tag=('dma', st))
        for ii, im in enumerate(g.images):
            a(f's_add_u32 s{50 + ii}, s{48 + ii}, {st * 64 * im["N"] * 2}')
        for (ii, j, v) in binst:
            im = g.images[ii]
            pp = im['pp']
            if NL * j + NL - 1 >= pp:
                a(f's_add_u32 s21, s17, {NL * j * 1024}')
                a(f's_min_u32 s21, s21, {(pp - 1) * 1024}')
                a(f's_add_u32 m0, s21, {sl * SB + im["off"]}')
            else:
                a(f's_add_u32 m0, s17, {sl * SB + im["off"] + NL * j * 1024}')
            a(f'buffer_load_dwordx4 v{v}, s[{40 + 4 * ii}:{43 + 4 * ii}], s{50 + ii} offen lds', tag=('dma', st))

    def lrd(dst, n, vbase, off, kind):
        hi = off >> 16
        a(f'{kind} {RR(dst, n)}, v{vbase + hi} offset:{off & 0xffff}', tag='l')

    for st in range(min(NS, KS)):
        dma(st)
    for st in range(KS):
        a.wait(vm=('dma', st), lg_all=True)
        a('s_barrier')
        if st >= 1 and st + NS - 1 < KS:
            dma(st + NS - 1)
        if g.ln:
            sl = st % NS
            rb = g.images[0]['rb']
            for kt in range(2):
                for j in range(npa):
                    lrd(VF + 4 * j, 4, VA_, sl * SB + j * NL * 2048 + kt * 1024, 'ds_read_b128')
                a.wait(lg_all=True)
                for j in range(npa):
                    for w in range(4):
                        a(f'v_dot2_f32_bf16 v{VS+2*j}, v{VF+4*j+w}, s23, v{VS+2*j}')
                        a(f'v_dot2_f32_bf16 v{VS+2*j+1}, v{VF+4*j+w}, v{VF+4*j+w}, v{VS+2*j+1}')
                for b in range(ncs):
                    for h in range(2):
                        lrd(VF + 4 * b + 2 * h, 2, VA_ + 3, sl * SB + (32 * kt + 8 * h) * rb + b * 32, 'ds_read_b64_tr_b16')
                a.wait(lg_all=True)
                for b in range(ncs):
                    c = '0' if (st == 0 and kt == 0) else f'v[{VC+4*b}:{VC+4*b+3}]'
                    a(f'v_mfma_f32_16x16x32_bf16 v[{VC+4*b}:{VC+4*b+3}], v[{VF+4*b}:{VF+4*b+3}], v[{VO}:{VO+3}], {c}')
    if g.ln:
        inv = f32hex(1.0 / D)
        for j in range(npa):
            vs = VS + 2 * j
            for sw in ('v_permlane16_swap_b32', 'v_permlane32_swap_b32'):
                for r in (vs, vs + 1):
                    a(f'v_mov_b32 v6, v{r}')
                    a(f'{sw} v6, v{r}')
                    a(f'v_add_f32 v{r}, v{r}, v6')
            a(f'v_mul_f32 v{vs}, {inv}, v{vs}')
            a(f'v_mul_f32 v{vs+1}, {inv}, v{vs+1}')
            a(f'v_fma_f32 v{vs+1}, -v{vs}, v{vs}, v{vs+1}')
            a(f'v_max_f32 v{vs+1}, 0, v{vs+1}')
            bf16r(a, vs)
            bf16r(a, vs + 1)
            a(f'v_add_f32 v{vs+1}, {f32hex(1e-5)}, v{vs+1}')
            bf16r(a, vs + 1)
            a(f'v_sqrt_f32 v{vs+1}, v{vs+1}')
            bf16r(a, vs + 1)
            a(f'v_rcp_f32 v{vs+1}, v{vs+1}')
            a('v_and_b32 v6, 15, v1')
            a('v_lshlrev_b32 v6, 3, v6')
            a('s_lshl_b32 s18, s12, 7')
            a(f's_add_u32 s18, s18, {g.STL + NL * j * 128}')
            a('v_add_u32 v6, s18, v6')
            a(f'ds_write_b64 v6, v[{vs}:{vs+1}]')
        a('v_lshrrev_b32 v6, 4, v1')
        a('v_lshlrev_b32 v6, 4, v6')
        a(f's_mul_i32 s18, s12, {ncs * 64}')
        a(f's_add_u32 s18, s18, {g.CSL}')
        a('v_add_u32 v6, s18, v6')
        a('s_mov_b32 exec_lo, 0x00010001')
        a('s_mov_b32 exec_hi, 0x00010001')
        for b in range(ncs):
            a(f'ds_write_b128 v6, v[{VC+4*b}:{VC+4*b+3}] offset:{64*b}')
        a('s_mov_b64 exec, -1')
        a.wait(lg_all=True)
        a('s_barrier')
    a('s_endpgm')


def gemm_core(a, g, swap):
    KS, NS, SB = g.KS, g.NS, g.SB

    def read_list(st, kt):
        sl = st % NS
        L = []
        for i in range(g.mtw):
            off = sl * SB + (i * 2 + kt) * 1024
            L.append(lambda i=i, off=off: a(f'ds_read_b128 {RR(g.fa(kt, i), 4)}, v{g.v_a + (off >> 16)} offset:{off & 0xffff}', tag=('rd', st, kt)))
        for b in range(g.ntw):
            ii, t = g.tmap[b]
            im = g.images[ii]
            for h in range(2):
                off = sl * SB + im['off'] + (32 * kt + 8 * h) * im['rb'] + t * 32
                L.append(lambda b=b, h=h, off=off: a(f'ds_read_b64_tr_b16 {RR(g.fb(kt, b) + 2 * h, 2)}, v{g.v_b + (off >> 16)} offset:{off & 0xffff}', tag=('rd', st, kt)))
        return L

    def mfmas(st, kt, R):
        nm = g.mtw * g.ntw
        nr = len(R)
        span = max(1, int(nm * 0.7))
        cnt = 0
        si = 0
        for i in range(g.mtw):
            for b in range(g.ntw):
                acc = g.acc(i, b)
                A = RR(g.fa(kt, i), 4)
                B = RR(g.fb(kt, b), 4)
                c = '0' if (st == 0 and kt == 0) else f'v[{acc}:{acc+3}]'
                if swap:
                    a(f'v_mfma_f32_16x16x32_bf16 v[{acc}:{acc+3}], {A}, {B}, {c}')
                else:
                    a(f'v_mfma_f32_16x16x32_bf16 v[{acc}:{acc+3}], {B}, {A}, {c}')
                cnt += 1
                while si < nr and (si * span) / nr < cnt:
                    R[si]()
                    si += 1
        while si < nr:
            R[si]()
            si += 1

    stamp(a, g.name)
    a('s_barrier')
    stamp(a, g.name)
    for f in read_list(0, 0):
        f()
    for st in range(KS):
        a.wait(lg_all=True)
        mfmas(st, 0, read_list(st, 1))
        a.wait(lg_all=True)
        if st + 1 < KS:
            a('s_barrier')
            if st + 1 in (1, 4, KS - 1):
                stamp(a, g.name)
        mfmas(st, 1, read_list(st + 1, 0) if st + 1 < KS else [])
    if g.ln:
        a('s_barrier')
    stamp(a, g.name)


def gemm_setup(a, g, name, MB, NB, aux_slot=None, aux_size=0):
    NWG = MB * NB
    g.name = name
    begin(a, name)
    a(f's_cmp_ge_u32 s2, {NWG}')
    a.branch(f's_cbranch_scc1 {name}_end')
    a('s_load_dwordx2 s[4:5], s[0:1], 72')
    if aux_slot is not None:
        a(f's_load_dwordx2 s[8:9], s[0:1], {aux_slot}')
    for ii, im in enumerate(g.images):
        a(f's_load_dwordx2 s[{40+4*ii}:{41+4*ii}], s[0:1], {im["slot"]}')
    a('v_lshrrev_b32 v2, 6, v0')
    a('v_readfirstlane_b32 s12, v2')
    a('v_and_b32 v1, 63, v0')
    a('v_lshlrev_b32 v3, 4, v1')
    BA = g.band
    nbands = MB // BA
    XPB = 8 // nbands
    per = MB * NB // 8
    a('s_and_b32 s17, s2, 7')
    a('s_lshr_b32 s18, s2, 3')
    a(f's_and_b32 s19, s17, {XPB - 1}')
    a(f's_lshr_b32 s17, s17, {int(math.log2(XPB))}')
    a(f's_mul_i32 s19, s19, {per}')
    a('s_add_u32 s18, s18, s19')
    a(f's_and_b32 s13, s18, {BA - 1}')
    a(f's_lshl_b32 s17, s17, {int(math.log2(BA))}')
    a('s_add_u32 s13, s13, s17')
    a(f's_lshr_b32 s14, s18, {int(math.log2(BA))}')
    a('s_waitcnt lgkmcnt(0)')
    fin_srd(a, 4, WS_SIZE)
    if aux_slot is not None:
        fin_srd(a, 8, aux_size)
    for ii, im in enumerate(g.images):
        fin_srd(a, 40 + 4 * ii, g.K * im['N'] * 2)
    a('s_cmp_lt_u32 s12, 4')
    a.branch(f's_cbranch_scc1 {name}_comp')
    loader_path(a, g)
    a.label(f'{name}_comp')
    a.vmq, a.lgq = [], []
    if g.WN == 1:
        a('s_mov_b32 s15, s12')
        a('s_mov_b32 s16, 0')
    else:
        a('s_lshr_b32 s15, s12, 1')
        a('s_and_b32 s16, s12, 1')
    a(f's_mul_i32 s17, s15, {g.mtw * 2048}')
    rb = g.images[0]['rb']
    a('v_lshrrev_b32 v2, 4, v1')
    a('v_and_b32 v10, 1, v2')
    a('v_lshlrev_b32 v10, 2, v10')
    a('v_lshrrev_b32 v11, 1, v2')
    a('v_lshl_add_u32 v10, v11, 4, v10')
    a('v_bfe_u32 v11, v1, 2, 2')
    a('v_add_u32 v10, v10, v11')
    a(f'v_mul_u32_u24 v10, {rb}, v10')
    a('v_and_b32 v11, 3, v1')
    a('v_lshl_add_u32 v10, v11, 3, v10')
    a(f's_mul_i32 s18, s16, {g.ntw * 32}')
    for h in range(3):
        a(f'v_add_u32 v{g.v_a + h}, s17, v3')
        a(f'v_add_u32 v{g.v_b + h}, s18, v10')
        if h:
            a(f'v_add_u32 v{g.v_a + h}, {h << 16}, v{g.v_a + h}')
            a(f'v_add_u32 v{g.v_b + h}, {h << 16}, v{g.v_b + h}')


def alloc(g, extra_base):
    g.v_a = 4
    g.v_b = 7
    nacc = g.mtw * g.ntw * 4
    g.acc0 = extra_base
    g.acc = lambda i, b: g.acc0 + (i * g.ntw + b) * 4
    g.f0 = g.acc0 + nacc
    setsz = (g.mtw + g.ntw) * 4
    g.fa = lambda p, i: g.f0 + p * setsz + i * 4
    g.fb = lambda p, b: g.f0 + p * setsz + (g.mtw + b) * 4
    g.vend = max(g.f0 + 2 * setsz, 96)


def gen_qkv(name, x_base):
    a = Asm()
    g = G()
    g.MT, g.WM, g.WN, g.K, g.NS = 8, 2, 2, 640, 4
    g.images = [dict(slot=8, N=1920, nt=8, pad=2)]
    g.a_nat = x_base is None
    g.a_base = x_base
    g.band = 4
    g.ln = True
    setup_geom(g)
    alloc(g, 48)
    MB, NB = 16, 15
    gemm_setup(a, g, name, MB, NB, aux_slot=0 if g.a_nat else None, aux_size=S * D * 2)
    VT_, VCS, VAD = 10, 26, 42
    a(f's_cmp_ge_u32 s14, 10')
    a.branch(f's_cbranch_scc1 {name}_v')
    gemm_core(a, g, swap=False)
    a('v_and_b32 v11, 15, v1')
    a('v_lshlrev_b32 v44, 3, v11')
    a('s_lshl_b32 s17, s15, 9')
    a(f's_add_u32 s17, s17, {g.STL}')
    a('v_add_u32 v44, s17, v44')
    a('v_lshlrev_b32 v45, 4, v2')
    a('s_lshl_b32 s17, s16, 8')
    a(f's_add_u32 s17, s17, {g.CSL}')
    a('v_add_u32 v45, s17, v45')
    for b in range(4):
        a(f'ds_read_b128 v[{VCS+4*b}:{VCS+4*b+3}], v45 offset:{64*b}', tag='e')
    tmp = g.f0
    for i in range(4):
        a(f'ds_read_b64 v[{tmp+2*i}:{tmp+2*i+1}], v44 offset:{i*128}', tag='e')
    a('s_cmp_ge_u32 s14, 5')
    a('s_cselect_b32 s17, 1, 0')
    a('s_mul_i32 s18, s17, 5')
    a('s_sub_u32 s18, s14, s18')
    a('s_lshl_b32 s18, s18, 7')
    a('s_lshl_b32 s19, s16, 6')
    a('s_add_u32 s18, s18, s19')
    a('v_lshlrev_b32 v12, 2, v2')
    a('v_add_u32 v12, s18, v12')
    a('s_lshl_b32 s19, s13, 7')
    a('s_lshl_b32 s20, s15, 6')
    a('s_add_u32 s19, s19, s20')
    a('v_add_u32 v13, s19, v11')
    a('s_lshl_b32 s20, s17, 21')
    a(f's_add_u32 s20, s20, {QM}')
    a('s_lshl_b32 s21, s17, 19')
    a(f's_add_u32 s21, s21, {QT}')
    a('s_mov_b32 s22, 3277')
    AD, SD = tmp + 8, tmp + 12
    for b in range(4):
        a(f'v_add_u32 v14, {16*b}, v12')
        a('v_mul_lo_u32 v15, v14, s22')
        a('v_lshrrev_b32 v15, 16, v15')
        a('v_mul_u32_u24 v16, 20, v15')
        a('v_sub_u32 v16, v14, v16')
        a('v_lshl_add_u32 v17, v15, 11, v13')
        a('v_lshlrev_b32 v18, 5, v17')
        a('v_lshl_add_u32 v18, v16, 1, v18')
        a('v_add_u32 v18, s20, v18')
        a('v_lshlrev_b32 v19, 3, v17')
        a('v_add_u32 v19, s21, v19')
        a('v_cmp_gt_u32 vcc, 16, v16')
        a(f'v_cndmask_b32 v{AD+b}, v19, v18, vcc')
        a(f'v_mov_b32 v19, 128')
        a(f'v_mov_b32 v18, 512')
        a(f'v_cndmask_b32 v{SD+b}, v19, v18, vcc')
    a.wait(lg_all=True)
    for i in range(4):
        for b in range(4):
            acc = g.acc(i, b)
            for r in range(4):
                a(f'v_fma_f32 v{acc+r}, -v{tmp+2*i}, v{VCS+4*b+r}, v{acc+r}')
                a(f'v_mul_f32 v{acc+r}, v{tmp+2*i+1}, v{acc+r}')
            a(f'v_cvt_pk_bf16_f32 v{acc}, v{acc}, v{acc+1}')
            a(f'v_cvt_pk_bf16_f32 v{acc+1}, v{acc+2}, v{acc+3}')
            a(f'buffer_store_dwordx2 v[{acc}:{acc+1}], v{AD+b}, s[4:7], 0 offen')
            if i < 3:
                a(f'v_add_u32 v{AD+b}, v{AD+b}, v{SD+b}')
    stamp_out(a, name)
    a('s_endpgm')
    a.label(f'{name}_v')
    stamp_n[0] = 0
    gemm_core(a, g, swap=True)
    a('v_and_b32 v11, 15, v1')
    a('v_lshlrev_b32 v45, 2, v11')
    a('s_lshl_b32 s17, s16, 8')
    a(f's_add_u32 s17, s17, {g.CSL}')
    a('v_add_u32 v45, s17, v45')
    for b in range(4):
        a(f'ds_read_b32 v{VCS+b}, v45 offset:{64*b}', tag='e')
    a('s_sub_u32 s17, s14, 10')
    a('s_lshl_b32 s17, s17, 7')
    a('s_lshl_b32 s18, s16, 6')
    a('s_add_u32 s17, s17, s18')
    a('v_add_u32 v44, s17, v11')
    a('v_and_b32 v45, 1, v2')
    a('v_lshlrev_b32 v45, 4, v45')
    a('v_lshrrev_b32 v46, 1, v2')
    a('v_lshlrev_b32 v46, 3, v46')
    a('v_add_u32 v45, v45, v46')
    a('s_mov_b32 s18, 3277')
    for b in range(4):
        vo = VCS + 4 + b
        a(f'v_add_u32 v46, {16*b}, v44')
        a('v_mul_lo_u32 v47, v46, s18')
        a('v_lshrrev_b32 v47, 16, v47')
        a(f'v_mul_u32_u24 v{vo}, 20, v47')
        a(f'v_sub_u32 v{vo}, v46, v{vo}')
        a(f'v_lshlrev_b32 v{vo}, 5, v{vo}')
        a('v_lshlrev_b32 v47, 17, v47')
        a(f'v_add_u32 v{vo}, v{vo}, v47')
        a(f'v_add_u32 v{vo}, v{vo}, v45')
    a('s_lshl_b32 s20, s13, 13')
    a('s_lshl_b32 s21, s15, 12')
    a('s_add_u32 s20, s20, s21')
    a(f's_add_u32 s20, s20, {VT}')
    a('v_lshlrev_b32 v44, 5, v2')
    a('s_lshl_b32 s17, s15, 9')
    a(f's_add_u32 s17, s17, {g.STL}')
    a('v_add_u32 v44, s17, v44')
    for i in range(4):
        a(f'ds_read_b128 v[{VT_+2}:{VT_+5}], v44 offset:{i*128}', tag='e')
        a(f'ds_read_b128 v[{VT_+6}:{VT_+9}], v44 offset:{i*128+16}', tag='e')
        a.wait(lg_all=True)
        for b in range(4):
            acc = g.acc(i, b)
            for r in range(4):
                a(f'v_fma_f32 v{acc+r}, -v{VT_+2+2*r}, v{VCS+b}, v{acc+r}')
                a(f'v_mul_f32 v{acc+r}, v{VT_+2+2*r+1}, v{acc+r}')
            a(f'v_cvt_pk_bf16_f32 v{acc}, v{acc}, v{acc+1}')
            a(f'v_cvt_pk_bf16_f32 v{acc+1}, v{acc+2}, v{acc+3}')
            a(f'buffer_store_dwordx2 v[{acc}:{acc+1}], v{VCS+4+b}, s[4:7], s20 offen offset:{i*1024}')
    a('s_cmp_lg_u32 s14, 10')
    a.branch(f's_cbranch_scc1 {name}_end')
    for j in range(4):
        a(f'v_mov_b32 v{12+j}, 0x3f803f80')
    a('s_lshl_b32 s20, s13, 13')
    a(f's_add_u32 s20, s20, {VT + 640}')
    for k in range(2):
        a(f'v_add_u32 v16, {256*k}, v0')
        a('v_lshrrev_b32 v17, 4, v16')
        a('v_lshlrev_b32 v17, 17, v17')
        a('v_bfe_u32 v18, v16, 1, 3')
        a('v_lshl_add_u32 v17, v18, 10, v17')
        a('v_and_b32 v18, 1, v16')
        a('v_lshl_add_u32 v17, v18, 4, v17')
        a('buffer_store_dwordx4 v[12:15], v17, s[4:7], s20 offen')
    a.label(f'{name}_end')
    a('s_endpgm')
    kernels.append((name, MB * NB, 256 + 64 * NL, g.lds, g.vend, 100, a.text()))


def gen_res(name, K, wslot, a_base, xin, xout):
    a = Asm()
    g = G()
    g.MT, g.WM, g.WN, g.K, g.NS = 4, 4, 1, K, 8
    g.images = [dict(slot=wslot, N=640, nt=5, pad=0)]
    g.a_nat = False
    g.a_base = a_base
    g.band = 8
    g.ln = False
    setup_geom(g)
    g.lds = g.NS * g.SB
    alloc(g, 32)
    MB, NB = 32, 8
    aux = 0 if xin is None else (56 if xout is None else None)
    gemm_setup(a, g, name, MB, NB, aux_slot=aux, aux_size=S * D * 2)
    a('v_and_b32 v11, 15, v1')
    a('v_lshrrev_b32 v12, 1, v2')
    a('v_lshlrev_b32 v12, 8, v12')
    a('v_lshl_add_u32 v12, v11, 4, v12')
    a('v_and_b32 v13, 1, v2')
    a('v_lshl_add_u32 v12, v13, 3, v12')
    a('v_mul_u32_u24 v13, 1280, v11')
    a('v_lshl_add_u32 v13, v2, 3, v13')
    VR = 14
    a('s_lshl_b32 s17, s13, 2')
    a('s_add_u32 s17, s17, s15')
    a('s_mul_i32 s18, s14, 5')
    for b in range(5):
        a(f's_add_u32 s19, s18, {b}')
        a('s_lshr_b32 s20, s19, 1')
        a('s_and_b32 s21, s19, 1')
        a('s_lshl_b32 s21, s21, 9')
        a('s_mul_i32 s22, s17, 20')
        a('s_add_u32 s22, s22, s20')
        a('s_lshl_b32 s22, s22, 10')
        a(f's_add_u32 s{48+b}, s22, s21')
        a(f's_mul_i32 s22, s17, {16*1280}')
        a('s_lshl_b32 s20, s19, 5')
        a(f's_add_u32 s{56+b}, s22, s20')
        if xin is None:
            a(f'buffer_load_dwordx2 v[{VR+2*b}:{VR+2*b+1}], v13, s[8:11], s{56+b} offen', tag='res')
        else:
            a(f's_add_u32 s22, s{48+b}, {xin}')
            a(f'buffer_load_dwordx2 v[{VR+2*b}:{VR+2*b+1}], v12, s[4:7], s22 offen', tag='res')
    gemm_core(a, g, swap=False)
    a.wait(vm='res')
    for b in range(5):
        acc = g.acc(0, b)
        a(f'v_cvt_pk_bf16_f32 v{acc}, v{acc}, v{acc+1}')
        a(f'v_cvt_pk_bf16_f32 v{acc+2}, v{acc+2}, v{acc+3}')
        a(f'v_and_b32 v{acc+1}, 0xffff0000, v{acc}')
        a(f'v_lshlrev_b32 v{acc}, 16, v{acc}')
        a(f'v_and_b32 v{acc+3}, 0xffff0000, v{acc+2}')
        a(f'v_lshlrev_b32 v{acc+2}, 16, v{acc+2}')
        r0, r1 = VR + 2 * b, VR + 2 * b + 1
        a(f'v_lshlrev_b32 v24, 16, v{r0}')
        a(f'v_and_b32 v25, 0xffff0000, v{r0}')
        a(f'v_add_f32 v{acc}, v{acc}, v24')
        a(f'v_add_f32 v{acc+1}, v{acc+1}, v25')
        a(f'v_lshlrev_b32 v24, 16, v{r1}')
        a(f'v_and_b32 v25, 0xffff0000, v{r1}')
        a(f'v_add_f32 v{acc+2}, v{acc+2}, v24')
        a(f'v_add_f32 v{acc+3}, v{acc+3}, v25')
        a(f'v_cvt_pk_bf16_f32 v{r0}, v{acc}, v{acc+1}')
        a(f'v_cvt_pk_bf16_f32 v{r1}, v{acc+2}, v{acc+3}')
        if xout is None:
            a(f'buffer_store_dwordx2 v[{r0}:{r1}], v13, s[8:11], s{56+b} offen')
        else:
            a(f's_add_u32 s22, s{48+b}, {xout}')
            a(f'buffer_store_dwordx2 v[{r0}:{r1}], v12, s[4:7], s22 offen')
    stamp_out(a, name)
    a.label(f'{name}_end')
    a('s_endpgm')
    kernels.append((name, MB * NB, 256 + 64 * NL, g.lds, g.vend, 100, a.text()))


def gen_gu(name, x_base):
    a = Asm()
    g = G()
    g.MT, g.WM, g.WN, g.K, g.NS = 8, 4, 1, 640, 3
    g.images = [dict(slot=32, N=1536, nt=6, pad=2), dict(slot=40, N=1536, nt=6, pad=2)]
    g.a_nat = False
    g.a_base = x_base
    g.band = 8
    g.ln = True
    setup_geom(g)
    alloc(g, 32)
    MB, NB = 16, 16
    gemm_setup(a, g, name, MB, NB)
    VT_, VCS = 14, g.f0
    gemm_core(a, g, swap=False)
    a('v_lshlrev_b32 v26, 4, v2')
    a(f'v_add_u32 v26, {g.CSL}, v26')
    for b in range(12):
        a(f'ds_read_b128 v[{VCS+4*b}:{VCS+4*b+3}], v26 offset:{64*b}', tag='e')
    a('v_and_b32 v11, 15, v1')
    a('v_lshlrev_b32 v27, 3, v11')
    a('s_lshl_b32 s17, s15, 8')
    a(f's_add_u32 s17, s17, {g.STL}')
    a('v_add_u32 v27, s17, v27')
    for i in range(2):
        a(f'ds_read_b64 v[{VT_+2*i}:{VT_+2*i+1}], v27 offset:{i*128}', tag='e')
    a('v_lshrrev_b32 v12, 1, v2')
    a('v_lshlrev_b32 v12, 8, v12')
    a('v_lshl_add_u32 v12, v11, 4, v12')
    a('v_and_b32 v13, 1, v2')
    a('v_lshl_add_u32 v12, v13, 3, v12')
    a('s_lshl_b32 s17, s13, 3')
    a('s_lshl_b32 s18, s15, 1')
    a('s_add_u32 s17, s17, s18')
    a('s_mul_i32 s17, s17, 48')
    a('s_mul_i32 s18, s14, 3')
    a('s_add_u32 s17, s17, s18')
    a('s_lshl_b32 s17, s17, 10')
    a(f's_add_u32 s17, s17, {HF}')
    a(f's_add_u32 s18, s17, {48*1024}')
    a.wait(lg_all=True)
    for i in range(2):
        a(f'v_mul_f32 v{VT_+4+i}, {f32hex(-LOG2E)}, v{VT_+2*i+1}')
    for i in range(2):
        for t in range(6):
            ag, au = g.acc(i, t), g.acc(i, 6 + t)
            cg, cu = VCS + 4 * t, VCS + 4 * (6 + t)
            for r in range(4):
                a(f'v_fma_f32 v{ag+r}, -v{VT_+2*i}, v{cg+r}, v{ag+r}')
                a(f'v_mul_f32 v{ag+r}, v{VT_+4+i}, v{ag+r}')
                a(f'v_exp_f32 v{ag+r}, v{ag+r}')
                a(f'v_fma_f32 v{au+r}, -v{VT_+2*i}, v{cu+r}, v{au+r}')
                a(f'v_mul_f32 v{au+r}, v{VT_+2*i+1}, v{au+r}')
                a(f'v_add_f32 v{ag+r}, 1.0, v{ag+r}')
                a(f'v_rcp_f32 v{ag+r}, v{ag+r}')
            for r in range(4):
                a(f'v_mul_f32 v{au+r}, v{au+r}, v{ag+r}')
            a(f'v_cvt_pk_bf16_f32 v{au}, v{au}, v{au+1}')
            a(f'v_cvt_pk_bf16_f32 v{au+1}, v{au+2}, v{au+3}')
            a(f'buffer_store_dwordx2 v[{au}:{au+1}], v12, s[4:7], s{17+i} offen offset:{(t>>1)*1024 + (t&1)*512}')
    stamp_out(a, name)
    a.label(f'{name}_end')
    a('s_endpgm')
    kernels.append((name, MB * NB, 256 + 64 * NL, g.lds, g.vend, 100, a.text()))


def gen_attn(name):
    a = Asm()
    NWG = 512
    begin(a, name)
    a(f's_cmp_ge_u32 s2, {NWG}')
    a.branch(f's_cbranch_scc1 {name}_end')
    a('s_load_dwordx2 s[4:5], s[0:1], 72')
    SB = 16
    OB = 160
    KV = 176
    QB = 248
    L_KM, L_KT, L_V = 0, 12 * 1024, 15 * 1024
    lds = L_V + 24 * 1024
    a('v_lshrrev_b32 v2, 6, v0')
    a('v_readfirstlane_b32 s12, v2')
    a('v_and_b32 v1, 63, v0')
    a('v_and_b32 v3, 31, v1')
    a('v_lshrrev_b32 v4, 5, v1')
    a('v_lshlrev_b32 v5, 5, v3')
    a('v_lshlrev_b32 v6, 4, v4')
    a('v_add_u32 v5, v5, v6')
    a('v_lshlrev_b32 v7, 3, v3')
    a('v_min_u32 v8, 20, v3')
    a('v_lshlrev_b32 v8, 5, v8')
    a('v_add_u32 v8, v8, v6')
    a('v_lshlrev_b32 v15, 4, v1')
    a('s_and_b32 s13, s2, 7')
    a('s_lshl_b32 s13, s13, 2')
    a('s_lshr_b32 s14, s2, 7')
    a('s_add_u32 s13, s13, s14')
    a('s_lshr_b32 s14, s2, 3')
    a('s_and_b32 s14, s14, 15')
    a('s_lshl_b32 s23, s14, 7')
    a('s_lshl_b32 s15, s12, 5')
    a('s_add_u32 s15, s15, s23')
    a('s_lshl_b32 s16, s13, 11')
    a('s_waitcnt lgkmcnt(0)')
    fin_srd(a, 4, WS_SIZE)
    stamp(a, name)
    for i in range(3):
        a(f's_add_i32 s19, s15, {-256 + 128*i}')
        a('s_max_i32 s19, s19, 0')
        a('s_add_u32 s19, s19, s16')
        a('s_lshl_b32 s20, s19, 5')
        a(f's_add_u32 s20, s20, {KM}')
        a(f's_lshl_b32 s21, s12, 10')
        a(f's_add_u32 m0, s21, {L_KM + 4096*i}')
        a('buffer_load_dwordx4 v5, s[4:7], s20 offen lds', tag='k')
    a('s_min_u32 s21, s12, 2')
    a('s_lshl_b32 s19, s21, 7')
    a('s_add_u32 s19, s19, s23')
    a('s_add_i32 s19, s19, -256')
    a('s_max_i32 s19, s19, 0')
    a('s_add_u32 s19, s19, s16')
    a('s_lshl_b32 s20, s19, 3')
    a(f's_add_u32 s20, s20, {KT_}')
    a('s_lshl_b32 s21, s21, 10')
    a(f's_add_u32 m0, s21, {L_KT}')
    a('buffer_load_dwordx4 v15, s[4:7], s20 offen lds', tag='k')
    a('s_add_u32 s17, s16, s15')
    a('s_lshl_b32 s18, s17, 5')
    a(f's_add_u32 s18, s18, {QM}')
    a(f'buffer_load_dwordx4 v[{QB}:{QB+3}], v5, s[4:7], s18 offen', tag='q')
    a('s_lshl_b32 s18, s17, 3')
    a(f's_add_u32 s18, s18, {QT}')
    a(f'buffer_load_dwordx2 v[{QB+4}:{QB+5}], v7, s[4:7], s18 offen', tag='q')
    a('s_lshl_b32 s24, s13, 17')
    a(f's_add_u32 s24, s24, {VT}')
    a('s_lshl_b32 s25, s12, 4')
    a('s_add_u32 s25, s25, s23')
    for i in range(6):
        a(f's_add_i32 s19, s25, {-256 + 64*i}')
        a('s_max_i32 s19, s19, 0')
        a('s_lshl_b32 s19, s19, 6')
        a('s_add_u32 s19, s19, s24')
        a(f's_lshl_b32 s21, s12, 10')
        a(f's_add_u32 m0, s21, {L_V + 4096*i}')
        a('buffer_load_dwordx4 v8, s[4:7], s19 offen lds', tag='v')
    NEG = '0xff7fffff'
    a('v_lshlrev_b32 v9, 2, v4')
    a('v_sub_u32 v9, v3, v9')
    a(f'v_mov_b32 v10, {NEG}')
    for r in range(16):
        c = 8 * (r >> 2) + (r & 3)
        a(f'v_cmp_le_i32 vcc, {c}, v9')
        a(f'v_cndmask_b32_e64 v{SB+8*16+r}, v10, 0, vcc')
        a(f'v_cndmask_b32_e64 v{SB+r}, 0, v10, vcc')
    a('s_lshl_b32 s21, s12, 10')
    a('v_add_u32 v13, s21, v15')
    a('s_lshl_b32 s21, s12, 8')
    a('v_add_u32 v14, s21, v7')
    a('s_lshl_b32 s21, s12, 11')
    a('v_add_u32 v2, s21, v15')
    a.wait(vm='q')
    a('s_barrier')
    stamp(a, name)
    for t in range(9):
        a(f'ds_read_b128 v[{KV+8*t}:{KV+8*t+3}], v13 offset:{L_KM + 1024*t}', tag=('k', t))
        a(f'ds_read_b64 v[{KV+8*t+4}:{KV+8*t+5}], v14 offset:{L_KT + 256*t}', tag=('k', t))
        if t == 6:
            break
    a('v_cmp_eq_u32 vcc, 0, v4')
    a(f'v_cndmask_b32_e64 v{QB+4}, 0, v{QB+4}, vcc')
    a(f'v_cndmask_b32_e64 v{QB+5}, 0, v{QB+5}, vcc')
    for t in range(9):
        a.wait(lg=('k', t))
        s0 = SB + 16 * t
        c = f'v[{s0}:{s0+15}]' if t in (0, 8) else '0'
        a(f'v_mfma_f32_32x32x16_bf16 v[{s0}:{s0+15}], v[{KV+8*t}:{KV+8*t+3}], v[{QB}:{QB+3}], {c}')
        a(f'v_mfma_f32_32x32x8_bf16 v[{s0}:{s0+15}], v[{KV+8*t+4}:{KV+8*t+5}], v[{QB+4}:{QB+5}], v[{s0}:{s0+15}]')
        if t < 2:
            t2 = 7 + t
            a(f'ds_read_b128 v[{KV+8*t2}:{KV+8*t2+3}], v13 offset:{L_KM + 1024*t2}', tag=('k', t2))
            a(f'ds_read_b64 v[{KV+8*t2+4}:{KV+8*t2+5}], v14 offset:{L_KT + 256*t2}', tag=('k', t2))
    for t in range(8):
        L = a.newlabel('skip')
        a(f's_cmp_ge_i32 s15, {256 - 32*t}')
        a.branch(f's_cbranch_scc1 {L}')
        for r in range(16):
            a(f'v_mov_b32 v{SB+16*t+r}, v10')
        a.label(L)
    stamp(a, name)
    regs = [SB + i for i in range(144)]
    a(f'v_max3_f32 v11, v{regs[0]}, v{regs[1]}, v{regs[2]}')
    a(f'v_max3_f32 v12, v{regs[3]}, v{regs[4]}, v{regs[5]}')
    i = 6
    k = 0
    while i + 1 < 144:
        d = 11 + (k & 1)
        a(f'v_max3_f32 v{d}, v{d}, v{regs[i]}, v{regs[i+1]}')
        i += 2
        k += 1
    a('v_max_f32 v11, v11, v12')
    a('v_mov_b32 v12, v11')
    a('v_permlane32_swap_b32 v11, v12')
    a('v_max_f32 v11, v11, v12')
    cs = (DH ** -0.5) * LOG2E
    a(f's_mov_b32 s22, {f32hex(cs)}')
    a('v_mul_f32 v11, s22, v11')
    a.wait(vm_all=True)
    a('s_barrier')
    for t in range(9):
        s0 = SB + 16 * t
        for s in range(2):
            a(f'ds_read_b128 v[{KV+8*t+4*s}:{KV+8*t+4*s+3}], v2 offset:{L_V + 2048*t + 1024*s}', tag=('v', t))
        for r in range(16):
            a(f'v_fma_f32 v{s0+r}, v{s0+r}, s22, -v11')
        for r in range(16):
            a(f'v_exp_f32 v{s0+r}, v{s0+r}')
        for r in range(8):
            a(f'v_cvt_pk_bf16_f32 v{s0+r}, v{s0+2*r}, v{s0+2*r+1}')
        a.wait(lg=('v', t))
        for s in range(2):
            c = '0' if (t == 0 and s == 0) else f'v[{OB}:{OB+15}]'
            a(f'v_mfma_f32_32x32x16_bf16 v[{OB}:{OB+15}], v[{KV+8*t+4*s}:{KV+8*t+4*s+3}], v[{s0+4*s}:{s0+4*s+3}], {c}')
    stamp(a, name)
    a(f'v_mov_b32 v11, v{OB+8}')
    a(f'v_mov_b32 v12, v{OB+8}')
    a('v_permlane32_swap_b32 v11, v12')
    a('v_rcp_f32 v12, v12')
    for r in range(12):
        a(f'v_mul_f32 v{OB+r}, v{OB+r}, v12')
    for r in range(6):
        a(f'v_cvt_pk_bf16_f32 v{OB+r}, v{OB+2*r}, v{OB+2*r+1}')
    a('v_lshrrev_b32 v13, 4, v3')
    a(f'v_mul_u32_u24 v13, {20*1024}, v13')
    a('v_and_b32 v14, 15, v3')
    a('v_lshl_add_u32 v13, v14, 4, v13')
    a('s_lshr_b32 s17, s15, 4')
    a(f's_mul_i32 s17, s17, {20*1024}')
    a(f's_add_u32 s17, s17, {OF}')
    a('s_mul_i32 s18, s13, 20')
    a('v_lshlrev_b32 v14, 2, v4')
    a('v_add_u32 v14, s18, v14')
    for aa in range(3):
        a(f'v_add_u32 v5, {8*aa}, v14')
        a('v_lshrrev_b32 v6, 5, v5')
        a(f'v_lshl_add_u32 v{7+aa}, v6, 10, v13')
        a('v_bfe_u32 v6, v5, 3, 2')
        a(f'v_lshl_add_u32 v{7+aa}, v6, 8, v{7+aa}')
        a('v_bfe_u32 v6, v5, 2, 1')
        a(f'v_lshl_add_u32 v{7+aa}, v6, 3, v{7+aa}')
    a(f'buffer_store_dwordx2 v[{OB}:{OB+1}], v7, s[4:7], s17 offen')
    a(f'buffer_store_dwordx2 v[{OB+2}:{OB+3}], v8, s[4:7], s17 offen')
    a('s_mov_b32 exec_hi, 0')
    a(f'buffer_store_dwordx2 v[{OB+4}:{OB+5}], v9, s[4:7], s17 offen')
    stamp_out(a, name)
    a.label(f'{name}_end')
    a('s_endpgm')
    kernels.append((name, NWG, 256, lds, 256, 100, a.text()))


def build():
    gen_qkv('qkv1_kernel', None)
    gen_attn('attn_kernel')
    gen_res('wo1_kernel', 640, 16, OF, None, XF[1])
    gen_gu('gu1_kernel', XF[1])
    gen_res('dn1_kernel', 1536, 48, HF, XF[1], XF[2])
    gen_qkv('qkv2_kernel', XF[2])
    gen_res('wo2_kernel', 640, 16, OF, XF[2], XF[3])
    gen_gu('gu2_kernel', XF[3])
    gen_res('dn2_kernel', 1536, 48, HF, XF[3], None)
    order = ['qkv1_kernel', 'attn_kernel', 'wo1_kernel', 'gu1_kernel', 'dn1_kernel',
             'qkv2_kernel', 'attn_kernel', 'wo2_kernel', 'gu2_kernel', 'dn2_kernel']
    kd = {k[0]: k for k in kernels}
    hdr = open('interleave_layers__sliding_block__glu_gated_glu__prompt.s.ref').read().split('\n')
    out = [l for l in hdr if l.startswith(';') and '@launch' not in l and 'Override' not in l and 'grid=ceil' not in l]
    for n in order:
        k = kd[n]
        out.append(f'; @launch kernel={n} grid=({k[1]},1,1) block=({k[2]},1,1) lds={k[3]}')
    out.append('.amdgcn_target "amdgcn-amd-amdhsa--gfx950"')
    for k in kernels:
        out.append(k[6])
    out.append('.section .rodata,"a"')
    for k in kernels:
        nv = (k[4] + 7) // 8 * 8
        out.append('.p2align 6')
        out.append(f'.amdhsa_kernel {k[0]}')
        out.append(f'  .amdhsa_next_free_vgpr {nv}')
        out.append(f'  .amdhsa_next_free_sgpr {k[5]}')
        out.append(f'  .amdhsa_accum_offset {min(nv, 256)}')
        out.append('  .amdhsa_group_segment_fixed_size 0')
        out.append('  .amdhsa_kernarg_size 80')
        out.append('  .amdhsa_user_sgpr_count 2')
        out.append('  .amdhsa_user_sgpr_kernarg_segment_ptr 1')
        out.append('  .amdhsa_system_sgpr_workgroup_id_x 1')
        out.append('.end_amdhsa_kernel')
    open(os.environ.get('OUT', 'interleave_layers__sliding_block__glu_gated_glu__prompt.s'), 'w').write('\n'.join(out) + '\n')
    for k in kernels:
        print(k[0], 'grid', k[1], 'lds', k[3], 'vgpr', k[4])


if __name__ == '__main__':
    build()
```

```python
import sys, math
sys.path.insert(0, 'gen')
from asmlib import Asm

S, D, H, DH, F = 2048, 640, 32, 20, 1536
WQKV = 0x0
WO_ = 0x260000
WGU = 0x330000
WD_ = 0x6F0000
CSQ = 0x8D0000
CSG = 0x8D2000
XF = [0x900000, 0xC00000, 0xF00000, 0x1200000]
ST = [0x1500000 + i * 0x20000 for i in range(4)]
QM = 0x1600000
KM = 0x1800000
QT = 0x1A00000
KT_ = 0x1A80000
VT = 0x1B00000
OF = 0x1F00000
HF = 0x2200000
WS_SIZE = 0x10000000

LOG2E = 1.4426950408889634


def f32hex(x):
    import struct
    return '0x%08x' % struct.unpack('<I', struct.pack('<f', x))[0]


kernels = []
import os
STAMP = os.environ.get('STAMP', '')
stamp_n = [0]


def stamp(a, name):
    if STAMP != name:
        return
    i = stamp_n[0]
    stamp_n[0] += 1
    a(f's_memtime s[{80+2*i}:{81+2*i}]')
    a('s_waitcnt lgkmcnt(0)')


def stamp_out(a, name):
    if STAMP != name:
        return
    n = stamp_n[0]
    L = a.newlabel('so')
    a('s_mov_b64 exec, -1')
    a(f's_cmp_lg_u32 s2, {os.environ.get("STAMP_WG", "0")}')
    a.branch(f's_cbranch_scc1 {L}')
    a('s_load_dwordx2 s[76:77], s[0:1], 64')
    a('s_waitcnt lgkmcnt(0)')
    a('s_and_b32 s77, s77, 0xffff')
    a('s_mov_b32 s78, 256')
    a('s_mov_b32 s79, 0x00020000')
    a('v_lshrrev_b32 v0, 6, v0')
    a('v_lshlrev_b32 v0, 6, v0')
    for i in range(n):
        a(f'v_mov_b32 v1, s{80+2*i}')
        a(f'buffer_store_dword v1, v0, s[76:79], 0 offen offset:{4*i}')
    a.label(L)
    stamp_n[0] = 0


def begin(a, name):
    a.raw('.text')
    a.raw(f'.globl {name}')
    a.raw('.p2align 8')
    a.raw(f'.type {name},@function')
    a.raw(f'{name}:')


def ws_srd(a, sreg=4, slot=72, size=WS_SIZE):
    a(f's_load_dwordx2 s[{sreg}:{sreg+1}], s[0:1], {slot}')


def fin_srd(a, sreg, size):
    a(f's_and_b32 s{sreg+1}, s{sreg+1}, 0xffff')
    a(f's_mov_b32 s{sreg+2}, {size}')
    a(f's_mov_b32 s{sreg+3}, 0x00020000')


def R4(i):
    return f'v[{i}:{i+3}]' if i < 256 else f'a[{i-256}:{i-253}]'


def bf16r(a, v):
    a(f'v_cvt_pk_bf16_f32 v{v}, v{v}, v{v}')
    a(f'v_lshlrev_b32 v{v}, 16, v{v}')


class G:
    pass


NL = 2


def gemm_core(a, g, swap):
    KS = g.K // 64
    NS = g.NS
    SB = g.nitems * 1024

    def lds_read(dst, vbase, off, tag):
        hi = off >> 16
        a(f'ds_read_b128 {R4(dst)}, v{vbase + hi} offset:{off & 0xffff}', tag=tag)

    def read_list(st, kt):
        sl = st % NS
        L = []
        for i in range(g.mtw):
            L.append(lambda i=i: lds_read(g.fa(kt, i), g.v_a, sl * SB + (i * 2 + kt) * 1024, ('rd', st, kt)))
        for b in range(g.ntw):
            L.append(lambda b=b: lds_read(g.fb(kt, b), g.v_b, sl * SB + (g.MT * 2 + b * 2 + kt) * 1024, ('rd', st, kt)))
        return L

    def mfmas(st, kt, R):
        nm = g.mtw * g.ntw
        nr = len(R)
        span = max(1, int(nm * 0.6))
        cnt = 0
        si = 0
        for i in range(g.mtw):
            for b in range(g.ntw):
                acc = g.acc(i, b)
                A = g.fa(kt, i)
                B = g.fb(kt, b)
                c = '0' if (st == 0 and kt == 0) else f'v[{acc}:{acc+3}]'
                if swap:
                    a(f'v_mfma_f32_16x16x32_bf16 v[{acc}:{acc+3}], {R4(A)}, {R4(B)}, {c}')
                else:
                    a(f'v_mfma_f32_16x16x32_bf16 v[{acc}:{acc+3}], {R4(B)}, {R4(A)}, {c}')
                cnt += 1
                while si < nr and (si * span) / nr < cnt:
                    R[si]()
                    si += 1
        while si < nr:
            R[si]()
            si += 1

    stamp(a, g.name)
    if g.mid_prologue:
        g.mid_prologue()
    a.wait(lg_all=True)
    a('s_barrier')
    stamp(a, g.name)
    for f in read_list(0, 0):
        f()
    for st in range(KS):
        a.wait(lg=('rd', st, 0))
        mfmas(st, 0, read_list(st, 1))
        a.wait(lg_all=True)
        if st + 1 < KS:
            a('s_barrier')
            if st + 1 in (1, 4, KS - 1):
                stamp(a, g.name)
        mfmas(st, 1, read_list(st + 1, 0) if st + 1 < KS else [])
    stamp(a, g.name)


def loader_path(a, g):
    KS = g.K // 64
    NS = g.NS
    SB = g.nitems * 1024
    KT = g.K // 32
    npairs = g.MT + g.NT
    per = (npairs + NL - 1) // NL
    a('s_sub_u32 s12, s12, 4')
    for j in range(per):
        a(f's_add_u32 s18, s12, {NL * j}')
        if NL * j + NL - 1 >= npairs:
            a(f's_min_u32 s18, s18, {npairs - 1}')
        a(f's_lshl_b32 s{g.s_l + j}, s18, 11')
        a(f's_mul_i32 s20, s13, {g.MT}')
        a('s_add_u32 s20, s20, s18')
        a(f's_mul_i32 s20, s20, {KT * 1024}')
        a(f's_add_u32 s20, s20, {g.a_base}')
        a(f's_mul_i32 s21, s14, {g.NT}')
        a('s_add_u32 s21, s21, s18')
        a(f's_sub_u32 s21, s21, {g.MT}')
        a(f's_mul_i32 s21, s21, {KT * 1024}')
        a(f's_add_u32 s21, s21, {g.b_base}')
        a(f's_cmp_lt_u32 s18, {g.MT}')
        a(f's_cselect_b32 s{g.s_g + j}, s20, s21')

    def dma(st):
        sl = st % NS
        for j in range(per):
            a(f's_add_u32 m0, s{g.s_l + j}, {sl * SB}')
            t = g.s_tmp + (j & 1)
            a(f's_add_u32 s{t}, s{g.s_g + j}, {st * 2048}')
            a(f'buffer_load_dwordx4 v{g.v_l16}, s[4:7], s{t} offen lds', tag=('dma', st))
            a(f'buffer_load_dwordx4 v{g.v_l16}, s[4:7], s{t} offen offset:1024 lds', tag=('dma', st))

    for st in range(min(NS, KS)):
        dma(st)
    for st in range(KS):
        a.wait(vm=('dma', st))
        a('s_barrier')
        if st >= 1 and st + NS - 1 < KS:
            dma(st + NS - 1)
    a('s_endpgm')


def gemm_setup(a, g, name, MB, NB, need_out=False):
    NWG = MB * NB
    g.name = name
    begin(a, name)
    a(f's_cmp_ge_u32 s2, {NWG}')
    a.branch(f's_cbranch_scc1 {name}_end')
    ws_srd(a, 4)
    if need_out:
        a('s_load_dwordx2 s[8:9], s[0:1], 56')
    a('v_lshrrev_b32 v2, 6, v0')
    a('v_readfirstlane_b32 s12, v2')
    a('v_and_b32 v1, 63, v0')
    a(f'v_lshlrev_b32 v{g.v_l16}, 4, v1')
    BA = g.band
    nbands = MB // BA
    XPB = 8 // nbands
    per = MB * NB // 8
    a('s_and_b32 s17, s2, 7')
    a('s_lshr_b32 s18, s2, 3')
    a(f's_and_b32 s19, s17, {XPB - 1}')
    a(f's_lshr_b32 s17, s17, {int(math.log2(XPB))}')
    a(f's_mul_i32 s19, s19, {per}')
    a('s_add_u32 s18, s18, s19')
    a(f's_and_b32 s13, s18, {BA - 1}')
    a(f's_lshl_b32 s17, s17, {int(math.log2(BA))}')
    a('s_add_u32 s13, s13, s17')
    a(f's_lshr_b32 s14, s18, {int(math.log2(BA))}')
    a('s_waitcnt lgkmcnt(0)')
    fin_srd(a, 4, WS_SIZE)
    a('s_cmp_lt_u32 s12, 4')
    a.branch(f's_cbranch_scc1 {name}_comp')
    loader_path(a, g)
    a.label(f'{name}_comp')
    a.vmq = []
    if need_out:
        fin_srd(a, 8, S * D * 2)
    if g.WN == 1:
        a('s_mov_b32 s15, s12')
        a('s_mov_b32 s16, 0')
    elif g.WM == 1:
        a('s_mov_b32 s15, 0')
        a('s_mov_b32 s16, s12')
    else:
        a('s_lshr_b32 s15, s12, 1')
        a('s_and_b32 s16, s12, 1')
    a(f's_mul_i32 s17, s15, {g.mtw * 2048}')
    a(f's_mul_i32 s18, s16, {g.ntw * 2048}')
    for h in range(3):
        a(f'v_add_u32 v{g.v_a + h}, s17, v{g.v_l16}')
        a(f'v_add_u32 v{g.v_b + h}, s18, v{g.v_l16}')
        if h:
            a(f'v_add_u32 v{g.v_a + h}, {h << 16}, v{g.v_a + h}')
            a(f'v_add_u32 v{g.v_b + h}, {h << 16}, v{g.v_b + h}')


def alloc(g, extra_base):
    g.v_l16 = 3
    g.v_a = 4
    g.v_b = 7
    g.mtw = g.MT // g.WM
    g.ntw = g.NT // g.WN
    g.nitems = 2 * (g.MT + g.NT)
    g.s_g = 24
    g.s_l = 56
    g.s_tmp = 22
    nacc = g.mtw * g.ntw * 4
    g.acc0 = extra_base
    g.acc = lambda i, b: g.acc0 + (i * g.ntw + b) * 4
    g.f0 = g.acc0 + nacc
    setsz = (g.mtw + g.ntw) * 4
    g.fa = lambda p, i: g.f0 + p * setsz + i * 4
    g.fb = lambda p, b: g.f0 + p * setsz + (g.mtw + b) * 4
    g.vend = g.f0 + 2 * setsz
    g.mid_prologue = None


def ln_stats_issue(a, g, st_base, vt):
    a(f'v_and_b32 v2, 127, v0')
    a(f'v_lshlrev_b32 v2, 6, v2')
    a(f's_lshl_b32 s17, s13, 13')
    a(f's_add_u32 s17, s17, {st_base}')
    for i in range(4):
        a(f'buffer_load_dwordx4 v[{vt+4*i}:{vt+4*i+3}], v2, s[4:7], s17 offen offset:{16*i}', tag='stats')


def ln_stats_finish(a, g, vt, lds_off):
    a.wait(vm='stats')
    for i in range(1, 8):
        a(f'v_add_f32 v{vt}, v{vt}, v{vt+2*i}')
        a(f'v_add_f32 v{vt+1}, v{vt+1}, v{vt+2*i+1}')
    inv = f32hex(1.0 / D)
    a(f'v_mul_f32 v{vt}, {inv}, v{vt}')
    a(f'v_mul_f32 v{vt+1}, {inv}, v{vt+1}')
    a(f'v_fma_f32 v{vt+1}, -v{vt}, v{vt}, v{vt+1}')
    a(f'v_max_f32 v{vt+1}, 0, v{vt+1}')
    bf16r(a, vt)
    bf16r(a, vt + 1)
    a(f'v_add_f32 v{vt+1}, {f32hex(1e-5)}, v{vt+1}')
    bf16r(a, vt + 1)
    a(f'v_sqrt_f32 v{vt+1}, v{vt+1}')
    bf16r(a, vt + 1)
    a(f'v_rcp_f32 v{vt+1}, v{vt+1}')
    a(f'v_and_b32 v{vt+2}, 127, v0')
    a(f'v_lshlrev_b32 v{vt+2}, 3, v{vt+2}')
    a(f'v_add_u32 v{vt+2}, {lds_off}, v{vt+2}')
    a(f'ds_write_b64 v{vt+2}, v[{vt}:{vt+1}]')


def gen_qkv(name, x_base, st_base):
    a = Asm()
    g = G()
    g.MT, g.NT, g.WM, g.WN, g.K, g.NS = 8, 8, 2, 2, 640, 4
    g.a_base, g.b_base = x_base, WQKV
    g.band = 4
    g.pro = 3
    MISC = 10
    alloc(g, 48)
    STL = g.NS * g.nitems * 1024
    lds = STL + 1024
    MB, NB = 16, 15
    gemm_setup(a, g, name, MB, NB)
    VT_, VCS = 10, 26
    ln_stats_issue(a, g, st_base, VT_)
    a('v_lshrrev_b32 v2, 4, v1')
    a(f's_cmp_ge_u32 s14, 10')
    a.branch(f's_cbranch_scc1 {name}_v')
    a('v_lshlrev_b32 v42, 4, v2')
    a('s_lshl_b32 s17, s14, 9')
    a('s_lshl_b32 s18, s16, 8')
    a('s_add_u32 s17, s17, s18')
    a(f's_add_u32 s17, s17, {CSQ}')
    for b in range(4):
        a(f'buffer_load_dwordx4 v[{VCS+4*b}:{VCS+4*b+3}], v42, s[4:7], s17 offen offset:{64*b}', tag='cs')
    g.mid_prologue = lambda: ln_stats_finish(a, g, VT_, STL)
    gemm_core(a, g, swap=False)
    a.wait(vm='cs')
    a('v_and_b32 v43, 15, v1')
    a('v_lshlrev_b32 v44, 3, v43')
    a('s_lshl_b32 s17, s15, 9')
    a(f's_add_u32 s17, s17, {STL}')
    a('v_add_u32 v44, s17, v44')
    for i in range(4):
        a(f'ds_read_b64 v[{VT_+2*i}:{VT_+2*i+1}], v44 offset:{i*128}', tag='tst')
    a.wait(lg_all=True)
    for i in range(4):
        for b in range(4):
            acc = g.acc(i, b)
            for r in range(4):
                a(f'v_fma_f32 v{acc+r}, -v{VT_+2*i}, v{VCS+4*b+r}, v{acc+r}')
                a(f'v_mul_f32 v{acc+r}, v{VT_+2*i+1}, v{acc+r}')
    a('s_cmp_ge_u32 s14, 5')
    a('s_cselect_b32 s17, 1, 0')
    a('s_mul_i32 s18, s17, 5')
    a('s_sub_u32 s18, s14, s18')
    a('s_lshl_b32 s19, s13, 7')
    a('s_lshl_b32 s20, s15, 6')
    a('s_add_u32 s19, s19, s20')
    a('s_cmp_eq_u32 s18, 4')
    a.branch(f's_cbranch_scc1 {name}_tail')
    a('v_lshrrev_b32 v44, 1, v2')
    a('v_lshlrev_b32 v44, 16, v44')
    a('v_lshlrev_b32 v45, 5, v43')
    a('v_add_u32 v44, v44, v45')
    a('v_and_b32 v45, 1, v2')
    a('v_lshlrev_b32 v45, 4, v45')
    a('v_add_u32 v44, v44, v45')
    a('s_lshl_b32 s20, s17, 21')
    a(f's_add_u32 s20, s20, {QM}')
    a('s_lshl_b32 s21, s18, 19')
    a('s_add_u32 s20, s20, s21')
    a('s_lshl_b32 s21, s16, 18')
    a('s_add_u32 s20, s20, s21')
    a('s_lshl_b32 s21, s19, 5')
    a('s_add_u32 s20, s20, s21')
    a(f's_add_u32 s21, s20, {2*65536}')
    for i in range(4):
        for bp in range(2):
            a0, a1 = g.acc(i, 2 * bp), g.acc(i, 2 * bp + 1)
            t = VT_ + 8 + ((i * 2 + bp) & 1) * 4
            a(f'v_cvt_pk_bf16_f32 v{t}, v{a0}, v{a0+1}')
            a(f'v_cvt_pk_bf16_f32 v{t+1}, v{a0+2}, v{a0+3}')
            a(f'v_cvt_pk_bf16_f32 v{t+2}, v{a1}, v{a1+1}')
            a(f'v_cvt_pk_bf16_f32 v{t+3}, v{a1+2}, v{a1+3}')
            a(f'buffer_store_dwordx4 v[{t}:{t+3}], v44, s[4:7], s{20+bp} offen offset:{i*512}')
    if STAMP == name:
        a.wait(vm_all=True)
        stamp(a, name)
        stamp_out(a, name)
    a('s_endpgm')
    a.label(f'{name}_tail')
    a('v_lshlrev_b32 v44, 15, v2')
    a('v_lshlrev_b32 v45, 3, v43')
    a('v_add_u32 v44, v44, v45')
    a('s_lshl_b32 s20, s17, 19')
    a(f's_add_u32 s20, s20, {QT}')
    a('s_lshl_b32 s21, s16, 18')
    a('s_add_u32 s20, s20, s21')
    a('s_lshl_b32 s21, s19, 3')
    a('s_add_u32 s20, s20, s21')
    for bp in range(2):
        for t in range(2):
            a(f's_add_u32 s{40+bp*2+t}, s20, {(bp*8 + t) * 16384}')
    for i in range(4):
        for b in range(4):
            a0 = g.acc(i, b)
            t = VT_ + 8 + ((i * 4 + b) & 3) * 2
            a(f'v_cvt_pk_bf16_f32 v{t}, v{a0}, v{a0+1}')
            a(f'v_cvt_pk_bf16_f32 v{t+1}, v{a0+2}, v{a0+3}')
            a(f'buffer_store_dwordx2 v[{t}:{t+1}], v44, s[4:7], s{40+b} offen offset:{i*128}')
    a('s_endpgm')
    a.label(f'{name}_v')
    a.vmq = ['stats'] * 4
    a('v_and_b32 v43, 15, v1')
    a('v_lshlrev_b32 v42, 2, v43')
    a('s_lshl_b32 s17, s14, 9')
    a('s_lshl_b32 s18, s16, 8')
    a('s_add_u32 s17, s17, s18')
    a(f's_add_u32 s17, s17, {CSQ}')
    for b in range(4):
        a(f'buffer_load_dword v{VCS+b}, v42, s[4:7], s17 offen offset:{64*b}', tag='cs')
    g.mid_prologue = lambda: ln_stats_finish(a, g, VT_, STL)
    gemm_core(a, g, swap=True)
    a.wait(vm='cs')
    a('s_sub_u32 s17, s14, 10')
    a('s_lshl_b32 s17, s17, 7')
    a('s_lshl_b32 s18, s16, 6')
    a('s_add_u32 s17, s17, s18')
    a('v_add_u32 v44, s17, v43')
    a('v_and_b32 v45, 1, v2')
    a('v_lshlrev_b32 v45, 4, v45')
    a('v_lshrrev_b32 v46, 1, v2')
    a('v_lshlrev_b32 v46, 3, v46')
    a('v_add_u32 v45, v45, v46')
    a('s_mov_b32 s18, 3277')
    for b in range(4):
        vo = VCS + 4 + b
        a(f'v_add_u32 v46, {16*b}, v44')
        a('v_mul_lo_u32 v47, v46, s18')
        a('v_lshrrev_b32 v47, 16, v47')
        a(f'v_mul_u32_u24 v{vo}, 20, v47')
        a(f'v_sub_u32 v{vo}, v46, v{vo}')
        a(f'v_lshlrev_b32 v{vo}, 5, v{vo}')
        a('v_lshlrev_b32 v47, 17, v47')
        a(f'v_add_u32 v{vo}, v{vo}, v47')
        a(f'v_add_u32 v{vo}, v{vo}, v45')
    a('s_lshl_b32 s20, s13, 13')
    a('s_lshl_b32 s21, s15, 12')
    a('s_add_u32 s20, s20, s21')
    a(f's_add_u32 s20, s20, {VT}')
    a('v_lshlrev_b32 v44, 5, v2')
    a('s_lshl_b32 s17, s15, 9')
    a(f's_add_u32 s17, s17, {STL}')
    a('v_add_u32 v44, s17, v44')
    for i in range(4):
        a(f'ds_read_b128 v[{VT_}:{VT_+3}], v44 offset:{i*128}', tag='tst')
        a(f'ds_read_b128 v[{VT_+4}:{VT_+7}], v44 offset:{i*128+16}', tag='tst')
        a.wait(lg_all=True)
        for b in range(4):
            acc = g.acc(i, b)
            for r in range(4):
                a(f'v_fma_f32 v{acc+r}, -v{VT_+2*r}, v{VCS+b}, v{acc+r}')
                a(f'v_mul_f32 v{acc+r}, v{VT_+2*r+1}, v{acc+r}')
            t = VT_ + 8 + (b & 3) * 2
            a(f'v_cvt_pk_bf16_f32 v{t}, v{acc}, v{acc+1}')
            a(f'v_cvt_pk_bf16_f32 v{t+1}, v{acc+2}, v{acc+3}')
            a(f'buffer_store_dwordx2 v[{t}:{t+1}], v{VCS+4+b}, s[4:7], s20 offen offset:{i*1024}')
    a.label(f'{name}_end')
    a('s_endpgm')
    kernels.append((name, MB * NB, 256 + 64 * NL, lds, g.vend, 100, a.text()))


def gen_res(name, K, a_base, b_base, xin, xout, st_out, final=False):
    a = Asm()
    g = G()
    g.MT, g.NT, g.WM, g.WN, g.K, g.NS = 4, 5, 4, 1, K, 8
    g.a_base, g.b_base = a_base, b_base
    g.band = 8
    g.pro = 5
    alloc(g, 32)
    lds = g.NS * g.nitems * 1024
    MB, NB = 32, 8
    gemm_setup(a, g, name, MB, NB, need_out=final)
    VR = 10
    a('s_lshl_b32 s17, s13, 2')
    a('s_add_u32 s17, s17, s15')
    a('s_mul_i32 s18, s14, 5')
    for b in range(5):
        a(f's_add_u32 s19, s18, {b}')
        a('s_lshr_b32 s20, s19, 1')
        a('s_and_b32 s21, s19, 1')
        a('s_lshl_b32 s21, s21, 3')
        a('s_mul_i32 s22, s17, 20')
        a('s_add_u32 s22, s22, s20')
        a('s_lshl_b32 s22, s22, 10')
        a(f's_add_u32 s{40+b}, s22, s21')
        if final:
            a(f's_mul_i32 s22, s17, {16*1280}')
            a('s_lshl_b32 s20, s20, 6')
            a('s_add_u32 s22, s22, s20')
            a(f's_add_u32 s{46+b}, s22, s21')
        a(f's_add_u32 s22, s{40+b}, {xin}')
        a(f'buffer_load_dwordx2 v[{VR+2*b}:{VR+2*b+1}], v{g.v_l16}, s[4:7], s22 offen', tag='res')
    gemm_core(a, g, swap=False)
    a.wait(vm='res')
    VS = 20
    a(f'v_mov_b32 v{VS}, 0')
    a(f'v_mov_b32 v{VS+1}, 0')
    if final:
        a('v_and_b32 v24, 15, v1')
        a('v_mul_u32_u24 v24, 1280, v24')
        a('v_lshrrev_b32 v25, 4, v1')
        a('v_lshlrev_b32 v25, 4, v25')
        a('v_add_u32 v24, v24, v25')
    for b in range(5):
        acc = g.acc(0, b)
        a(f'v_cvt_pk_bf16_f32 v{acc}, v{acc}, v{acc+1}')
        a(f'v_cvt_pk_bf16_f32 v{acc+2}, v{acc+2}, v{acc+3}')
        a(f'v_and_b32 v{acc+1}, 0xffff0000, v{acc}')
        a(f'v_lshlrev_b32 v{acc}, 16, v{acc}')
        a(f'v_and_b32 v{acc+3}, 0xffff0000, v{acc+2}')
        a(f'v_lshlrev_b32 v{acc+2}, 16, v{acc+2}')
        r0, r1 = VR + 2 * b, VR + 2 * b + 1
        a(f'v_lshlrev_b32 v22, 16, v{r0}')
        a(f'v_and_b32 v23, 0xffff0000, v{r0}')
        a(f'v_add_f32 v{acc}, v{acc}, v22')
        a(f'v_add_f32 v{acc+1}, v{acc+1}, v23')
        a(f'v_lshlrev_b32 v22, 16, v{r1}')
        a(f'v_and_b32 v23, 0xffff0000, v{r1}')
        a(f'v_add_f32 v{acc+2}, v{acc+2}, v22')
        a(f'v_add_f32 v{acc+3}, v{acc+3}, v23')
        a(f'v_cvt_pk_bf16_f32 v{r0}, v{acc}, v{acc+1}')
        a(f'v_cvt_pk_bf16_f32 v{r1}, v{acc+2}, v{acc+3}')
        if final:
            a(f'buffer_store_dwordx2 v[{r0}:{r1}], v24, s[8:11], s{46+b} offen')
        else:
            a(f's_add_u32 s22, s{40+b}, {xout}')
            a(f'buffer_store_dwordx2 v[{r0}:{r1}], v{g.v_l16}, s[4:7], s22 offen')
            for r in (r0, r1):
                a(f'v_lshlrev_b32 v22, 16, v{r}')
                a(f'v_and_b32 v23, 0xffff0000, v{r}')
                a(f'v_add_f32 v{VS}, v{VS}, v22')
                a(f'v_fma_f32 v{VS+1}, v22, v22, v{VS+1}')
                a(f'v_add_f32 v{VS}, v{VS}, v23')
                a(f'v_fma_f32 v{VS+1}, v23, v23, v{VS+1}')
    if not final:
        for sw in ('v_permlane16_swap_b32', 'v_permlane32_swap_b32'):
            for r in (VS, VS + 1):
                a(f'v_mov_b32 v22, v{r}')
                a(f'{sw} v22, v{r}')
                a(f'v_add_f32 v{r}, v{r}, v22')
        a('v_lshlrev_b32 v22, 6, v1')
        a('s_lshl_b32 s22, s17, 10')
        a('s_lshl_b32 s23, s14, 3')
        a('s_add_u32 s22, s22, s23')
        a(f's_add_u32 s22, s22, {st_out}')
        a('s_mov_b64 exec, 0xffff')
        a(f'buffer_store_dwordx2 v[{VS}:{VS+1}], v22, s[4:7], s22 offen')
    if STAMP == name:
        a.wait(vm_all=True)
        stamp(a, name)
        stamp_out(a, name)
    a.label(f'{name}_end')
    a('s_endpgm')
    kernels.append((name, MB * NB, 256 + 64 * NL, lds, g.vend, 100, a.text()))


def gen_gu(name, x_base, st_base):
    a = Asm()
    g = G()
    g.MT, g.NT, g.WM, g.WN, g.K, g.NS = 8, 12, 4, 1, 640, 3
    g.a_base, g.b_base = x_base, WGU
    g.band = 8
    g.pro = 2
    alloc(g, 32)
    STL = g.NS * g.nitems * 1024
    CSL = STL + 1024
    lds = STL + 2048
    MB, NB = 16, 16
    gemm_setup(a, g, name, MB, NB)
    VT_, VCS = 10, g.f0
    ln_stats_issue(a, g, st_base, VT_)
    a('v_lshlrev_b32 v26, 2, v0')
    a(f's_mul_i32 s17, s14, {12*64}')
    a(f's_add_u32 s17, s17, {CSG}')
    a('buffer_load_dword v27, v26, s[4:7], s17 offen', tag='cs')

    def mp():
        ln_stats_finish(a, g, VT_, STL)
        a.wait(vm='cs')
        a(f'v_add_u32 v26, {CSL}, v26')
        a('ds_write_b32 v26, v27')
    g.mid_prologue = mp
    gemm_core(a, g, swap=False)
    a('v_lshrrev_b32 v2, 4, v1')
    a('v_lshlrev_b32 v26, 4, v2')
    a(f'v_add_u32 v26, {CSL}, v26')
    for b in range(12):
        a(f'ds_read_b128 v[{VCS+4*b}:{VCS+4*b+3}], v26 offset:{64*b}', tag='tst')
    a('v_and_b32 v27, 15, v1')
    a('v_lshlrev_b32 v27, 3, v27')
    a('s_lshl_b32 s17, s15, 8')
    a(f's_add_u32 s17, s17, {STL}')
    a('v_add_u32 v27, s17, v27')
    for i in range(2):
        a(f'ds_read_b64 v[{VT_+2*i}:{VT_+2*i+1}], v27 offset:{i*128}', tag='tst')
    a.wait(lg_all=True)
    for i in range(2):
        a(f'v_mul_f32 v{VT_+4+i}, {f32hex(-LOG2E)}, v{VT_+2*i+1}')
    a('s_lshl_b32 s17, s13, 3')
    a('s_lshl_b32 s18, s15, 1')
    a('s_add_u32 s17, s17, s18')
    a('s_mul_i32 s17, s17, 48')
    a('s_mul_i32 s18, s14, 3')
    a('s_add_u32 s17, s17, s18')
    a('s_lshl_b32 s17, s17, 10')
    a(f's_add_u32 s17, s17, {HF}')
    a(f's_add_u32 s18, s17, {48*1024}')
    for i in range(2):
        for fg in range(3):
            t = VT_ + 8 + ((i * 3 + fg) & 1) * 4
            for tt in range(2):
                ag, au = g.acc(i, fg * 4 + tt), g.acc(i, fg * 4 + 2 + tt)
                cg, cu = VCS + 4 * (fg * 4 + tt), VCS + 4 * (fg * 4 + 2 + tt)
                for r in range(4):
                    a(f'v_fma_f32 v{ag+r}, -v{VT_+2*i}, v{cg+r}, v{ag+r}')
                    a(f'v_mul_f32 v{ag+r}, v{VT_+4+i}, v{ag+r}')
                    a(f'v_exp_f32 v{ag+r}, v{ag+r}')
                    a(f'v_fma_f32 v{au+r}, -v{VT_+2*i}, v{cu+r}, v{au+r}')
                    a(f'v_mul_f32 v{au+r}, v{VT_+2*i+1}, v{au+r}')
                    a(f'v_add_f32 v{ag+r}, 1.0, v{ag+r}')
                    a(f'v_rcp_f32 v{ag+r}, v{ag+r}')
                for r in range(4):
                    a(f'v_mul_f32 v{au+r}, v{au+r}, v{ag+r}')
                a(f'v_cvt_pk_bf16_f32 v{t+2*tt}, v{au}, v{au+1}')
                a(f'v_cvt_pk_bf16_f32 v{t+2*tt+1}, v{au+2}, v{au+3}')
            a(f'buffer_store_dwordx4 v[{t}:{t+3}], v{g.v_l16}, s[4:7], s{17+i} offen offset:{fg*1024}')
    if STAMP == name:
        a.wait(vm_all=True)
        stamp(a, name)
        stamp_out(a, name)
    a.label(f'{name}_end')
    a('s_endpgm')
    kernels.append((name, MB * NB, 256 + 64 * NL, lds, g.vend, 100, a.text()))


def gen_attn(name):
    a = Asm()
    NWG = 512
    begin(a, name)
    a(f's_cmp_ge_u32 s2, {NWG}')
    a.branch(f's_cbranch_scc1 {name}_end')
    ws_srd(a, 4)
    SB = 16
    OB = 160
    KV = 176
    QB = 248
    L_KM, L_KT, L_V = 0, 12 * 1024, 15 * 1024
    lds = L_V + 24 * 1024
    a('v_lshrrev_b32 v2, 6, v0')
    a('v_readfirstlane_b32 s12, v2')
    a('v_and_b32 v1, 63, v0')
    a('v_and_b32 v3, 31, v1')
    a('v_lshrrev_b32 v4, 5, v1')
    a('v_lshlrev_b32 v5, 5, v3')
    a('v_lshlrev_b32 v6, 4, v4')
    a('v_add_u32 v5, v5, v6')
    a('v_lshlrev_b32 v7, 3, v3')
    a('v_min_u32 v8, 20, v3')
    a('v_lshlrev_b32 v8, 5, v8')
    a('v_add_u32 v8, v8, v6')
    a('v_lshlrev_b32 v15, 4, v1')
    a('s_and_b32 s13, s2, 7')
    a('s_lshl_b32 s13, s13, 2')
    a('s_lshr_b32 s14, s2, 7')
    a('s_add_u32 s13, s13, s14')
    a('s_lshr_b32 s14, s2, 3')
    a('s_and_b32 s14, s14, 15')
    a('s_lshl_b32 s23, s14, 7')
    a('s_lshl_b32 s15, s12, 5')
    a('s_add_u32 s15, s15, s23')
    a('s_lshl_b32 s16, s13, 11')
    a('s_waitcnt lgkmcnt(0)')
    fin_srd(a, 4, WS_SIZE)
    stamp(a, name)
    for i in range(3):
        a(f's_add_i32 s19, s15, {-256 + 128*i}')
        a('s_max_i32 s19, s19, 0')
        a('s_add_u32 s19, s19, s16')
        a('s_lshl_b32 s20, s19, 5')
        a(f's_add_u32 s20, s20, {KM}')
        a(f's_lshl_b32 s21, s12, 10')
        a(f's_add_u32 m0, s21, {L_KM + 4096*i}')
        a('buffer_load_dwordx4 v5, s[4:7], s20 offen lds', tag='k')
    a('s_min_u32 s21, s12, 2')
    a('s_lshl_b32 s19, s21, 7')
    a('s_add_u32 s19, s19, s23')
    a('s_add_i32 s19, s19, -256')
    a('s_max_i32 s19, s19, 0')
    a('s_add_u32 s19, s19, s16')
    a('s_lshl_b32 s20, s19, 3')
    a(f's_add_u32 s20, s20, {KT_}')
    a('s_lshl_b32 s21, s21, 10')
    a(f's_add_u32 m0, s21, {L_KT}')
    a('buffer_load_dwordx4 v15, s[4:7], s20 offen lds', tag='k')
    a('s_add_u32 s17, s16, s15')
    a('s_lshl_b32 s18, s17, 5')
    a(f's_add_u32 s18, s18, {QM}')
    a(f'buffer_load_dwordx4 v[{QB}:{QB+3}], v5, s[4:7], s18 offen', tag='q')
    a('s_lshl_b32 s18, s17, 3')
    a(f's_add_u32 s18, s18, {QT}')
    a(f'buffer_load_dwordx2 v[{QB+4}:{QB+5}], v7, s[4:7], s18 offen', tag='q')
    a('s_lshl_b32 s24, s13, 17')
    a(f's_add_u32 s24, s24, {VT}')
    a('s_lshl_b32 s25, s12, 4')
    a('s_add_u32 s25, s25, s23')
    for i in range(6):
        a(f's_add_i32 s19, s25, {-256 + 64*i}')
        a('s_max_i32 s19, s19, 0')
        a('s_lshl_b32 s19, s19, 6')
        a('s_add_u32 s19, s19, s24')
        a(f's_lshl_b32 s21, s12, 10')
        a(f's_add_u32 m0, s21, {L_V + 4096*i}')
        a('buffer_load_dwordx4 v8, s[4:7], s19 offen lds', tag='v')
    NEG = '0xff7fffff'
    a('v_lshlrev_b32 v9, 2, v4')
    a('v_sub_u32 v9, v3, v9')
    a(f'v_mov_b32 v10, {NEG}')
    for r in range(16):
        c = 8 * (r >> 2) + (r & 3)
        a(f'v_cmp_le_i32 vcc, {c}, v9')
        a(f'v_cndmask_b32_e64 v{SB+8*16+r}, v10, 0, vcc')
        a(f'v_cndmask_b32_e64 v{SB+r}, 0, v10, vcc')
    a('s_lshl_b32 s21, s12, 10')
    a('v_add_u32 v13, s21, v15')
    a('s_lshl_b32 s21, s12, 8')
    a('v_add_u32 v14, s21, v7')
    a('s_lshl_b32 s21, s12, 11')
    a('v_add_u32 v2, s21, v15')
    a.wait(vm='q')
    a('s_barrier')
    stamp(a, name)
    for t in range(9):
        a(f'ds_read_b128 v[{KV+8*t}:{KV+8*t+3}], v13 offset:{L_KM + 1024*t}', tag=('k', t))
        a(f'ds_read_b64 v[{KV+8*t+4}:{KV+8*t+5}], v14 offset:{L_KT + 256*t}', tag=('k', t))
        if t == 6:
            break
    a('v_cmp_eq_u32 vcc, 0, v4')
    a(f'v_cndmask_b32_e64 v{QB+4}, 0, v{QB+4}, vcc')
    a(f'v_cndmask_b32_e64 v{QB+5}, 0, v{QB+5}, vcc')
    for t in range(9):
        a.wait(lg=('k', t))
        s0 = SB + 16 * t
        c = f'v[{s0}:{s0+15}]' if t in (0, 8) else '0'
        a(f'v_mfma_f32_32x32x16_bf16 v[{s0}:{s0+15}], v[{KV+8*t}:{KV+8*t+3}], v[{QB}:{QB+3}], {c}')
        a(f'v_mfma_f32_32x32x8_bf16 v[{s0}:{s0+15}], v[{KV+8*t+4}:{KV+8*t+5}], v[{QB+4}:{QB+5}], v[{s0}:{s0+15}]')
        if t < 2:
            t2 = 7 + t
            a(f'ds_read_b128 v[{KV+8*t2}:{KV+8*t2+3}], v13 offset:{L_KM + 1024*t2}', tag=('k', t2))
            a(f'ds_read_b64 v[{KV+8*t2+4}:{KV+8*t2+5}], v14 offset:{L_KT + 256*t2}', tag=('k', t2))
    for t in range(8):
        L = a.newlabel('skip')
        a(f's_cmp_ge_i32 s15, {256 - 32*t}')
        a.branch(f's_cbranch_scc1 {L}')
        for r in range(16):
            a(f'v_mov_b32 v{SB+16*t+r}, v10')
        a.label(L)
    stamp(a, name)
    regs = [SB + i for i in range(144)]
    a(f'v_max3_f32 v11, v{regs[0]}, v{regs[1]}, v{regs[2]}')
    a(f'v_max3_f32 v12, v{regs[3]}, v{regs[4]}, v{regs[5]}')
    i = 6
    k = 0
    while i + 1 < 144:
        d = 11 + (k & 1)
        a(f'v_max3_f32 v{d}, v{d}, v{regs[i]}, v{regs[i+1]}')
        i += 2
        k += 1
    a('v_max_f32 v11, v11, v12')
    a('v_mov_b32 v12, v11')
    a('v_permlane32_swap_b32 v11, v12')
    a('v_max_f32 v11, v11, v12')
    cs = (DH ** -0.5) * LOG2E
    a(f's_mov_b32 s22, {f32hex(cs)}')
    a('v_mul_f32 v11, s22, v11')
    a.wait(vm_all=True)
    a('s_barrier')
    for t in range(9):
        s0 = SB + 16 * t
        for s in range(2):
            a(f'ds_read_b128 v[{KV+8*t+4*s}:{KV+8*t+4*s+3}], v2 offset:{L_V + 2048*t + 1024*s}', tag=('v', t))
        for r in range(16):
            a(f'v_fma_f32 v{s0+r}, v{s0+r}, s22, -v11')
        for r in range(16):
            a(f'v_exp_f32 v{s0+r}, v{s0+r}')
        for r in range(8):
            a(f'v_cvt_pk_bf16_f32 v{s0+r}, v{s0+2*r}, v{s0+2*r+1}')
        a.wait(lg=('v', t))
        for s in range(2):
            c = '0' if (t == 0 and s == 0) else f'v[{OB}:{OB+15}]'
            a(f'v_mfma_f32_32x32x16_bf16 v[{OB}:{OB+15}], v[{KV+8*t+4*s}:{KV+8*t+4*s+3}], v[{s0+4*s}:{s0+4*s+3}], {c}')
    stamp(a, name)
    a(f'v_mov_b32 v11, v{OB+8}')
    a(f'v_mov_b32 v12, v{OB+8}')
    a('v_permlane32_swap_b32 v11, v12')
    a('v_rcp_f32 v12, v12')
    for r in range(12):
        a(f'v_mul_f32 v{OB+r}, v{OB+r}, v12')
    for r in range(6):
        a(f'v_cvt_pk_bf16_f32 v{OB+r}, v{OB+2*r}, v{OB+2*r+1}')
    a('v_lshrrev_b32 v13, 4, v3')
    a(f'v_mul_u32_u24 v13, {20*1024}, v13')
    a('v_and_b32 v14, 15, v3')
    a('v_lshlrev_b32 v14, 4, v14')
    a('v_add_u32 v13, v13, v14')
    a('v_lshlrev_b32 v14, 8, v4')
    a('v_add_u32 v14, v14, v13')
    a('s_lshr_b32 s17, s15, 4')
    a(f's_mul_i32 s17, s17, {20*1024}')
    a(f's_add_u32 s17, s17, {OF}')
    a('s_lshr_b32 s18, s13, 1')
    a('s_lshl_b32 s18, s18, 10')
    a('s_and_b32 s19, s13, 1')
    a('s_lshl_b32 s20, s19, 9')
    a('s_add_u32 s18, s18, s20')
    a('s_add_u32 s18, s18, s17')
    a(f'buffer_store_dwordx4 v[{OB}:{OB+3}], v14, s[4:7], s18 offen')
    a('s_lshr_b32 s18, s13, 3')
    a('s_add_u32 s18, s18, 16')
    a('s_lshl_b32 s18, s18, 10')
    a('s_lshr_b32 s20, s13, 1')
    a('s_and_b32 s20, s20, 3')
    a('s_lshl_b32 s20, s20, 8')
    a('s_add_u32 s18, s18, s20')
    a('s_lshl_b32 s19, s19, 3')
    a('s_add_u32 s18, s18, s19')
    a('s_add_u32 s18, s18, s17')
    a('s_mov_b32 exec_hi, 0')
    a(f'buffer_store_dwordx2 v[{OB+4}:{OB+5}], v13, s[4:7], s18 offen')
    if STAMP == name:
        a.wait(vm_all=True)
        stamp(a, name)
        stamp_out(a, name)
    a.label(f'{name}_end')
    a('s_endpgm')
    kernels.append((name, NWG, 256, lds, 256, 100, a.text()))


def magic(d):
    return (2 ** 32 + d - 1) // d


def map_tile(a, kind, vn0, vT, vi0, t0, t1, t2):
    if kind in 'AGU':
        a(f'v_lshrrev_b32 v{t0}, 5, v{vn0}')
        a(f'v_bfe_u32 v{t1}, v{vn0}, 2, 1')
        a(f'v_bfe_u32 v{vi0}, v{vn0}, 3, 2')
        a(f'v_lshlrev_b32 v{vi0}, 2, v{vi0}')
        sh = 1 if kind == 'A' else 2
        a(f'v_lshlrev_b32 v{vT}, {sh}, v{t0}')
        a(f'v_add_u32 v{vT}, v{vT}, v{t1}')
        if kind == 'U':
            a(f'v_add_u32 v{vT}, 2, v{vT}')
    else:
        a(f's_mov_b32 s30, {magic(640)}')
        a(f'v_mul_hi_u32 v{t0}, v{vn0}, s30')
        a(f'v_mul_u32_u24 v{t1}, 640, v{t0}')
        a(f'v_sub_u32 v{t1}, v{vn0}, v{t1}')
        a('s_mov_b32 s30, 3277')
        a(f'v_mul_lo_u32 v{t2}, v{t1}, s30')
        a(f'v_lshrrev_b32 v{t2}, 16, v{t2}')
        a(f'v_mul_u32_u24 v{vi0}, 20, v{t2}')
        a(f'v_sub_u32 v{vi0}, v{t1}, v{vi0}')
        a(f'v_cmp_gt_u32 vcc, 16, v{vi0}')
        a(f'v_and_b32 v{vT}, 1, v{t2}')
        a(f'v_lshlrev_b32 v{vT}, 4, v{vT}')
        a(f'v_add_u32 v{vi0}, v{vi0}, v{vT}')
        a(f'v_and_b32 v{vT}, 7, v{t2}')
        a(f'v_lshlrev_b32 v{vT}, 2, v{vT}')
        a(f'v_cndmask_b32 v{vi0}, v{vT}, v{vi0}, vcc')
        a(f'v_lshrrev_b32 v{vT}, 3, v{t2}')
        a(f'v_add_u32 v{vT}, 16, v{vT}')
        a(f'v_lshrrev_b32 v{t2}, 1, v{t2}')
        a(f'v_cndmask_b32 v{t2}, v{vT}, v{t2}, vcc')
        a(f'v_lshlrev_b32 v{vT}, 1, v{t2}')
        a(f'v_bfe_u32 v{t2}, v{vi0}, 2, 1')
        a(f'v_add_u32 v{vT}, v{vT}, v{t2}')
        a(f'v_mul_u32_u24 v{t2}, 40, v{t0}')
        a(f'v_add_u32 v{vT}, v{vT}, v{t2}')
        a(f'v_lshrrev_b32 v{vi0}, 3, v{vi0}')
        a(f'v_lshlrev_b32 v{vi0}, 2, v{vi0}')
        a(f'v_cmp_eq_u32 vcc, 2, v{t0}')
        a(f'v_lshrrev_b32 v{t2}, 4, v{t1}')
        a(f'v_add_u32 v{t2}, 80, v{t2}')
        a(f'v_cndmask_b32 v{vT}, v{vT}, v{t2}, vcc')
        a(f'v_and_b32 v{t2}, 15, v{t1}')
        a(f'v_cndmask_b32 v{vi0}, v{vi0}, v{t2}, vcc')


def src_col(a, kind, vT, vc, vout, t0, t1, t2):
    if kind in 'AGU':
        a(f'v_lshrrev_b32 v{t0}, 1, v{vT}')
        a(f'v_and_b32 v{t1}, 1, v{vT}')
        a(f'v_lshlrev_b32 v{vout}, 5, v{t0}')
        a(f'v_lshl_add_u32 v{vout}, v{vc}, 3, v{vout}')
        a(f'v_lshl_add_u32 v{vout}, v{t1}, 2, v{vout}')
        if kind != 'A':
            a(f'v_lshlrev_b32 v{vT}, 2, v{t0}')
            a(f'v_add_u32 v{vT}, v{vT}, v{t1}')
            if kind == 'U':
                a(f'v_add_u32 v{vT}, 2, v{vT}')
    else:
        a(f'v_cmp_le_u32 vcc, 40, v{vT}')
        a(f'v_cndmask_b32_e64 v{t0}, 0, 1, vcc')
        a(f'v_cmp_le_u32 vcc, 80, v{vT}')
        a(f'v_cndmask_b32_e64 v{t0}, v{t0}, 2, vcc')
        a(f'v_mul_u32_u24 v{t1}, 40, v{t0}')
        a(f'v_sub_u32 v{t1}, v{vT}, v{t1}')
        a(f'v_and_b32 v{t2}, 1, v{t1}')
        a(f'v_lshlrev_b32 v{t2}, 2, v{t2}')
        a(f'v_lshl_add_u32 v{t2}, v{vc}, 3, v{t2}')
        a(f'v_and_b32 v{vout}, -2, v{t1}')
        a(f'v_lshrrev_b32 v{t2+1}, 4, v{t2}')
        a(f'v_add_u32 v{vout}, v{vout}, v{t2+1}')
        a(f'v_mul_u32_u24 v{vout}, 20, v{vout}')
        a(f'v_and_b32 v{t2+1}, 15, v{t2}')
        a(f'v_add_u32 v{vout}, v{vout}, v{t2+1}')
        a(f'v_lshrrev_b32 v{t2+1}, 1, v{t1}')
        a(f'v_subrev_u32 v{t2+1}, 16, v{t2+1}')
        a(f'v_lshlrev_b32 v{t2+1}, 3, v{t2+1}')
        a(f'v_lshrrev_b32 v{t2}, 2, v{t2}')
        a(f'v_add_u32 v{t2+1}, v{t2+1}, v{t2}')
        a(f'v_mul_u32_u24 v{t2+1}, 20, v{t2+1}')
        a(f'v_add_u32 v{t2+1}, 16, v{t2+1}')
        a(f'v_cmp_le_u32 vcc, 32, v{t1}')
        a(f'v_cndmask_b32 v{vout}, v{vout}, v{t2+1}, vcc')
        a(f'v_lshlrev_b32 v{t2+1}, 4, v{t1}')
        a(f'v_lshl_add_u32 v{t2+1}, v{vc}, 2, v{t2+1}')
        a(f'v_cmp_eq_u32 vcc, 2, v{t0}')
        a(f'v_cndmask_b32 v{vout}, v{vout}, v{t2+1}, vcc')
        a(f'v_mul_u32_u24 v{t0}, 640, v{t0}')
        a(f'v_add_u32 v{vout}, v{vout}, v{t0}')


def gen_prep(name):
    a = Asm()
    begin(a, name)
    roles = [
        ('wqkv', 80, 8, 640, 1920, 'Q', WQKV),
        ('wo', 80, 16, 640, 640, 'A', WO_),
        ('wg', 80, 32, 640, 1536, 'G', WGU),
        ('wu', 80, 40, 640, 1536, 'U', WGU),
        ('wd', 192, 48, 1536, 640, 'A', WD_),
    ]
    cs_roles = [('csq', 30, 8, 1920, 'Q', CSQ), ('csg', 24, 32, 1536, 'G', CSG), ('csu', 24, 40, 1536, 'U', CSG)]
    NX = 128
    seq = [('x', NX)] + [(r[0], r[1]) for r in cs_roles] + [(r[0], r[1]) for r in roles]
    NWG = sum(n for _, n in seq)
    a(f's_cmp_ge_u32 s2, {NWG}')
    a.branch(f's_cbranch_scc1 {name}_end')
    ws_srd(a, 4)
    base = 0
    starts = {}
    for lab, n in seq:
        starts[lab] = base
        base += n
    for lab, _ in reversed(seq[1:]):
        a(f's_cmp_ge_u32 s2, {starts[lab]}')
        a.branch(f's_cbranch_scc1 {name}_{lab}')
    a.label(f'{name}_x')
    if os.environ.get('PREP_ONLY', 'x') != 'x':
        a('s_endpgm')
    a('s_load_dwordx2 s[8:9], s[0:1], 0')
    a('v_lshrrev_b32 v2, 6, v0')
    a('v_readfirstlane_b32 s12, v2')
    a('v_and_b32 v1, 63, v0')
    a('s_mov_b32 s14, s2')
    a('v_and_b32 v3, 15, v1')
    a('v_mul_u32_u24 v3, 1280, v3')
    a('v_lshrrev_b32 v4, 4, v1')
    a('v_lshlrev_b32 v4, 4, v4')
    a('v_add_u32 v3, v3, v4')
    a(f's_mul_i32 s15, s14, {16*1280}')
    a('s_mul_i32 s16, s12, 320')
    a('s_add_u32 s15, s15, s16')
    a('v_lshlrev_b32 v5, 4, v1')
    a('s_waitcnt lgkmcnt(0)')
    fin_srd(a, 4, WS_SIZE)
    fin_srd(a, 8, S * D * 2)
    for kt in range(5):
        a(f'buffer_load_dwordx4 v[{16+4*kt}:{19+4*kt}], v3, s[8:11], s15 offen offset:{64*kt}', tag=('x', kt))
    a(f's_mul_i32 s16, s14, {20*1024}')
    a(f's_add_u32 s16, s16, {XF[0]}')
    a(f's_mul_i32 s17, s12, {5*1024}')
    a('s_add_u32 s16, s16, s17')
    a(f's_add_u32 s17, s16, 4096')
    a('s_lshl_b32 s18, s2, 8')
    a('v_add_u32 v6, s18, v0')
    a('v_lshrrev_b32 v7, 1, v6')
    a('v_lshlrev_b32 v7, 10, v7')
    a('v_and_b32 v6, 1, v6')
    a('v_lshlrev_b32 v6, 4, v6')
    a('v_add_u32 v7, v7, v6')
    for i in range(4):
        a(f'v_mov_b32 v{40+i}, 0x3f803f80')
    a(f's_mov_b32 s18, {VT + 640}')
    Lx = a.newlabel('noones')
    a('s_cmp_ge_u32 s2, 32')
    a.branch(f's_cbranch_scc1 {Lx}')
    a('buffer_store_dwordx4 v[40:43], v7, s[4:7], s18 offen')
    a.label(Lx)
    a('v_mov_b32 v8, 0')
    a('v_mov_b32 v9, 0')
    a('s_waitcnt vmcnt(0)')
    a.vmq = []
    for kt in range(5):
        if kt < 4:
            a(f'buffer_store_dwordx4 v[{16+4*kt}:{19+4*kt}], v5, s[4:7], s16 offen offset:{1024*kt}')
        else:
            a(f'buffer_store_dwordx4 v[{16+4*kt}:{19+4*kt}], v5, s[4:7], s17 offen')
        for w in range(4):
            a(f'v_lshlrev_b32 v12, 16, v{16+4*kt+w}')
            a(f'v_and_b32 v13, 0xffff0000, v{16+4*kt+w}')
            a('v_add_f32 v8, v8, v12')
            a('v_fma_f32 v9, v12, v12, v9')
            a('v_add_f32 v8, v8, v13')
            a('v_fma_f32 v9, v13, v13, v9')
    for sw in ('v_permlane16_swap_b32', 'v_permlane32_swap_b32'):
        for r in (8, 9):
            a(f'v_mov_b32 v12, v{r}')
            a(f'{sw} v12, v{r}')
            a(f'v_add_f32 v{r}, v{r}, v12')
    a('v_mov_b32 v10, 0')
    a('v_mov_b32 v11, 0')
    a('v_lshlrev_b32 v6, 6, v1')
    a('s_lshl_b32 s17, s14, 10')
    a('s_lshl_b32 s18, s12, 3')
    a('s_add_u32 s17, s17, s18')
    a(f's_add_u32 s17, s17, {ST[0]}')
    a('s_mov_b64 exec, 0xffff')
    a('buffer_store_dwordx2 v[8:9], v6, s[4:7], s17 offen')
    a('buffer_store_dwordx2 v[10:11], v6, s[4:7], s17 offen offset:32')
    a('s_endpgm')
    for (lab, nwg, slot, K, N, kind, dst) in roles:
        a.label(f'{name}_{lab}')
        a.vmq, a.lgq = [], []
        if os.environ.get('PREP_ONLY', lab) != lab:
            a('s_endpgm')
        a(f's_load_dwordx2 s[8:9], s[0:1], {slot}')
        KT = K // 32
        RB = N * 2
        NTL = N // 16
        a('v_lshrrev_b32 v2, 6, v0')
        a('v_readfirstlane_b32 s12, v2')
        a('v_and_b32 v1, 63, v0')
        a('v_lshlrev_b32 v3, 4, v1')
        a(f's_sub_u32 s13, s2, {starts[lab]}')
        if lab == 'wo':
            a('s_lshr_b32 s14, s13, 1')
            a('s_mul_i32 s14, s14, 20')
            a('s_and_b32 s15, s13, 1')
            a('s_lshl_b32 s15, s15, 2')
            a('s_add_u32 s14, s14, s15')
            a('s_add_u32 s15, s14, 8')
            a('s_sub_u32 s16, s13, 64')
            a('s_mul_i32 s16, s16, 40')
            a('s_add_u32 s16, s16, 16')
            a('s_add_u32 s17, s16, 20')
            a('s_cmp_lt_u32 s13, 64')
            a('s_cselect_b32 s14, s14, s16')
            a('s_cselect_b32 s15, s15, s17')
        else:
            a('s_lshl_b32 s14, s13, 3')
            a('s_add_u32 s15, s14, 4')
        a(f's_mul_i32 s14, s14, {RB}')
        a(f's_mul_i32 s15, s15, {RB}')
        a('s_waitcnt lgkmcnt(0)')
        fin_srd(a, 4, WS_SIZE)
        fin_srd(a, 8, K * N * 2)
        nch = 4 * RB // 1024
        tot = 2 * nch
        a('s_lshl_b32 s16, s12, 10')
        for i in range((tot + 3) // 4):
            a(f's_add_u32 s17, s16, {4096*i}')
            if 4 * i + 3 >= tot:
                a(f's_min_u32 s17, s17, {(tot-1)*1024}')
            a('s_mov_b32 m0, s17')
            a(f's_sub_u32 s18, s17, {nch*1024}')
            a('s_add_u32 s18, s18, s15')
            a('s_add_u32 s19, s17, s14')
            a(f's_cmp_lt_u32 s17, {nch*1024}')
            a('s_cselect_b32 s18, s19, s18')
            a('buffer_load_dwordx4 v3, s[8:11], s18 offen lds', tag='w')
        a('v_lshrrev_b32 v4, 4, v1')
        a('v_bfe_u32 v5, v1, 2, 2')
        a('v_and_b32 v6, 3, v1')
        a(f'v_mul_u32_u24 v5, {RB}, v5')
        a('v_and_b32 v7, 15, v1')
        a('v_lshlrev_b32 v7, 4, v7')
        a('s_lshr_b32 s20, s13, 2')
        a('s_lshl_b32 s20, s20, 10')
        a('s_and_b32 s21, s13, 3')
        a('s_lshl_b32 s21, s21, 8')
        a('s_add_u32 s20, s20, s21')
        a(f's_add_u32 s20, s20, {dst}')
        a('s_lshl_b32 s21, s12, 2')
        a('v_add_u32 v4, s21, v4')
        a.wait(vm_all=True)
        a('s_barrier')
        nit = (NTL + 15) // 16
        for it in range(nit):
            vb = 16 + 12 * (it & 1)
            a(f'v_add_u32 v{vb}, {16*it}, v4')
            if 16 * it + 15 >= NTL:
                a(f'v_min_u32 v{vb}, {NTL-1}, v{vb}')
            src_col(a, kind, vb, 6, vb + 1, vb + 2, vb + 3, vb + 4)
            a(f'v_lshl_add_u32 v{vb+1}, v{vb+1}, 1, v5')
            a(f'ds_read_b64_tr_b16 v[{vb+8}:{vb+9}], v{vb+1}', tag='t')
            a(f'ds_read_b64_tr_b16 v[{vb+10}:{vb+11}], v{vb+1} offset:{4*RB}', tag='t')
            a(f'v_mul_u32_u24 v{vb}, {KT*1024}, v{vb}')
            a(f'v_add_u32 v{vb}, v{vb}, v7')
            a.wait(lg_all=True)
            a(f'buffer_store_dwordx4 v[{vb+8}:{vb+11}], v{vb}, s[4:7], s20 offen')
        a('s_endpgm')
    for (lab, nwg, slot, N, kind, dst) in cs_roles:
        a.label(f'{name}_{lab}')
        a.vmq, a.lgq = [], []
        if os.environ.get('PREP_ONLY', lab) != lab:
            a('s_endpgm')
        a(f's_load_dwordx2 s[8:9], s[0:1], {slot}')
        a(f's_sub_u32 s12, s2, {starts[lab]}')
        a('s_lshl_b32 s12, s12, 6')
        a('v_lshrrev_b32 v1, 4, v0')
        a('v_and_b32 v2, 15, v0')
        a(f'v_mul_u32_u24 v3, {40}, v1')
        a(f's_mov_b32 s13, {N*2}')
        a('v_mul_lo_u32 v3, v3, s13')
        a('v_lshlrev_b32 v4, 3, v2')
        a('v_add_u32 v3, v3, v4')
        a('s_lshl_b32 s14, s12, 1')
        a('v_add_u32 v3, s14, v3')
        a('s_waitcnt lgkmcnt(0)')
        fin_srd(a, 4, WS_SIZE)
        fin_srd(a, 8, 640 * N * 2)
        for r in range(40):
            a(f's_mov_b32 s{14+(r&3)}, {r*N*2}')
            a(f'buffer_load_dwordx2 v[{16+2*r}:{17+2*r}], v3, s[8:11], s{14+(r&3)} offen', tag=('c', r))
        for e in range(4):
            a(f'v_mov_b32 v{8+e}, 0')
        for r in range(40):
            a.wait(vm=('c', r))
            for w in range(2):
                a(f'v_lshlrev_b32 v12, 16, v{16+2*r+w}')
                a(f'v_and_b32 v13, 0xffff0000, v{16+2*r+w}')
                a(f'v_add_f32 v{8+2*w}, v{8+2*w}, v12')
                a(f'v_add_f32 v{9+2*w}, v{9+2*w}, v13')
        a('v_lshlrev_b32 v4, 4, v0')
        a('ds_write_b128 v4, v[8:11]')
        a.wait(lg_all=True)
        a('s_barrier')
        a('v_lshlrev_b32 v4, 2, v0')
        for kc in range(16):
            a(f'ds_read_b32 v{16+kc}, v4 offset:{kc*256}', tag='r')
        a('v_lshrrev_b32 v2, 2, v0')
        a('v_lshlrev_b32 v2, 2, v2')
        a('v_add_u32 v2, s12, v2')
        map_tile(a, kind, 2, 5, 6, 7, 8, 9)
        a('v_lshlrev_b32 v5, 4, v5')
        a('v_add_u32 v5, v5, v6')
        a('v_and_b32 v6, 3, v0')
        a('v_add_u32 v5, v5, v6')
        a('v_lshlrev_b32 v5, 2, v5')
        a.wait(lg_all=True)
        for kc in range(1, 16):
            a(f'v_add_f32 v16, v16, v{16+kc}')
        a(f's_mov_b32 s22, {dst}')
        a('v_cmp_gt_u32 vcc, 64, v0')
        a('s_and_saveexec_b64 s[24:25], vcc')
        a.branch(f's_cbranch_execz {name}_end')
        a('buffer_store_dword v16, v5, s[4:7], s22 offen')
        a('s_endpgm')
    a.label(f'{name}_end')
    a('s_endpgm')
    kernels.append((name, NWG, 256, 30720, 128, 40, a.text()))


def build():
    gen_prep('prep_kernel')
    gen_qkv('qkv1_kernel', XF[0], ST[0])
    gen_attn('attn_kernel')
    gen_res('wo1_kernel', 640, OF, WO_, XF[0], XF[1], ST[1])
    gen_gu('gu1_kernel', XF[1], ST[1])
    gen_res('dn1_kernel', 1536, HF, WD_, XF[1], XF[2], ST[2])
    gen_qkv('qkv2_kernel', XF[2], ST[2])
    gen_res('wo2_kernel', 640, OF, WO_, XF[2], XF[3], ST[3])
    gen_gu('gu2_kernel', XF[3], ST[3])
    gen_res('dn2_kernel', 1536, HF, WD_, XF[3], None, None, final=True)
    order = ['prep_kernel', 'qkv1_kernel', 'attn_kernel', 'wo1_kernel', 'gu1_kernel', 'dn1_kernel',
             'qkv2_kernel', 'attn_kernel', 'wo2_kernel', 'gu2_kernel', 'dn2_kernel']
    kd = {k[0]: k for k in kernels}
    hdr = open('interleave_layers__sliding_block__glu_gated_glu__prompt.s.ref').read().split('\n')
    out = [l for l in hdr if l.startswith(';') and '@launch' not in l and 'Override' not in l and 'grid=ceil' not in l]
    for n in order:
        k = kd[n]
        out.append(f'; @launch kernel={n} grid=({k[1]},1,1) block=({k[2]},1,1) lds={k[3]}')
    out.append('.amdgcn_target "amdgcn-amd-amdhsa--gfx950"')
    for k in kernels:
        out.append(k[6])
    out.append('.section .rodata,"a"')
    for k in kernels:
        nv = (k[4] + 7) // 8 * 8
        out.append('.p2align 6')
        out.append(f'.amdhsa_kernel {k[0]}')
        out.append(f'  .amdhsa_next_free_vgpr {nv}')
        out.append(f'  .amdhsa_next_free_sgpr {k[5]}')
        out.append(f'  .amdhsa_accum_offset {min(nv, 256)}')
        out.append('  .amdhsa_group_segment_fixed_size 0')
        out.append('  .amdhsa_kernarg_size 80')
        out.append('  .amdhsa_user_sgpr_count 2')
        out.append('  .amdhsa_user_sgpr_kernarg_segment_ptr 1')
        out.append('  .amdhsa_system_sgpr_workgroup_id_x 1')
        out.append('.end_amdhsa_kernel')
    open(os.environ.get('OUT', 'interleave_layers__sliding_block__glu_gated_glu__prompt.s'), 'w').write('\n'.join(out) + '\n')
    for k in kernels:
        print(k[0], 'grid', k[1], 'lds', k[3], 'vgpr', k[4])


if __name__ == '__main__':
    build()
```

```python
import re

TRANS = ('v_exp_', 'v_log_', 'v_rcp_', 'v_rsq_', 'v_sqrt_', 'v_sin_', 'v_cos_')
NODST_S = ('s_cmp', 's_waitcnt', 's_barrier', 's_branch', 's_cbranch', 's_nop', 's_endpgm', 's_setprio',
           's_sleep', 's_bitcmp')


def regs_of(op):
    op = op.strip()
    if op.startswith('-'):
        op = op[1:]
    m = re.fullmatch(r'abs\((.*)\)', op)
    if m:
        op = m.group(1)
    if op.startswith('|') and op.endswith('|'):
        op = op[1:-1]
    m = re.fullmatch(r'([vsa])\[(\d+):(\d+)\]', op)
    if m:
        return [f'{m.group(1)}{i}' for i in range(int(m.group(2)), int(m.group(3)) + 1)]
    m = re.fullmatch(r'([vsa])(\d+)', op)
    if m:
        return [op]
    if op in ('vcc', 'exec', 'm0'):
        return [op]
    if op in ('vcc_lo', 'vcc_hi'):
        return ['vcc']
    if op in ('exec_lo', 'exec_hi'):
        return ['exec']
    return []


def split_ops(s):
    out, depth, cur = [], 0, ''
    for ch in s:
        if ch in '[(':
            depth += 1
        if ch in '])':
            depth -= 1
        if ch == ',' and depth == 0:
            out.append(cur.strip())
            cur = ''
        else:
            cur += ch
    if cur.strip():
        out.append(cur.strip())
    return out


class Ins:
    __slots__ = ('pos', 'kind', 'wr', 'rd', 'passes', 'srcc', 'srcab', 'mn', 'trans', 'wide_store', 'sdata', 'dpp', 'dotab')


_UID = [0]


class Asm:
    def __init__(self):
        self.out = []
        self.hist = []
        self.pos = 0
        self.vmq = []
        self.lgq = []
        self.uid = 0

    def raw(self, s):
        self.out.append(s)

    def comment(self, s):
        self.out.append('    ; ' + s)

    def label(self, name):
        self.flush()
        self.out.append(name + ':')

    def newlabel(self, p='L'):
        _UID[0] += 1
        return f'{p}_{_UID[0]}'

    def nop(self, n):
        while n > 0:
            k = min(n, 16)
            self.out.append(f'    s_nop {k - 1}')
            self.pos += k
            n -= k

    def flush(self):
        need = 0
        for h in self.hist:
            d = self.pos - h.pos
            if h.kind == 'mfma':
                req = 12 if h.passes >= 8 else 8
            elif h.kind == 'valu':
                req = 5
            elif h.kind == 'salu' and 'm0' in h.wr:
                req = 1
            elif h.wide_store:
                req = 2
            else:
                req = 0
            need = max(need, req - d)
        if need > 0:
            self.nop(need)
        self.hist = []

    def parse(self, text):
        text = text.strip()
        mn, _, rest = text.partition(' ')
        ops = split_ops(rest)
        mods = []
        if ops:
            last = ops[-1].split()
            ops[-1] = last[0]
            mods = last[1:]
        I = Ins()
        I.mn = mn
        I.wr, I.rd = set(), set()
        I.passes = 0
        I.srcc, I.srcab = set(), set()
        I.trans = False
        I.wide_store = False
        I.sdata = set()
        I.dpp = any(m.startswith('row_') or m.startswith('quad_perm') for m in mods) or mn.endswith('_dpp')
        R = [regs_of(o) for o in ops]
        I.dotab = set(R[1] + R[2]) if mn.startswith('v_dot') else set()
        if mn.startswith('v_mfma'):
            I.kind = 'mfma'
            I.passes = 8 if '32x32' in mn else 4
            I.wr.update(R[0])
            I.srcab.update(R[1] + R[2])
            I.srcc.update(R[3])
            I.rd.update(R[1] + R[2] + R[3])
        elif mn.startswith('v_'):
            I.kind = 'valu'
            I.trans = mn.startswith(TRANS)
            if 'permlane' in mn and 'swap' in mn:
                I.wr.update(R[0] + R[1])
                I.rd.update(R[0] + R[1])
            elif '_co_' in mn:
                I.wr.update(R[0] + R[1])
                for r in R[2:]:
                    I.rd.update(r)
            else:
                I.wr.update(R[0])
                for r in R[1:]:
                    I.rd.update(r)
                if mn.startswith(('v_fmac', 'v_writelane')):
                    I.rd.update(R[0])
                if mn.startswith('v_cndmask') and len(ops) == 3:
                    I.rd.add('vcc')
        elif mn.startswith('ds_'):
            I.kind = 'ds'
            if mn.startswith(('ds_write', 'ds_add', 'ds_max', 'ds_min')):
                for r in R:
                    I.rd.update(r)
            else:
                I.wr.update(R[0])
                for r in R[1:]:
                    I.rd.update(r)
        elif mn.startswith(('buffer_', 'global_', 'flat_')):
            I.kind = 'vmem'
            is_lds = ('lds' in mods) or ('_lds_' in mn)
            if 'store' in mn or 'atomic' in mn:
                for r in R:
                    I.rd.update(r)
                if mn.endswith(('x3', 'x4')):
                    I.wide_store = True
                    I.sdata = set(R[0] if mn.startswith('buffer_') else R[1])
            elif is_lds:
                for r in R:
                    I.rd.update(r)
                I.rd.add('m0')
            else:
                I.wr.update(R[0])
                for r in R[1:]:
                    I.rd.update(r)
        elif mn.startswith('s_load') or mn.startswith('s_buffer_load'):
            I.kind = 'smem'
            I.wr.update(R[0])
            for r in R[1:]:
                I.rd.update(r)
        elif mn.startswith('s_'):
            I.kind = 'salu'
            if mn.startswith(NODST_S):
                for r in R:
                    I.rd.update(r)
            else:
                I.wr.update(R[0])
                for r in R[1:]:
                    I.rd.update(r)
                if 'saveexec' in mn:
                    I.wr.add('exec')
        else:
            raise ValueError('unknown instr ' + text)
        return I

    @staticmethod
    def need(p, c):
        n = 0
        pv = {r for r in p.wr if r[0] in 'va'}
        ps = {r for r in p.wr if r[0] == 's' or r == 'vcc'}
        if p.kind == 'valu':
            if c.kind == 'mfma' and pv & c.rd:
                n = max(n, 2)
            if c.kind == 'valu':
                if p.trans and not c.trans and (pv & (c.rd | c.wr)):
                    n = max(n, 1)
                if 'permlane' in c.mn and pv & c.rd:
                    n = max(n, 2)
                if c.dpp and pv & c.rd:
                    n = max(n, 2)
                if c.mn.startswith(('v_readlane', 'v_readfirstlane')) and pv & c.rd:
                    n = max(n, 1)
                if ps & c.rd:
                    n = max(n, 4 if c.mn.startswith(('v_readlane', 'v_writelane')) else 2)
            if p.mn.startswith('v_dot') and pv & (c.rd | c.wr):
                if not (c.mn == p.mn and not (pv & c.dotab)):
                    n = max(n, 3)
            if c.kind == 'vmem' and ps & c.rd:
                n = max(n, 5)
            if c.kind in ('salu', 'smem') and ps & c.rd:
                n = max(n, 2)
        if p.kind == 'mfma':
            big = p.passes >= 8
            if c.kind == 'mfma':
                if pv & c.srcab:
                    n = max(n, 12 if big else 8)
                if pv & c.srcc:
                    if not (c.srcc == pv and c.passes == p.passes):
                        n = max(n, 10 if big else 6)
                if (pv & c.wr) and not (c.srcc == pv):
                    n = max(n, 10 if big else 6)
            elif c.kind in ('valu', 'vmem', 'ds'):
                if pv & (c.rd | c.wr):
                    n = max(n, 12 if big else 8)
                if c.kind == 'valu' and (p.srcc & c.wr):
                    n = max(n, 7 if big else 3)
        if p.kind == 'salu' and 'm0' in p.wr and 'm0' in c.rd and c.kind == 'vmem':
            n = max(n, 1)
        if p.wide_store and (p.sdata & c.wr):
            n = max(n, 2)
        return n

    def __call__(self, text, tag=None):
        import os
        if text.startswith('buffer_store') and os.environ.get('ST_MOD'):
            text = text + ' ' + os.environ['ST_MOD']
        I = self.parse(text)
        req = 0
        for h in self.hist:
            d = self.pos - h.pos
            r = self.need(h, I)
            req = max(req, r - d)
        if req > 0:
            self.nop(req)
        self.out.append('    ' + text)
        I.pos = self.pos + 1
        self.pos += 1
        self.hist.append(I)
        self.hist = [h for h in self.hist if self.pos - h.pos < 24]
        if I.kind == 'vmem':
            self.vmq.append(tag)
        elif I.kind == 'ds':
            self.lgq.append(tag)
        if I.mn.startswith(('s_branch', 's_cbranch')):
            pass
        return I

    def branch(self, text):
        self.flush()
        self(text)

    def _cnt(self, q, tags):
        if not isinstance(tags, (list, set)):
            tags = [tags]
        last = -1
        for i, t in enumerate(q):
            if t in tags:
                last = i
        if last < 0:
            return None
        return len(q) - 1 - last

    def wait(self, vm=None, lg=None, vm_all=False, lg_all=False):
        parts = []
        if vm_all:
            parts.append('vmcnt(0)')
            self.vmq = []
        elif vm is not None:
            n = self._cnt(self.vmq, vm)
            if n is not None:
                n = min(n, 63)
                parts.append(f'vmcnt({n})')
                self.vmq = self.vmq[len(self.vmq) - n:] if n else []
        if lg_all:
            parts.append('lgkmcnt(0)')
            self.lgq = []
        elif lg is not None:
            n = self._cnt(self.lgq, lg)
            if n is not None:
                n = min(n, 15)
                parts.append(f'lgkmcnt({n})')
                self.lgq = self.lgq[len(self.lgq) - n:] if n else []
        if parts:
            self('s_waitcnt ' + ' '.join(parts))

    def text(self):
        return '\n'.join(self.out) + '\n'
```

```python
import sys, math
sys.path.insert(0, 'gen')
from asmlib import Asm

S, D, H, DH, F = 2048, 640, 32, 20, 1536
WQKV = 0x0
WO_ = 0x260000
WGU = 0x330000
WD_ = 0x6F0000
CSQ = 0x8D0000
CSG = 0x8D2000
XF = [0x900000, 0xC00000, 0xF00000, 0x1200000]
ST = [0x1500000 + i * 0x20000 for i in range(4)]
QM = 0x1600000
KM = 0x1800000
QT = 0x1A00000
KT_ = 0x1A80000
VT = 0x1B00000
OF = 0x1F00000
HF = 0x2200000
WS_SIZE = 0x10000000

LOG2E = 1.4426950408889634


def f32hex(x):
    import struct
    return '0x%08x' % struct.unpack('<I', struct.pack('<f', x))[0]


kernels = []
import os
STAMP = os.environ.get('STAMP', '')
stamp_n = [0]


def stamp(a, name):
    if STAMP != name:
        return
    i = stamp_n[0]
    stamp_n[0] += 1
    a(f's_memtime s[{80+2*i}:{81+2*i}]')
    a('s_waitcnt lgkmcnt(0)')


def stamp_out(a, name):
    if STAMP != name:
        return
    n = stamp_n[0]
    L = a.newlabel('so')
    a('s_mov_b64 exec, -1')
    a(f's_cmp_lg_u32 s2, {os.environ.get("STAMP_WG", "0")}')
    a.branch(f's_cbranch_scc1 {L}')
    a('s_load_dwordx2 s[76:77], s[0:1], 64')
    a('s_waitcnt lgkmcnt(0)')
    a('s_and_b32 s77, s77, 0xffff')
    a('s_mov_b32 s78, 256')
    a('s_mov_b32 s79, 0x00020000')
    a('v_lshrrev_b32 v0, 6, v0')
    a('v_lshlrev_b32 v0, 6, v0')
    for i in range(n):
        a(f'v_mov_b32 v1, s{80+2*i}')
        a(f'buffer_store_dword v1, v0, s[76:79], 0 offen offset:{4*i}')
    a.label(L)
    stamp_n[0] = 0


def begin(a, name):
    a.raw('.text')
    a.raw(f'.globl {name}')
    a.raw('.p2align 8')
    a.raw(f'.type {name},@function')
    a.raw(f'{name}:')


def ws_srd(a, sreg=4, slot=72, size=WS_SIZE):
    a(f's_load_dwordx2 s[{sreg}:{sreg+1}], s[0:1], {slot}')


def fin_srd(a, sreg, size):
    a(f's_and_b32 s{sreg+1}, s{sreg+1}, 0xffff')
    a(f's_mov_b32 s{sreg+2}, {size}')
    a(f's_mov_b32 s{sreg+3}, 0x00020000')


def R4(i):
    return f'v[{i}:{i+3}]' if i < 256 else f'a[{i-256}:{i-253}]'


def bf16r(a, v):
    a(f'v_cvt_pk_bf16_f32 v{v}, v{v}, v{v}')
    a(f'v_lshlrev_b32 v{v}, 16, v{v}')


class G:
    pass


NL = 2


def gemm_core(a, g, swap):
    KST, NS, KT = g.KST, g.NS, g.K // 32
    TB = KST * 1024
    SB = g.SB

    def read_list(t):
        st, kk = t // KST, t % KST
        sl = st % NS
        p = t & 1
        L = []
        for i in range(g.mtw):
            off = sl * SB + i * TB + kk * 1024
            L.append(lambda i=i, off=off: a(f'ds_read_b128 {R4(g.fa(p, i))}, v{g.v_a + (off >> 16)} offset:{off & 0xffff}', tag=('rd', t)))
        for b in range(g.ntw):
            off = sl * SB + (g.MT + b) * TB + kk * 1024
            L.append(lambda b=b, off=off: a(f'ds_read_b128 {R4(g.fb(p, b))}, v{g.v_b + (off >> 16)} offset:{off & 0xffff}', tag=('rd', t)))
        return L

    def mfmas(t, R):
        p = t & 1
        nm = g.mtw * g.ntw
        nr = len(R)
        span = max(1, int(nm * 0.6))
        cnt = 0
        si = 0
        for i in range(g.mtw):
            for b in range(g.ntw):
                acc = g.acc(i, b)
                A = g.fa(p, i)
                B = g.fb(p, b)
                c = '0' if t == 0 else f'v[{acc}:{acc+3}]'
                if swap:
                    a(f'v_mfma_f32_16x16x32_bf16 v[{acc}:{acc+3}], {R4(A)}, {R4(B)}, {c}')
                else:
                    a(f'v_mfma_f32_16x16x32_bf16 v[{acc}:{acc+3}], {R4(B)}, {R4(A)}, {c}')
                cnt += 1
                while si < nr and (si * span) / nr < cnt:
                    R[si]()
                    si += 1
        while si < nr:
            R[si]()
            si += 1

    stamp(a, g.name)
    if g.mid_prologue:
        g.mid_prologue()
    a.wait(lg_all=True)
    a('s_barrier')
    stamp(a, g.name)
    for f in read_list(0):
        f()
    for t in range(KT):
        a.wait(lg_all=True)
        if t + 1 < KT and (t + 1) % KST == 0:
            a('s_barrier')
            if (t + 1) in (2, 8, KT - 2):
                stamp(a, g.name)
        mfmas(t, read_list(t + 1) if t + 1 < KT else [])
    stamp(a, g.name)


def loader_path(a, g):
    KST, NS, KT = g.KST, g.NS, g.K // 32
    KS = KT // KST
    TB = KST * 1024
    SB = g.SB
    ntile = g.MT + g.NT
    per = (ntile + NL - 1) // NL
    split_last = (ntile % NL != 0)
    assert not split_last or (KST == NL and ntile % NL == 1)
    a('s_sub_u32 s12, s12, 4')

    def offs(j):
        last = split_last and j == per - 1
        if last:
            a(f's_mov_b32 s18, {ntile - 1}')
        else:
            a(f's_add_u32 s18, s12, {NL * j}')
        a(f's_mul_i32 s{g.s_l + j}, s18, {TB}')
        a(f's_mul_i32 s20, s13, {g.MT}')
        a('s_add_u32 s20, s20, s18')
        a(f's_mul_i32 s20, s20, {KT * 1024}')
        a(f's_add_u32 s20, s20, {g.a_base}')
        a(f's_mul_i32 s21, s14, {g.NT}')
        a('s_add_u32 s21, s21, s18')
        a(f's_sub_u32 s21, s21, {g.MT}')
        a(f's_mul_i32 s21, s21, {KT * 1024}')
        a(f's_add_u32 s21, s21, {g.b_base}')
        a(f's_cmp_lt_u32 s18, {g.MT}')
        a(f's_cselect_b32 s{g.s_g + j}, s20, s21')
        if last:
            a('s_lshl_b32 s18, s12, 10')
            a(f's_add_u32 s{g.s_g + j}, s{g.s_g + j}, s18')
            a(f's_add_u32 s{g.s_l + j}, s{g.s_l + j}, s18')

    def dma1(st, j):
        sl = st % NS
        last = split_last and j == per - 1
        a(f's_add_u32 m0, s{g.s_l + j}, {sl * SB}')
        t = g.s_tmp + (j & 1)
        a(f's_add_u32 s{t}, s{g.s_g + j}, {st * TB}')
        for kk in range(1 if last else KST):
            a(f'buffer_load_dwordx4 v{g.v_l16}, s[4:7], s{t} offen offset:{kk * 1024} lds', tag=('dma', st))

    for j in range(per):
        offs(j)
        dma1(0, j)
    for st in range(1, min(NS, KS)):
        for j in range(per):
            dma1(st, j)
    for st in range(KS):
        a.wait(vm=('dma', st))
        a('s_barrier')
        if st >= 1 and st + NS - 1 < KS:
            for j in range(per):
                dma1(st + NS - 1, j)
    a('s_endpgm')


def gemm_setup(a, g, name, MB, NB, need_out=False):
    NWG = MB * NB
    g.name = name
    begin(a, name)
    a(f's_cmp_ge_u32 s2, {NWG}')
    a.branch(f's_cbranch_scc1 {name}_end')
    ws_srd(a, 4)
    if need_out:
        a('s_load_dwordx2 s[8:9], s[0:1], 56')
    a('v_lshrrev_b32 v2, 6, v0')
    a('v_readfirstlane_b32 s12, v2')
    a('v_and_b32 v1, 63, v0')
    a(f'v_lshlrev_b32 v{g.v_l16}, 4, v1')
    BA = g.band
    nbands = MB // BA
    XPB = 8 // nbands
    per = MB * NB // 8
    a('s_and_b32 s17, s2, 7')
    a('s_lshr_b32 s18, s2, 3')
    a(f's_and_b32 s19, s17, {XPB - 1}')
    a(f's_lshr_b32 s17, s17, {int(math.log2(XPB))}')
    a(f's_mul_i32 s19, s19, {per}')
    a('s_add_u32 s18, s18, s19')
    a(f's_and_b32 s13, s18, {BA - 1}')
    a(f's_lshl_b32 s17, s17, {int(math.log2(BA))}')
    a('s_add_u32 s13, s13, s17')
    a(f's_lshr_b32 s14, s18, {int(math.log2(BA))}')
    a('s_waitcnt lgkmcnt(0)')
    fin_srd(a, 4, WS_SIZE)
    a('s_cmp_lt_u32 s12, 4')
    a.branch(f's_cbranch_scc1 {name}_comp')
    loader_path(a, g)
    a.label(f'{name}_comp')
    a.vmq = []
    if need_out:
        fin_srd(a, 8, S * D * 2)
    if g.WN == 1:
        a('s_mov_b32 s15, s12')
        a('s_mov_b32 s16, 0')
    elif g.WM == 1:
        a('s_mov_b32 s15, 0')
        a('s_mov_b32 s16, s12')
    else:
        a('s_lshr_b32 s15, s12, 1')
        a('s_and_b32 s16, s12, 1')
    a(f's_mul_i32 s17, s15, {g.mtw * g.KST * 1024}')
    a(f's_mul_i32 s18, s16, {g.ntw * g.KST * 1024}')
    for h in range(3):
        a(f'v_add_u32 v{g.v_a + h}, s17, v{g.v_l16}')
        a(f'v_add_u32 v{g.v_b + h}, s18, v{g.v_l16}')
        if h:
            a(f'v_add_u32 v{g.v_a + h}, {h << 16}, v{g.v_a + h}')
            a(f'v_add_u32 v{g.v_b + h}, {h << 16}, v{g.v_b + h}')


def alloc(g, extra_base):
    g.v_l16 = 3
    g.v_a = 4
    g.v_b = 7
    g.mtw = g.MT // g.WM
    g.ntw = g.NT // g.WN
    g.SB = (g.MT + g.NT) * g.KST * 1024
    g.s_g = 24
    g.s_l = 56
    g.s_tmp = 22
    nacc = g.mtw * g.ntw * 4
    g.acc0 = extra_base
    g.acc = lambda i, b: g.acc0 + (i * g.ntw + b) * 4
    g.f0 = g.acc0 + nacc
    setsz = (g.mtw + g.ntw) * 4
    g.fa = lambda p, i: g.f0 + p * setsz + i * 4
    g.fb = lambda p, b: g.f0 + p * setsz + (g.mtw + b) * 4
    g.vend = g.f0 + 2 * setsz
    g.mid_prologue = None


def ln_stats_issue(a, g, st_base, vt):
    a(f'v_and_b32 v2, 127, v0')
    a(f'v_lshlrev_b32 v2, 6, v2')
    a(f's_lshl_b32 s17, s13, 13')
    a(f's_add_u32 s17, s17, {st_base}')
    for i in range(4):
        a(f'buffer_load_dwordx4 v[{vt+4*i}:{vt+4*i+3}], v2, s[4:7], s17 offen offset:{16*i}', tag='stats')


def ln_stats_finish(a, g, vt, lds_off):
    a.wait(vm='stats')
    for i in range(1, 8):
        a(f'v_add_f32 v{vt}, v{vt}, v{vt+2*i}')
        a(f'v_add_f32 v{vt+1}, v{vt+1}, v{vt+2*i+1}')
    inv = f32hex(1.0 / D)
    a(f'v_mul_f32 v{vt}, {inv}, v{vt}')
    a(f'v_mul_f32 v{vt+1}, {inv}, v{vt+1}')
    a(f'v_fma_f32 v{vt+1}, -v{vt}, v{vt}, v{vt+1}')
    a(f'v_max_f32 v{vt+1}, 0, v{vt+1}')
    bf16r(a, vt)
    bf16r(a, vt + 1)
    a(f'v_add_f32 v{vt+1}, {f32hex(1e-5)}, v{vt+1}')
    bf16r(a, vt + 1)
    a(f'v_sqrt_f32 v{vt+1}, v{vt+1}')
    bf16r(a, vt + 1)
    a(f'v_rcp_f32 v{vt+1}, v{vt+1}')
    a(f'v_and_b32 v{vt+2}, 127, v0')
    a(f'v_lshlrev_b32 v{vt+2}, 3, v{vt+2}')
    a(f'v_add_u32 v{vt+2}, {lds_off}, v{vt+2}')
    a(f'ds_write_b64 v{vt+2}, v[{vt}:{vt+1}]')


def gen_qkv(name, x_base, st_base):
    a = Asm()
    g = G()
    g.MT, g.NT, g.WM, g.WN, g.K = 8, 8, 2, 2, 640
    g.KST, g.NS = int(os.environ.get('QKV_KST', 2)), int(os.environ.get('QKV_NS', 4))
    g.a_base, g.b_base = x_base, WQKV
    g.band = 4
    g.pro = 3
    MISC = 10
    alloc(g, 48)
    STL = g.NS * g.SB
    lds = STL + 1024
    MB, NB = 16, 15
    gemm_setup(a, g, name, MB, NB)
    VT_, VCS = 10, 26
    ln_stats_issue(a, g, st_base, VT_)
    a('v_lshrrev_b32 v2, 4, v1')
    a(f's_cmp_ge_u32 s14, 10')
    a.branch(f's_cbranch_scc1 {name}_v')
    a('v_lshlrev_b32 v42, 4, v2')
    a('s_lshl_b32 s17, s14, 9')
    a('s_lshl_b32 s18, s16, 8')
    a('s_add_u32 s17, s17, s18')
    a(f's_add_u32 s17, s17, {CSQ}')
    for b in range(4):
        a(f'buffer_load_dwordx4 v[{VCS+4*b}:{VCS+4*b+3}], v42, s[4:7], s17 offen offset:{64*b}', tag='cs')
    g.mid_prologue = lambda: ln_stats_finish(a, g, VT_, STL)
    gemm_core(a, g, swap=False)
    a.wait(vm='cs')
    a('v_and_b32 v43, 15, v1')
    a('v_lshlrev_b32 v44, 3, v43')
    a('s_lshl_b32 s17, s15, 9')
    a(f's_add_u32 s17, s17, {STL}')
    a('v_add_u32 v44, s17, v44')
    for i in range(4):
        a(f'ds_read_b64 v[{VT_+2*i}:{VT_+2*i+1}], v44 offset:{i*128}', tag='tst')
    a.wait(lg_all=True)
    for i in range(4):
        for b in range(4):
            acc = g.acc(i, b)
            for r in range(4):
                a(f'v_fma_f32 v{acc+r}, -v{VT_+2*i}, v{VCS+4*b+r}, v{acc+r}')
                a(f'v_mul_f32 v{acc+r}, v{VT_+2*i+1}, v{acc+r}')
    a('s_cmp_ge_u32 s14, 5')
    a('s_cselect_b32 s17, 1, 0')
    a('s_mul_i32 s18, s17, 5')
    a('s_sub_u32 s18, s14, s18')
    a('s_lshl_b32 s19, s13, 7')
    a('s_lshl_b32 s20, s15, 6')
    a('s_add_u32 s19, s19, s20')
    a('s_cmp_eq_u32 s18, 4')
    a.branch(f's_cbranch_scc1 {name}_tail')
    a('v_lshrrev_b32 v44, 1, v2')
    a('v_lshlrev_b32 v44, 16, v44')
    a('v_lshlrev_b32 v45, 5, v43')
    a('v_add_u32 v44, v44, v45')
    a('v_and_b32 v45, 1, v2')
    a('v_lshlrev_b32 v45, 4, v45')
    a('v_add_u32 v44, v44, v45')
    a('s_lshl_b32 s20, s17, 21')
    a(f's_add_u32 s20, s20, {QM}')
    a('s_lshl_b32 s21, s18, 19')
    a('s_add_u32 s20, s20, s21')
    a('s_lshl_b32 s21, s16, 18')
    a('s_add_u32 s20, s20, s21')
    a('s_lshl_b32 s21, s19, 5')
    a('s_add_u32 s20, s20, s21')
    a(f's_add_u32 s21, s20, {2*65536}')
    for i in range(4):
        for bp in range(2):
            a0, a1 = g.acc(i, 2 * bp), g.acc(i, 2 * bp + 1)
            t = VT_ + 8 + ((i * 2 + bp) & 1) * 4
            a(f'v_cvt_pk_bf16_f32 v{t}, v{a0}, v{a0+1}')
            a(f'v_cvt_pk_bf16_f32 v{t+1}, v{a0+2}, v{a0+3}')
            a(f'v_cvt_pk_bf16_f32 v{t+2}, v{a1}, v{a1+1}')
            a(f'v_cvt_pk_bf16_f32 v{t+3}, v{a1+2}, v{a1+3}')
            a(f'buffer_store_dwordx4 v[{t}:{t+3}], v44, s[4:7], s{20+bp} offen offset:{i*512}')
    if STAMP == name:
        a.wait(vm_all=True)
        stamp(a, name)
        stamp_out(a, name)
    a('s_endpgm')
    a.label(f'{name}_tail')
    a('v_lshlrev_b32 v44, 15, v2')
    a('v_lshlrev_b32 v45, 3, v43')
    a('v_add_u32 v44, v44, v45')
    a('s_lshl_b32 s20, s17, 19')
    a(f's_add_u32 s20, s20, {QT}')
    a('s_lshl_b32 s21, s16, 18')
    a('s_add_u32 s20, s20, s21')
    a('s_lshl_b32 s21, s19, 3')
    a('s_add_u32 s20, s20, s21')
    for bp in range(2):
        for t in range(2):
            a(f's_add_u32 s{40+bp*2+t}, s20, {(bp*8 + t) * 16384}')
    for i in range(4):
        for b in range(4):
            a0 = g.acc(i, b)
            t = VT_ + 8 + ((i * 4 + b) & 3) * 2
            a(f'v_cvt_pk_bf16_f32 v{t}, v{a0}, v{a0+1}')
            a(f'v_cvt_pk_bf16_f32 v{t+1}, v{a0+2}, v{a0+3}')
            a(f'buffer_store_dwordx2 v[{t}:{t+1}], v44, s[4:7], s{40+b} offen offset:{i*128}')
    a('s_endpgm')
    a.label(f'{name}_v')
    a.vmq = ['stats'] * 4
    a('v_and_b32 v43, 15, v1')
    a('v_lshlrev_b32 v42, 2, v43')
    a('s_lshl_b32 s17, s14, 9')
    a('s_lshl_b32 s18, s16, 8')
    a('s_add_u32 s17, s17, s18')
    a(f's_add_u32 s17, s17, {CSQ}')
    for b in range(4):
        a(f'buffer_load_dword v{VCS+b}, v42, s[4:7], s17 offen offset:{64*b}', tag='cs')
    g.mid_prologue = lambda: ln_stats_finish(a, g, VT_, STL)
    gemm_core(a, g, swap=True)
    a.wait(vm='cs')
    a('s_sub_u32 s17, s14, 10')
    a('s_lshl_b32 s17, s17, 7')
    a('s_lshl_b32 s18, s16, 6')
    a('s_add_u32 s17, s17, s18')
    a('v_add_u32 v44, s17, v43')
    a('v_and_b32 v45, 1, v2')
    a('v_lshlrev_b32 v45, 4, v45')
    a('v_lshrrev_b32 v46, 1, v2')
    a('v_lshlrev_b32 v46, 3, v46')
    a('v_add_u32 v45, v45, v46')
    a('s_mov_b32 s18, 3277')
    for b in range(4):
        vo = VCS + 4 + b
        a(f'v_add_u32 v46, {16*b}, v44')
        a('v_mul_lo_u32 v47, v46, s18')
        a('v_lshrrev_b32 v47, 16, v47')
        a(f'v_mul_u32_u24 v{vo}, 20, v47')
        a(f'v_sub_u32 v{vo}, v46, v{vo}')
        a(f'v_lshlrev_b32 v{vo}, 5, v{vo}')
        a('v_lshlrev_b32 v47, 17, v47')
        a(f'v_add_u32 v{vo}, v{vo}, v47')
        a(f'v_add_u32 v{vo}, v{vo}, v45')
    a('s_lshl_b32 s20, s13, 13')
    a('s_lshl_b32 s21, s15, 12')
    a('s_add_u32 s20, s20, s21')
    a(f's_add_u32 s20, s20, {VT}')
    a('v_lshlrev_b32 v44, 5, v2')
    a('s_lshl_b32 s17, s15, 9')
    a(f's_add_u32 s17, s17, {STL}')
    a('v_add_u32 v44, s17, v44')
    for i in range(4):
        a(f'ds_read_b128 v[{VT_}:{VT_+3}], v44 offset:{i*128}', tag='tst')
        a(f'ds_read_b128 v[{VT_+4}:{VT_+7}], v44 offset:{i*128+16}', tag='tst')
        a.wait(lg_all=True)
        for b in range(4):
            acc = g.acc(i, b)
            for r in range(4):
                a(f'v_fma_f32 v{acc+r}, -v{VT_+2*r}, v{VCS+b}, v{acc+r}')
                a(f'v_mul_f32 v{acc+r}, v{VT_+2*r+1}, v{acc+r}')
            t = VT_ + 8 + (b & 3) * 2
            a(f'v_cvt_pk_bf16_f32 v{t}, v{acc}, v{acc+1}')
            a(f'v_cvt_pk_bf16_f32 v{t+1}, v{acc+2}, v{acc+3}')
            a(f'buffer_store_dwordx2 v[{t}:{t+1}], v{VCS+4+b}, s[4:7], s20 offen offset:{i*1024}')
    a.label(f'{name}_end')
    a('s_endpgm')
    kernels.append((name, MB * NB, 256 + 64 * NL, lds, g.vend, 100, a.text()))


def gen_res(name, K, a_base, b_base, xin, xout, st_out, final=False):
    a = Asm()
    g = G()
    g.MT, g.NT, g.WM, g.WN, g.K = 4, 5, 4, 1, K
    g.KST, g.NS = 2, 8
    g.a_base, g.b_base = a_base, b_base
    g.band = 8
    g.pro = 5
    alloc(g, 32)
    lds = g.NS * g.SB
    MB, NB = 32, 8
    gemm_setup(a, g, name, MB, NB, need_out=final)
    VR = 10
    a('s_lshl_b32 s17, s13, 2')
    a('s_add_u32 s17, s17, s15')
    a('s_mul_i32 s18, s14, 5')
    for b in range(5):
        a(f's_add_u32 s19, s18, {b}')
        a('s_lshr_b32 s20, s19, 1')
        a('s_and_b32 s21, s19, 1')
        a('s_lshl_b32 s21, s21, 3')
        a('s_mul_i32 s22, s17, 20')
        a('s_add_u32 s22, s22, s20')
        a('s_lshl_b32 s22, s22, 10')
        a(f's_add_u32 s{40+b}, s22, s21')
        if final:
            a(f's_mul_i32 s22, s17, {16*1280}')
            a('s_lshl_b32 s20, s20, 6')
            a('s_add_u32 s22, s22, s20')
            a(f's_add_u32 s{46+b}, s22, s21')
        a(f's_add_u32 s22, s{40+b}, {xin}')
        a(f'buffer_load_dwordx2 v[{VR+2*b}:{VR+2*b+1}], v{g.v_l16}, s[4:7], s22 offen', tag='res')
    gemm_core(a, g, swap=False)
    a.wait(vm='res')
    VS = 20
    a(f'v_mov_b32 v{VS}, 0')
    a(f'v_mov_b32 v{VS+1}, 0')
    if final:
        a('v_and_b32 v24, 15, v1')
        a('v_mul_u32_u24 v24, 1280, v24')
        a('v_lshrrev_b32 v25, 4, v1')
        a('v_lshlrev_b32 v25, 4, v25')
        a('v_add_u32 v24, v24, v25')
    for b in range(5):
        acc = g.acc(0, b)
        a(f'v_cvt_pk_bf16_f32 v{acc}, v{acc}, v{acc+1}')
        a(f'v_cvt_pk_bf16_f32 v{acc+2}, v{acc+2}, v{acc+3}')
        a(f'v_and_b32 v{acc+1}, 0xffff0000, v{acc}')
        a(f'v_lshlrev_b32 v{acc}, 16, v{acc}')
        a(f'v_and_b32 v{acc+3}, 0xffff0000, v{acc+2}')
        a(f'v_lshlrev_b32 v{acc+2}, 16, v{acc+2}')
        r0, r1 = VR + 2 * b, VR + 2 * b + 1
        a(f'v_lshlrev_b32 v22, 16, v{r0}')
        a(f'v_and_b32 v23, 0xffff0000, v{r0}')
        a(f'v_add_f32 v{acc}, v{acc}, v22')
        a(f'v_add_f32 v{acc+1}, v{acc+1}, v23')
        a(f'v_lshlrev_b32 v22, 16, v{r1}')
        a(f'v_and_b32 v23, 0xffff0000, v{r1}')
        a(f'v_add_f32 v{acc+2}, v{acc+2}, v22')
        a(f'v_add_f32 v{acc+3}, v{acc+3}, v23')
        a(f'v_cvt_pk_bf16_f32 v{r0}, v{acc}, v{acc+1}')
        a(f'v_cvt_pk_bf16_f32 v{r1}, v{acc+2}, v{acc+3}')
        if final:
            a(f'buffer_store_dwordx2 v[{r0}:{r1}], v24, s[8:11], s{46+b} offen')
        else:
            a(f's_add_u32 s22, s{40+b}, {xout}')
            a(f'buffer_store_dwordx2 v[{r0}:{r1}], v{g.v_l16}, s[4:7], s22 offen')
            for r in (r0, r1):
                a(f'v_lshlrev_b32 v22, 16, v{r}')
                a(f'v_and_b32 v23, 0xffff0000, v{r}')
                a(f'v_add_f32 v{VS}, v{VS}, v22')
                a(f'v_fma_f32 v{VS+1}, v22, v22, v{VS+1}')
                a(f'v_add_f32 v{VS}, v{VS}, v23')
                a(f'v_fma_f32 v{VS+1}, v23, v23, v{VS+1}')
    if not final:
        for sw in ('v_permlane16_swap_b32', 'v_permlane32_swap_b32'):
            for r in (VS, VS + 1):
                a(f'v_mov_b32 v22, v{r}')
                a(f'{sw} v22, v{r}')
                a(f'v_add_f32 v{r}, v{r}, v22')
        a('v_lshlrev_b32 v22, 6, v1')
        a('s_lshl_b32 s22, s17, 10')
        a('s_lshl_b32 s23, s14, 3')
        a('s_add_u32 s22, s22, s23')
        a(f's_add_u32 s22, s22, {st_out}')
        a('s_mov_b64 exec, 0xffff')
        a(f'buffer_store_dwordx2 v[{VS}:{VS+1}], v22, s[4:7], s22 offen')
    if STAMP == name:
        a.wait(vm_all=True)
        stamp(a, name)
        stamp_out(a, name)
    a.label(f'{name}_end')
    a('s_endpgm')
    kernels.append((name, MB * NB, 256 + 64 * NL, lds, g.vend, 100, a.text()))


def gen_gu(name, x_base, st_base):
    a = Asm()
    g = G()
    g.MT, g.NT, g.WM, g.WN, g.K = 8, 12, 4, 1, 640
    g.KST, g.NS = int(os.environ.get('GU_KST', 2)), int(os.environ.get('GU_NS', 3))
    g.a_base, g.b_base = x_base, WGU
    g.band = 8
    g.pro = 2
    alloc(g, 32)
    STL = g.NS * g.SB
    CSL = STL + 1024
    lds = STL + 2048
    MB, NB = 16, 16
    gemm_setup(a, g, name, MB, NB)
    VT_, VCS = 10, g.f0
    ln_stats_issue(a, g, st_base, VT_)
    a('v_lshlrev_b32 v26, 2, v0')
    a(f's_mul_i32 s17, s14, {12*64}')
    a(f's_add_u32 s17, s17, {CSG}')
    a('buffer_load_dword v27, v26, s[4:7], s17 offen', tag='cs')

    def mp():
        ln_stats_finish(a, g, VT_, STL)
        a.wait(vm='cs')
        a(f'v_add_u32 v26, {CSL}, v26')
        a('ds_write_b32 v26, v27')
    g.mid_prologue = mp
    gemm_core(a, g, swap=False)
    a('v_lshrrev_b32 v2, 4, v1')
    a('v_lshlrev_b32 v26, 4, v2')
    a(f'v_add_u32 v26, {CSL}, v26')
    for b in range(12):
        a(f'ds_read_b128 v[{VCS+4*b}:{VCS+4*b+3}], v26 offset:{64*b}', tag='tst')
    a('v_and_b32 v27, 15, v1')
    a('v_lshlrev_b32 v27, 3, v27')
    a('s_lshl_b32 s17, s15, 8')
    a(f's_add_u32 s17, s17, {STL}')
    a('v_add_u32 v27, s17, v27')
    for i in range(2):
        a(f'ds_read_b64 v[{VT_+2*i}:{VT_+2*i+1}], v27 offset:{i*128}', tag='tst')
    a.wait(lg_all=True)
    for i in range(2):
        a(f'v_mul_f32 v{VT_+4+i}, {f32hex(-LOG2E)}, v{VT_+2*i+1}')
    a('s_lshl_b32 s17, s13, 3')
    a('s_lshl_b32 s18, s15, 1')
    a('s_add_u32 s17, s17, s18')
    a('s_mul_i32 s17, s17, 48')
    a('s_mul_i32 s18, s14, 3')
    a('s_add_u32 s17, s17, s18')
    a('s_lshl_b32 s17, s17, 10')
    a(f's_add_u32 s17, s17, {HF}')
    a(f's_add_u32 s18, s17, {48*1024}')
    for i in range(2):
        for fg in range(3):
            t = VT_ + 8 + ((i * 3 + fg) & 1) * 4
            for tt in range(2):
                ag, au = g.acc(i, fg * 4 + tt), g.acc(i, fg * 4 + 2 + tt)
                cg, cu = VCS + 4 * (fg * 4 + tt), VCS + 4 * (fg * 4 + 2 + tt)
                for r in range(4):
                    a(f'v_fma_f32 v{ag+r}, -v{VT_+2*i}, v{cg+r}, v{ag+r}')
                    a(f'v_mul_f32 v{ag+r}, v{VT_+4+i}, v{ag+r}')
                    a(f'v_exp_f32 v{ag+r}, v{ag+r}')
                    a(f'v_fma_f32 v{au+r}, -v{VT_+2*i}, v{cu+r}, v{au+r}')
                    a(f'v_mul_f32 v{au+r}, v{VT_+2*i+1}, v{au+r}')
                    a(f'v_add_f32 v{ag+r}, 1.0, v{ag+r}')
                    a(f'v_rcp_f32 v{ag+r}, v{ag+r}')
                for r in range(4):
                    a(f'v_mul_f32 v{au+r}, v{au+r}, v{ag+r}')
                a(f'v_cvt_pk_bf16_f32 v{t+2*tt}, v{au}, v{au+1}')
                a(f'v_cvt_pk_bf16_f32 v{t+2*tt+1}, v{au+2}, v{au+3}')
            a(f'buffer_store_dwordx4 v[{t}:{t+3}], v{g.v_l16}, s[4:7], s{17+i} offen offset:{fg*1024}')
    if STAMP == name:
        a.wait(vm_all=True)
        stamp(a, name)
        stamp_out(a, name)
    a.label(f'{name}_end')
    a('s_endpgm')
    kernels.append((name, MB * NB, 256 + 64 * NL, lds, g.vend, 100, a.text()))


TR_ROLES = [
    ('wo', 80, 16, 640, 640, 'A', WO_),
    ('wg', 80, 32, 640, 1536, 'G', WGU),
    ('wu', 80, 40, 640, 1536, 'U', WGU),
    ('wd', 192, 48, 1536, 640, 'A', WD_),
]


def tr_dma(a, role, start, swave, vl16, lbase):
    lab, nsl, slot, K, N, kind, dst = role
    RB = N * 2
    a(f's_load_dwordx2 s[40:41], s[0:1], {slot}')
    a(f's_sub_u32 s44, s2, {start}')
    if lab == 'wo':
        a('s_lshr_b32 s45, s44, 1')
        a('s_mul_i32 s45, s45, 20')
        a('s_and_b32 s46, s44, 1')
        a('s_lshl_b32 s46, s46, 2')
        a('s_add_u32 s45, s45, s46')
        a('s_add_u32 s46, s45, 8')
        a('s_sub_u32 s47, s44, 64')
        a('s_mul_i32 s47, s47, 40')
        a('s_add_u32 s47, s47, 16')
        a('s_add_u32 s48, s47, 20')
        a('s_cmp_lt_u32 s44, 64')
        a('s_cselect_b32 s45, s45, s47')
        a('s_cselect_b32 s46, s46, s48')
    else:
        a('s_lshl_b32 s45, s44, 3')
        a('s_add_u32 s46, s45, 4')
    a(f's_mul_i32 s45, s45, {RB}')
    a(f's_mul_i32 s46, s46, {RB}')
    a('s_waitcnt lgkmcnt(0)')
    a.lgq = []
    fin_srd(a, 40, K * N * 2)
    nch = 4 * RB // 1024
    tot = 2 * nch
    a(f's_lshl_b32 s47, s{swave}, 10')
    for i in range((tot + 3) // 4):
        a(f's_add_u32 s48, s47, {4096*i}')
        if 4 * i + 3 >= tot:
            a(f's_min_u32 s48, s48, {(tot-1)*1024}')
        a(f's_add_u32 m0, s48, {lbase}')
        a(f's_sub_u32 s49, s48, {nch*1024}')
        a('s_add_u32 s49, s49, s46')
        a('s_add_u32 s50, s48, s45')
        a(f's_cmp_lt_u32 s48, {nch*1024}')
        a('s_cselect_b32 s49, s50, s49')
        a(f'buffer_load_dwordx4 v{vl16}, s[40:43], s49 offen lds', tag='w')


def tr_out(a, role, swave, vlane, lbase, V0):
    lab, nsl, slot, K, N, kind, dst = role
    KT = K // 32
    RB = N * 2
    NTL = N // 16
    v4, v5, v6, v7 = V0, V0 + 1, V0 + 2, V0 + 3
    a(f'v_lshrrev_b32 v{v4}, 4, v{vlane}')
    a(f'v_bfe_u32 v{v5}, v{vlane}, 2, 2')
    a(f'v_and_b32 v{v6}, 3, v{vlane}')
    a(f'v_mul_u32_u24 v{v5}, {RB}, v{v5}')
    a(f'v_add_u32 v{v5}, {lbase}, v{v5}')
    a(f'v_and_b32 v{v7}, 15, v{vlane}')
    a(f'v_lshlrev_b32 v{v7}, 4, v{v7}')
    a('s_lshr_b32 s45, s44, 2')
    a('s_lshl_b32 s45, s45, 10')
    a('s_and_b32 s46, s44, 3')
    a('s_lshl_b32 s46, s46, 8')
    a('s_add_u32 s45, s45, s46')
    a(f's_add_u32 s45, s45, {dst}')
    a(f's_lshl_b32 s46, s{swave}, 2')
    a(f'v_add_u32 v{v4}, s46, v{v4}')
    nit = (NTL + 15) // 16
    for it in range(nit):
        vb = V0 + 4 + 12 * (it % 3)
        a(f'v_add_u32 v{vb}, {16*it}, v{v4}')
        if 16 * it + 15 >= NTL:
            a(f'v_min_u32 v{vb}, {NTL-1}, v{vb}')
        src_col(a, kind, vb, v6, vb + 1, vb + 2, vb + 3, vb + 4)
        a(f'v_lshl_add_u32 v{vb+1}, v{vb+1}, 1, v{v5}')
        a(f'ds_read_b64_tr_b16 v[{vb+8}:{vb+9}], v{vb+1}', tag='t')
        a(f'ds_read_b64_tr_b16 v[{vb+10}:{vb+11}], v{vb+1} offset:{4*RB}', tag='t')
        a(f'v_mul_u32_u24 v{vb}, {KT*1024}, v{vb}')
        a(f'v_add_u32 v{vb}, v{vb}, v{v7}')
        a.wait(lg_all=True)
        a(f'buffer_store_dwordx4 v[{vb+8}:{vb+11}], v{vb}, s[4:7], s45 offen')


def tr_dispatch(a, name, tag, fn):
    starts = []
    base = 0
    for r in TR_ROLES:
        starts.append(base)
        base += r[1]
    Lend = f'{name}_{tag}_end'
    a(f's_cmp_ge_u32 s2, {base}')
    a.branch(f's_cbranch_scc1 {Lend}')
    for i in reversed(range(1, len(TR_ROLES))):
        a(f's_cmp_ge_u32 s2, {starts[i]}')
        a.branch(f's_cbranch_scc1 {name}_{tag}_{TR_ROLES[i][0]}')
    for i, r in enumerate(TR_ROLES):
        a.label(f'{name}_{tag}_{r[0]}')
        fn(r, starts[i])
        if i + 1 < len(TR_ROLES):
            a.branch(f's_branch {Lend}')
    a.label(Lend)


def gen_attn(name, with_tr=False):
    a = Asm()
    NWG = 512
    begin(a, name)
    a(f's_cmp_ge_u32 s2, {NWG}')
    a.branch(f's_cbranch_scc1 {name}_end')
    ws_srd(a, 4)
    SB = 16
    OB = 160
    KV = 176
    QB = 248
    L_KM, L_KT, L_V = 0, 12 * 1024, 15 * 1024
    lds = L_V + 24 * 1024
    L_TR = lds
    if with_tr:
        lds += 24 * 1024
    a('v_lshrrev_b32 v2, 6, v0')
    a('v_readfirstlane_b32 s12, v2')
    a('v_and_b32 v1, 63, v0')
    a('v_and_b32 v3, 31, v1')
    a('v_lshrrev_b32 v4, 5, v1')
    a('v_lshlrev_b32 v5, 5, v3')
    a('v_lshlrev_b32 v6, 4, v4')
    a('v_add_u32 v5, v5, v6')
    a('v_lshlrev_b32 v7, 3, v3')
    a('v_min_u32 v8, 20, v3')
    a('v_lshlrev_b32 v8, 5, v8')
    a('v_add_u32 v8, v8, v6')
    a('v_lshlrev_b32 v15, 4, v1')
    a('s_and_b32 s13, s2, 7')
    a('s_lshl_b32 s13, s13, 2')
    a('s_lshr_b32 s14, s2, 7')
    a('s_add_u32 s13, s13, s14')
    a('s_lshr_b32 s14, s2, 3')
    a('s_and_b32 s14, s14, 15')
    a('s_lshl_b32 s23, s14, 7')
    a('s_lshl_b32 s15, s12, 5')
    a('s_add_u32 s15, s15, s23')
    a('s_lshl_b32 s16, s13, 11')
    a('s_waitcnt lgkmcnt(0)')
    fin_srd(a, 4, WS_SIZE)
    stamp(a, name)
    for i in range(3):
        a(f's_add_i32 s19, s15, {-256 + 128*i}')
        a('s_max_i32 s19, s19, 0')
        a('s_add_u32 s19, s19, s16')
        a('s_lshl_b32 s20, s19, 5')
        a(f's_add_u32 s20, s20, {KM}')
        a(f's_lshl_b32 s21, s12, 10')
        a(f's_add_u32 m0, s21, {L_KM + 4096*i}')
        a('buffer_load_dwordx4 v5, s[4:7], s20 offen lds', tag='k')
    a('s_min_u32 s21, s12, 2')
    a('s_lshl_b32 s19, s21, 7')
    a('s_add_u32 s19, s19, s23')
    a('s_add_i32 s19, s19, -256')
    a('s_max_i32 s19, s19, 0')
    a('s_add_u32 s19, s19, s16')
    a('s_lshl_b32 s20, s19, 3')
    a(f's_add_u32 s20, s20, {KT_}')
    a('s_lshl_b32 s21, s21, 10')
    a(f's_add_u32 m0, s21, {L_KT}')
    a('buffer_load_dwordx4 v15, s[4:7], s20 offen lds', tag='k')
    a('s_add_u32 s17, s16, s15')
    a('s_lshl_b32 s18, s17, 5')
    a(f's_add_u32 s18, s18, {QM}')
    a(f'buffer_load_dwordx4 v[{QB}:{QB+3}], v5, s[4:7], s18 offen', tag='q')
    a('s_lshl_b32 s18, s17, 3')
    a(f's_add_u32 s18, s18, {QT}')
    a(f'buffer_load_dwordx2 v[{QB+4}:{QB+5}], v7, s[4:7], s18 offen', tag='q')
    a('s_lshl_b32 s24, s13, 17')
    a(f's_add_u32 s24, s24, {VT}')
    a('s_lshl_b32 s25, s12, 4')
    a('s_add_u32 s25, s25, s23')
    for i in range(6):
        a(f's_add_i32 s19, s25, {-256 + 64*i}')
        a('s_max_i32 s19, s19, 0')
        a('s_lshl_b32 s19, s19, 6')
        a('s_add_u32 s19, s19, s24')
        a(f's_lshl_b32 s21, s12, 10')
        a(f's_add_u32 m0, s21, {L_V + 4096*i}')
        a('buffer_load_dwordx4 v8, s[4:7], s19 offen lds', tag='v')
    NEG = '0xff7fffff'
    a('v_lshlrev_b32 v9, 2, v4')
    a('v_sub_u32 v9, v3, v9')
    a(f'v_mov_b32 v10, {NEG}')
    for r in range(16):
        c = 8 * (r >> 2) + (r & 3)
        a(f'v_cmp_le_i32 vcc, {c}, v9')
        a(f'v_cndmask_b32_e64 v{SB+8*16+r}, v10, 0, vcc')
        a(f'v_cndmask_b32_e64 v{SB+r}, 0, v10, vcc')
    a('s_lshl_b32 s21, s12, 10')
    a('v_add_u32 v13, s21, v15')
    a('s_lshl_b32 s21, s12, 8')
    a('v_add_u32 v14, s21, v7')
    a('s_lshl_b32 s21, s12, 11')
    a('v_add_u32 v2, s21, v15')
    a.wait(vm='q')
    a('s_barrier')
    stamp(a, name)
    if with_tr:
        tr_dispatch(a, name, 'd', lambda r, st: tr_dma(a, r, st, 12, 15, L_TR))
    for t in range(9):
        a(f'ds_read_b128 v[{KV+8*t}:{KV+8*t+3}], v13 offset:{L_KM + 1024*t}', tag=('k', t))
        a(f'ds_read_b64 v[{KV+8*t+4}:{KV+8*t+5}], v14 offset:{L_KT + 256*t}', tag=('k', t))
        if t == 6:
            break
    a('v_cmp_eq_u32 vcc, 0, v4')
    a(f'v_cndmask_b32_e64 v{QB+4}, 0, v{QB+4}, vcc')
    a(f'v_cndmask_b32_e64 v{QB+5}, 0, v{QB+5}, vcc')
    for t in range(9):
        a.wait(lg=('k', t))
        s0 = SB + 16 * t
        c = f'v[{s0}:{s0+15}]' if t in (0, 8) else '0'
        a(f'v_mfma_f32_32x32x16_bf16 v[{s0}:{s0+15}], v[{KV+8*t}:{KV+8*t+3}], v[{QB}:{QB+3}], {c}')
        a(f'v_mfma_f32_32x32x8_bf16 v[{s0}:{s0+15}], v[{KV+8*t+4}:{KV+8*t+5}], v[{QB+4}:{QB+5}], v[{s0}:{s0+15}]')
        if t < 2:
            t2 = 7 + t
            a(f'ds_read_b128 v[{KV+8*t2}:{KV+8*t2+3}], v13 offset:{L_KM + 1024*t2}', tag=('k', t2))
            a(f'ds_read_b64 v[{KV+8*t2+4}:{KV+8*t2+5}], v14 offset:{L_KT + 256*t2}', tag=('k', t2))
    for t in range(8):
        L = a.newlabel('skip')
        a(f's_cmp_ge_i32 s15, {256 - 32*t}')
        a.branch(f's_cbranch_scc1 {L}')
        for r in range(16):
            a(f'v_mov_b32 v{SB+16*t+r}, v10')
        a.label(L)
    stamp(a, name)
    regs = [SB + i for i in range(144)]
    a(f'v_max3_f32 v11, v{regs[0]}, v{regs[1]}, v{regs[2]}')
    a(f'v_max3_f32 v12, v{regs[3]}, v{regs[4]}, v{regs[5]}')
    i = 6
    k = 0
    while i + 1 < 144:
        d = 11 + (k & 1)
        a(f'v_max3_f32 v{d}, v{d}, v{regs[i]}, v{regs[i+1]}')
        i += 2
        k += 1
    a('v_max_f32 v11, v11, v12')
    a('v_mov_b32 v12, v11')
    a('v_permlane32_swap_b32 v11, v12')
    a('v_max_f32 v11, v11, v12')
    cs = (DH ** -0.5) * LOG2E
    a(f's_mov_b32 s22, {f32hex(cs)}')
    a('v_mul_f32 v11, s22, v11')
    a.wait(vm_all=True)
    a('s_barrier')
    for t in range(9):
        s0 = SB + 16 * t
        for s in range(2):
            a(f'ds_read_b128 v[{KV+8*t+4*s}:{KV+8*t+4*s+3}], v2 offset:{L_V + 2048*t + 1024*s}', tag=('v', t))
        for r in range(16):
            a(f'v_fma_f32 v{s0+r}, v{s0+r}, s22, -v11')
        for r in range(16):
            a(f'v_exp_f32 v{s0+r}, v{s0+r}')
        for r in range(8):
            a(f'v_cvt_pk_bf16_f32 v{s0+r}, v{s0+2*r}, v{s0+2*r+1}')
        a.wait(lg=('v', t))
        for s in range(2):
            c = '0' if (t == 0 and s == 0) else f'v[{OB}:{OB+15}]'
            a(f'v_mfma_f32_32x32x16_bf16 v[{OB}:{OB+15}], v[{KV+8*t+4*s}:{KV+8*t+4*s+3}], v[{s0+4*s}:{s0+4*s+3}], {c}')
    stamp(a, name)
    a(f'v_mov_b32 v11, v{OB+8}')
    a(f'v_mov_b32 v12, v{OB+8}')
    a('v_permlane32_swap_b32 v11, v12')
    a('v_rcp_f32 v12, v12')
    for r in range(12):
        a(f'v_mul_f32 v{OB+r}, v{OB+r}, v12')
    for r in range(6):
        a(f'v_cvt_pk_bf16_f32 v{OB+r}, v{OB+2*r}, v{OB+2*r+1}')
    a('v_lshrrev_b32 v13, 4, v3')
    a(f'v_mul_u32_u24 v13, {20*1024}, v13')
    a('v_and_b32 v14, 15, v3')
    a('v_lshlrev_b32 v14, 4, v14')
    a('v_add_u32 v13, v13, v14')
    a('v_lshlrev_b32 v14, 8, v4')
    a('v_add_u32 v14, v14, v13')
    a('s_lshr_b32 s17, s15, 4')
    a(f's_mul_i32 s17, s17, {20*1024}')
    a(f's_add_u32 s17, s17, {OF}')
    a('s_lshr_b32 s18, s13, 1')
    a('s_lshl_b32 s18, s18, 10')
    a('s_and_b32 s19, s13, 1')
    a('s_lshl_b32 s20, s19, 9')
    a('s_add_u32 s18, s18, s20')
    a('s_add_u32 s18, s18, s17')
    a(f'buffer_store_dwordx4 v[{OB}:{OB+3}], v14, s[4:7], s18 offen')
    a('s_lshr_b32 s18, s13, 3')
    a('s_add_u32 s18, s18, 16')
    a('s_lshl_b32 s18, s18, 10')
    a('s_lshr_b32 s20, s13, 1')
    a('s_and_b32 s20, s20, 3')
    a('s_lshl_b32 s20, s20, 8')
    a('s_add_u32 s18, s18, s20')
    a('s_lshl_b32 s19, s19, 3')
    a('s_add_u32 s18, s18, s19')
    a('s_add_u32 s18, s18, s17')
    a('s_mov_b32 exec_hi, 0')
    a(f'buffer_store_dwordx2 v[{OB+4}:{OB+5}], v13, s[4:7], s18 offen')
    if with_tr:
        a('s_mov_b64 exec, -1')
        tr_dispatch(a, name, 'o', lambda r, st: tr_out(a, r, 12, 1, L_TR, 16))
    if STAMP == name:
        a.wait(vm_all=True)
        stamp(a, name)
        stamp_out(a, name)
    a.label(f'{name}_end')
    a('s_endpgm')
    kernels.append((name, NWG, 256, lds, 256, 100, a.text()))


def magic(d):
    return (2 ** 32 + d - 1) // d


def map_tile(a, kind, vn0, vT, vi0, t0, t1, t2):
    if kind in 'AGU':
        a(f'v_lshrrev_b32 v{t0}, 5, v{vn0}')
        a(f'v_bfe_u32 v{t1}, v{vn0}, 2, 1')
        a(f'v_bfe_u32 v{vi0}, v{vn0}, 3, 2')
        a(f'v_lshlrev_b32 v{vi0}, 2, v{vi0}')
        sh = 1 if kind == 'A' else 2
        a(f'v_lshlrev_b32 v{vT}, {sh}, v{t0}')
        a(f'v_add_u32 v{vT}, v{vT}, v{t1}')
        if kind == 'U':
            a(f'v_add_u32 v{vT}, 2, v{vT}')
    else:
        a(f's_mov_b32 s30, {magic(640)}')
        a(f'v_mul_hi_u32 v{t0}, v{vn0}, s30')
        a(f'v_mul_u32_u24 v{t1}, 640, v{t0}')
        a(f'v_sub_u32 v{t1}, v{vn0}, v{t1}')
        a('s_mov_b32 s30, 3277')
        a(f'v_mul_lo_u32 v{t2}, v{t1}, s30')
        a(f'v_lshrrev_b32 v{t2}, 16, v{t2}')
        a(f'v_mul_u32_u24 v{vi0}, 20, v{t2}')
        a(f'v_sub_u32 v{vi0}, v{t1}, v{vi0}')
        a(f'v_cmp_gt_u32 vcc, 16, v{vi0}')
        a(f'v_and_b32 v{vT}, 1, v{t2}')
        a(f'v_lshlrev_b32 v{vT}, 4, v{vT}')
        a(f'v_add_u32 v{vi0}, v{vi0}, v{vT}')
        a(f'v_and_b32 v{vT}, 7, v{t2}')
        a(f'v_lshlrev_b32 v{vT}, 2, v{vT}')
        a(f'v_cndmask_b32 v{vi0}, v{vT}, v{vi0}, vcc')
        a(f'v_lshrrev_b32 v{vT}, 3, v{t2}')
        a(f'v_add_u32 v{vT}, 16, v{vT}')
        a(f'v_lshrrev_b32 v{t2}, 1, v{t2}')
        a(f'v_cndmask_b32 v{t2}, v{vT}, v{t2}, vcc')
        a(f'v_lshlrev_b32 v{vT}, 1, v{t2}')
        a(f'v_bfe_u32 v{t2}, v{vi0}, 2, 1')
        a(f'v_add_u32 v{vT}, v{vT}, v{t2}')
        a(f'v_mul_u32_u24 v{t2}, 40, v{t0}')
        a(f'v_add_u32 v{vT}, v{vT}, v{t2}')
        a(f'v_lshrrev_b32 v{vi0}, 3, v{vi0}')
        a(f'v_lshlrev_b32 v{vi0}, 2, v{vi0}')
        a(f'v_cmp_eq_u32 vcc, 2, v{t0}')
        a(f'v_lshrrev_b32 v{t2}, 4, v{t1}')
        a(f'v_add_u32 v{t2}, 80, v{t2}')
        a(f'v_cndmask_b32 v{vT}, v{vT}, v{t2}, vcc')
        a(f'v_and_b32 v{t2}, 15, v{t1}')
        a(f'v_cndmask_b32 v{vi0}, v{vi0}, v{t2}, vcc')


def src_col(a, kind, vT, vc, vout, t0, t1, t2):
    if kind in 'AGU':
        a(f'v_lshrrev_b32 v{t0}, 1, v{vT}')
        a(f'v_and_b32 v{t1}, 1, v{vT}')
        a(f'v_lshlrev_b32 v{vout}, 5, v{t0}')
        a(f'v_lshl_add_u32 v{vout}, v{vc}, 3, v{vout}')
        a(f'v_lshl_add_u32 v{vout}, v{t1}, 2, v{vout}')
        if kind != 'A':
            a(f'v_lshlrev_b32 v{vT}, 2, v{t0}')
            a(f'v_add_u32 v{vT}, v{vT}, v{t1}')
            if kind == 'U':
                a(f'v_add_u32 v{vT}, 2, v{vT}')
    else:
        a(f'v_cmp_le_u32 vcc, 40, v{vT}')
        a(f'v_cndmask_b32_e64 v{t0}, 0, 1, vcc')
        a(f'v_cmp_le_u32 vcc, 80, v{vT}')
        a(f'v_cndmask_b32_e64 v{t0}, v{t0}, 2, vcc')
        a(f'v_mul_u32_u24 v{t1}, 40, v{t0}')
        a(f'v_sub_u32 v{t1}, v{vT}, v{t1}')
        a(f'v_and_b32 v{t2}, 1, v{t1}')
        a(f'v_lshlrev_b32 v{t2}, 2, v{t2}')
        a(f'v_lshl_add_u32 v{t2}, v{vc}, 3, v{t2}')
        a(f'v_and_b32 v{vout}, -2, v{t1}')
        a(f'v_lshrrev_b32 v{t2+1}, 4, v{t2}')
        a(f'v_add_u32 v{vout}, v{vout}, v{t2+1}')
        a(f'v_mul_u32_u24 v{vout}, 20, v{vout}')
        a(f'v_and_b32 v{t2+1}, 15, v{t2}')
        a(f'v_add_u32 v{vout}, v{vout}, v{t2+1}')
        a(f'v_lshrrev_b32 v{t2+1}, 1, v{t1}')
        a(f'v_subrev_u32 v{t2+1}, 16, v{t2+1}')
        a(f'v_lshlrev_b32 v{t2+1}, 3, v{t2+1}')
        a(f'v_lshrrev_b32 v{t2}, 2, v{t2}')
        a(f'v_add_u32 v{t2+1}, v{t2+1}, v{t2}')
        a(f'v_mul_u32_u24 v{t2+1}, 20, v{t2+1}')
        a(f'v_add_u32 v{t2+1}, 16, v{t2+1}')
        a(f'v_cmp_le_u32 vcc, 32, v{t1}')
        a(f'v_cndmask_b32 v{vout}, v{vout}, v{t2+1}, vcc')
        a(f'v_lshlrev_b32 v{t2+1}, 4, v{t1}')
        a(f'v_lshl_add_u32 v{t2+1}, v{vc}, 2, v{t2+1}')
        a(f'v_cmp_eq_u32 vcc, 2, v{t0}')
        a(f'v_cndmask_b32 v{vout}, v{vout}, v{t2+1}, vcc')
        a(f'v_mul_u32_u24 v{t0}, 640, v{t0}')
        a(f'v_add_u32 v{vout}, v{vout}, v{t0}')


def gen_prep(name):
    a = Asm()
    begin(a, name)
    roles = [
        ('wqkv', 80, 8, 640, 1920, 'Q', WQKV),
    ]
    cs_roles = [('csq', 30, 8, 1920, 'Q', CSQ), ('csg', 24, 32, 1536, 'G', CSG), ('csu', 24, 40, 1536, 'U', CSG)]
    NX = 128
    seq = [('x', NX)] + [(r[0], r[1]) for r in cs_roles] + [(r[0], r[1]) for r in roles]
    NWG = sum(n for _, n in seq)
    a(f's_cmp_ge_u32 s2, {NWG}')
    a.branch(f's_cbranch_scc1 {name}_end')
    ws_srd(a, 4)
    base = 0
    starts = {}
    for lab, n in seq:
        starts[lab] = base
        base += n
    for lab, _ in reversed(seq[1:]):
        a(f's_cmp_ge_u32 s2, {starts[lab]}')
        a.branch(f's_cbranch_scc1 {name}_{lab}')
    a.label(f'{name}_x')
    if os.environ.get('PREP_ONLY', 'x') != 'x':
        a('s_endpgm')
    a('s_load_dwordx2 s[8:9], s[0:1], 0')
    a('v_lshrrev_b32 v2, 6, v0')
    a('v_readfirstlane_b32 s12, v2')
    a('v_and_b32 v1, 63, v0')
    a('s_mov_b32 s14, s2')
    a('v_and_b32 v3, 15, v1')
    a('v_mul_u32_u24 v3, 1280, v3')
    a('v_lshrrev_b32 v4, 4, v1')
    a('v_lshlrev_b32 v4, 4, v4')
    a('v_add_u32 v3, v3, v4')
    a(f's_mul_i32 s15, s14, {16*1280}')
    a('s_mul_i32 s16, s12, 320')
    a('s_add_u32 s15, s15, s16')
    a('v_lshlrev_b32 v5, 4, v1')
    a('s_waitcnt lgkmcnt(0)')
    fin_srd(a, 4, WS_SIZE)
    fin_srd(a, 8, S * D * 2)
    for kt in range(5):
        a(f'buffer_load_dwordx4 v[{16+4*kt}:{19+4*kt}], v3, s[8:11], s15 offen offset:{64*kt}', tag=('x', kt))
    a(f's_mul_i32 s16, s14, {20*1024}')
    a(f's_add_u32 s16, s16, {XF[0]}')
    a(f's_mul_i32 s17, s12, {5*1024}')
    a('s_add_u32 s16, s16, s17')
    a(f's_add_u32 s17, s16, 4096')
    a('s_lshl_b32 s18, s2, 8')
    a('v_add_u32 v6, s18, v0')
    a('v_lshrrev_b32 v7, 1, v6')
    a('v_lshlrev_b32 v7, 10, v7')
    a('v_and_b32 v6, 1, v6')
    a('v_lshlrev_b32 v6, 4, v6')
    a('v_add_u32 v7, v7, v6')
    for i in range(4):
        a(f'v_mov_b32 v{40+i}, 0x3f803f80')
    a(f's_mov_b32 s18, {VT + 640}')
    Lx = a.newlabel('noones')
    a('s_cmp_ge_u32 s2, 32')
    a.branch(f's_cbranch_scc1 {Lx}')
    a('buffer_store_dwordx4 v[40:43], v7, s[4:7], s18 offen')
    a.label(Lx)
    a('v_mov_b32 v8, 0')
    a('v_mov_b32 v9, 0')
    a('s_waitcnt vmcnt(0)')
    a.vmq = []
    for kt in range(5):
        if kt < 4:
            a(f'buffer_store_dwordx4 v[{16+4*kt}:{19+4*kt}], v5, s[4:7], s16 offen offset:{1024*kt}')
        else:
            a(f'buffer_store_dwordx4 v[{16+4*kt}:{19+4*kt}], v5, s[4:7], s17 offen')
        for w in range(4):
            a(f'v_lshlrev_b32 v12, 16, v{16+4*kt+w}')
            a(f'v_and_b32 v13, 0xffff0000, v{16+4*kt+w}')
            a('v_add_f32 v8, v8, v12')
            a('v_fma_f32 v9, v12, v12, v9')
            a('v_add_f32 v8, v8, v13')
            a('v_fma_f32 v9, v13, v13, v9')
    for sw in ('v_permlane16_swap_b32', 'v_permlane32_swap_b32'):
        for r in (8, 9):
            a(f'v_mov_b32 v12, v{r}')
            a(f'{sw} v12, v{r}')
            a(f'v_add_f32 v{r}, v{r}, v12')
    a('v_mov_b32 v10, 0')
    a('v_mov_b32 v11, 0')
    a('v_lshlrev_b32 v6, 6, v1')
    a('s_lshl_b32 s17, s14, 10')
    a('s_lshl_b32 s18, s12, 3')
    a('s_add_u32 s17, s17, s18')
    a(f's_add_u32 s17, s17, {ST[0]}')
    a('s_mov_b64 exec, 0xffff')
    a('buffer_store_dwordx2 v[8:9], v6, s[4:7], s17 offen')
    a('buffer_store_dwordx2 v[10:11], v6, s[4:7], s17 offen offset:32')
    a('s_endpgm')
    for (lab, nwg, slot, K, N, kind, dst) in roles:
        a.label(f'{name}_{lab}')
        a.vmq, a.lgq = [], []
        if os.environ.get('PREP_ONLY', lab) != lab:
            a('s_endpgm')
        a(f's_load_dwordx2 s[8:9], s[0:1], {slot}')
        KT = K // 32
        RB = N * 2
        NTL = N // 16
        a('v_lshrrev_b32 v2, 6, v0')
        a('v_readfirstlane_b32 s12, v2')
        a('v_and_b32 v1, 63, v0')
        a('v_lshlrev_b32 v3, 4, v1')
        a(f's_sub_u32 s13, s2, {starts[lab]}')
        if lab == 'wo':
            a('s_lshr_b32 s14, s13, 1')
            a('s_mul_i32 s14, s14, 20')
            a('s_and_b32 s15, s13, 1')
            a('s_lshl_b32 s15, s15, 2')
            a('s_add_u32 s14, s14, s15')
            a('s_add_u32 s15, s14, 8')
            a('s_sub_u32 s16, s13, 64')
            a('s_mul_i32 s16, s16, 40')
            a('s_add_u32 s16, s16, 16')
            a('s_add_u32 s17, s16, 20')
            a('s_cmp_lt_u32 s13, 64')
            a('s_cselect_b32 s14, s14, s16')
            a('s_cselect_b32 s15, s15, s17')
        else:
            a('s_lshl_b32 s14, s13, 3')
            a('s_add_u32 s15, s14, 4')
        a(f's_mul_i32 s14, s14, {RB}')
        a(f's_mul_i32 s15, s15, {RB}')
        a('s_waitcnt lgkmcnt(0)')
        fin_srd(a, 4, WS_SIZE)
        fin_srd(a, 8, K * N * 2)
        nch = 4 * RB // 1024
        tot = 2 * nch
        a('s_lshl_b32 s16, s12, 10')
        for i in range((tot + 3) // 4):
            a(f's_add_u32 s17, s16, {4096*i}')
            if 4 * i + 3 >= tot:
                a(f's_min_u32 s17, s17, {(tot-1)*1024}')
            a('s_mov_b32 m0, s17')
            a(f's_sub_u32 s18, s17, {nch*1024}')
            a('s_add_u32 s18, s18, s15')
            a('s_add_u32 s19, s17, s14')
            a(f's_cmp_lt_u32 s17, {nch*1024}')
            a('s_cselect_b32 s18, s19, s18')
            a('buffer_load_dwordx4 v3, s[8:11], s18 offen lds', tag='w')
        a('v_lshrrev_b32 v4, 4, v1')
        a('v_bfe_u32 v5, v1, 2, 2')
        a('v_and_b32 v6, 3, v1')
        a(f'v_mul_u32_u24 v5, {RB}, v5')
        a('v_and_b32 v7, 15, v1')
        a('v_lshlrev_b32 v7, 4, v7')
        a('s_lshr_b32 s20, s13, 2')
        a('s_lshl_b32 s20, s20, 10')
        a('s_and_b32 s21, s13, 3')
        a('s_lshl_b32 s21, s21, 8')
        a('s_add_u32 s20, s20, s21')
        a(f's_add_u32 s20, s20, {dst}')
        a('s_lshl_b32 s21, s12, 2')
        a('v_add_u32 v4, s21, v4')
        a.wait(vm_all=True)
        a('s_barrier')
        nit = (NTL + 15) // 16
        for it in range(nit):
            vb = 16 + 12 * (it & 1)
            a(f'v_add_u32 v{vb}, {16*it}, v4')
            if 16 * it + 15 >= NTL:
                a(f'v_min_u32 v{vb}, {NTL-1}, v{vb}')
            src_col(a, kind, vb, 6, vb + 1, vb + 2, vb + 3, vb + 4)
            a(f'v_lshl_add_u32 v{vb+1}, v{vb+1}, 1, v5')
            a(f'ds_read_b64_tr_b16 v[{vb+8}:{vb+9}], v{vb+1}', tag='t')
            a(f'ds_read_b64_tr_b16 v[{vb+10}:{vb+11}], v{vb+1} offset:{4*RB}', tag='t')
            a(f'v_mul_u32_u24 v{vb}, {KT*1024}, v{vb}')
            a(f'v_add_u32 v{vb}, v{vb}, v7')
            a.wait(lg_all=True)
            a(f'buffer_store_dwordx4 v[{vb+8}:{vb+11}], v{vb}, s[4:7], s20 offen')
        a('s_endpgm')
    for (lab, nwg, slot, N, kind, dst) in cs_roles:
        a.label(f'{name}_{lab}')
        a.vmq, a.lgq = [], []
        if os.environ.get('PREP_ONLY', lab) != lab:
            a('s_endpgm')
        a(f's_load_dwordx2 s[8:9], s[0:1], {slot}')
        a(f's_sub_u32 s12, s2, {starts[lab]}')
        a('s_lshl_b32 s12, s12, 6')
        a('v_lshrrev_b32 v1, 4, v0')
        a('v_and_b32 v2, 15, v0')
        a(f'v_mul_u32_u24 v3, {40}, v1')
        a(f's_mov_b32 s13, {N*2}')
        a('v_mul_lo_u32 v3, v3, s13')
        a('v_lshlrev_b32 v4, 3, v2')
        a('v_add_u32 v3, v3, v4')
        a('s_lshl_b32 s14, s12, 1')
        a('v_add_u32 v3, s14, v3')
        a('s_waitcnt lgkmcnt(0)')
        fin_srd(a, 4, WS_SIZE)
        fin_srd(a, 8, 640 * N * 2)
        for r in range(40):
            a(f's_mov_b32 s{14+(r&3)}, {r*N*2}')
            a(f'buffer_load_dwordx2 v[{16+2*r}:{17+2*r}], v3, s[8:11], s{14+(r&3)} offen', tag=('c', r))
        for e in range(4):
            a(f'v_mov_b32 v{8+e}, 0')
        for r in range(40):
            a.wait(vm=('c', r))
            for w in range(2):
                a(f'v_lshlrev_b32 v12, 16, v{16+2*r+w}')
                a(f'v_and_b32 v13, 0xffff0000, v{16+2*r+w}')
                a(f'v_add_f32 v{8+2*w}, v{8+2*w}, v12')
                a(f'v_add_f32 v{9+2*w}, v{9+2*w}, v13')
        a('v_lshlrev_b32 v4, 4, v0')
        a('ds_write_b128 v4, v[8:11]')
        a.wait(lg_all=True)
        a('s_barrier')
        a('v_lshlrev_b32 v4, 2, v0')
        for kc in range(16):
            a(f'ds_read_b32 v{16+kc}, v4 offset:{kc*256}', tag='r')
        a('v_lshrrev_b32 v2, 2, v0')
        a('v_lshlrev_b32 v2, 2, v2')
        a('v_add_u32 v2, s12, v2')
        map_tile(a, kind, 2, 5, 6, 7, 8, 9)
        a('v_lshlrev_b32 v5, 4, v5')
        a('v_add_u32 v5, v5, v6')
        a('v_and_b32 v6, 3, v0')
        a('v_add_u32 v5, v5, v6')
        a('v_lshlrev_b32 v5, 2, v5')
        a.wait(lg_all=True)
        for kc in range(1, 16):
            a(f'v_add_f32 v16, v16, v{16+kc}')
        a(f's_mov_b32 s22, {dst}')
        a('v_cmp_gt_u32 vcc, 64, v0')
        a('s_and_saveexec_b64 s[24:25], vcc')
        a.branch(f's_cbranch_execz {name}_end')
        a('buffer_store_dword v16, v5, s[4:7], s22 offen')
        a('s_endpgm')
    a.label(f'{name}_end')
    a('s_endpgm')
    kernels.append((name, NWG, 256, 30720, 128, 40, a.text()))


def build():
    gen_prep('prep_kernel')
    gen_qkv('qkv1_kernel', XF[0], ST[0])
    gen_attn('attn1_kernel', with_tr=True)
    gen_attn('attn_kernel')
    gen_res('wo1_kernel', 640, OF, WO_, XF[0], XF[1], ST[1])
    gen_gu('gu1_kernel', XF[1], ST[1])
    gen_res('dn1_kernel', 1536, HF, WD_, XF[1], XF[2], ST[2])
    gen_qkv('qkv2_kernel', XF[2], ST[2])
    gen_res('wo2_kernel', 640, OF, WO_, XF[2], XF[3], ST[3])
    gen_gu('gu2_kernel', XF[3], ST[3])
    gen_res('dn2_kernel', 1536, HF, WD_, XF[3], None, None, final=True)
    order = ['prep_kernel', 'qkv1_kernel', 'attn1_kernel', 'wo1_kernel', 'gu1_kernel', 'dn1_kernel',
             'qkv2_kernel', 'attn_kernel', 'wo2_kernel', 'gu2_kernel', 'dn2_kernel']
    kd = {k[0]: k for k in kernels}
    hdr = open('interleave_layers__sliding_block__glu_gated_glu__prompt.s.ref').read().split('\n')
    out = [l for l in hdr if l.startswith(';') and '@launch' not in l and 'Override' not in l and 'grid=ceil' not in l]
    for n in order:
        k = kd[n]
        out.append(f'; @launch kernel={n} grid=({k[1]},1,1) block=({k[2]},1,1) lds={k[3]}')
    out.append('.amdgcn_target "amdgcn-amd-amdhsa--gfx950"')
    for k in kernels:
        out.append(k[6])
    out.append('.section .rodata,"a"')
    for k in kernels:
        nv = (k[4] + 7) // 8 * 8
        out.append('.p2align 6')
        out.append(f'.amdhsa_kernel {k[0]}')
        out.append(f'  .amdhsa_next_free_vgpr {nv}')
        out.append(f'  .amdhsa_next_free_sgpr {k[5]}')
        out.append(f'  .amdhsa_accum_offset {min(nv, 256)}')
        out.append('  .amdhsa_group_segment_fixed_size 0')
        out.append('  .amdhsa_kernarg_size 80')
        out.append('  .amdhsa_user_sgpr_count 2')
        out.append('  .amdhsa_user_sgpr_kernarg_segment_ptr 1')
        out.append('  .amdhsa_system_sgpr_workgroup_id_x 1')
        out.append('.end_amdhsa_kernel')
    open(os.environ.get('OUT', 'interleave_layers__sliding_block__glu_gated_glu__prompt.s'), 'w').write('\n'.join(out) + '\n')
    for k in kernels:
        print(k[0], 'grid', k[1], 'lds', k[3], 'vgpr', k[4])


if __name__ == '__main__':
    build()
```

```python
import sys, math
sys.path.insert(0, 'gen')
from asmlib import Asm

S, D, H, DH, F = 2048, 640, 32, 20, 1536
WQKV = 0x0
WO_ = 0x260000
WGU = 0x330000
WD_ = 0x6F0000
CSQ = 0x8D0000
CSG = 0x8D2000
XF = [0x900000, 0xC00000, 0xF00000, 0x1200000]
ST = [0x1500000 + i * 0x20000 for i in range(4)]
QM = 0x1600000
KM = 0x1800000
QT = 0x1A00000
KT_ = 0x1A80000
VT = 0x1B00000
OF = 0x1F00000
HF = 0x2200000
WS_SIZE = 0x10000000

LOG2E = 1.4426950408889634


def f32hex(x):
    import struct
    return '0x%08x' % struct.unpack('<I', struct.pack('<f', x))[0]


kernels = []
import os
STAMP = os.environ.get('STAMP', '')
stamp_n = [0]


def stamp(a, name):
    if STAMP != name:
        return
    i = stamp_n[0]
    stamp_n[0] += 1
    a(f's_memtime s[{80+2*i}:{81+2*i}]')
    a('s_waitcnt lgkmcnt(0)')


def stamp_out(a, name):
    if STAMP != name:
        return
    n = stamp_n[0]
    L = a.newlabel('so')
    a('s_mov_b64 exec, -1')
    a(f's_cmp_lg_u32 s2, {os.environ.get("STAMP_WG", "0")}')
    a.branch(f's_cbranch_scc1 {L}')
    a('s_load_dwordx2 s[76:77], s[0:1], 64')
    a('s_waitcnt lgkmcnt(0)')
    a('s_and_b32 s77, s77, 0xffff')
    a('s_mov_b32 s78, 256')
    a('s_mov_b32 s79, 0x00020000')
    a('v_lshrrev_b32 v0, 6, v0')
    a('v_lshlrev_b32 v0, 6, v0')
    for i in range(n):
        a(f'v_mov_b32 v1, s{80+2*i}')
        a(f'buffer_store_dword v1, v0, s[76:79], 0 offen offset:{4*i}')
    a.label(L)
    stamp_n[0] = 0


def begin(a, name):
    a.raw('.text')
    a.raw(f'.globl {name}')
    a.raw('.p2align 8')
    a.raw(f'.type {name},@function')
    a.raw(f'{name}:')


def ws_srd(a, sreg=4, slot=72, size=WS_SIZE):
    a(f's_load_dwordx2 s[{sreg}:{sreg+1}], s[0:1], {slot}')


def fin_srd(a, sreg, size):
    a(f's_and_b32 s{sreg+1}, s{sreg+1}, 0xffff')
    a(f's_mov_b32 s{sreg+2}, {size}')
    a(f's_mov_b32 s{sreg+3}, 0x00020000')


def R4(i):
    return f'v[{i}:{i+3}]' if i < 256 else f'a[{i-256}:{i-253}]'


def bf16r(a, v):
    a(f'v_cvt_pk_bf16_f32 v{v}, v{v}, v{v}')
    a(f'v_lshlrev_b32 v{v}, 16, v{v}')


class G:
    pass


NL = 2


def gemm_core(a, g, swap):
    KST, NS, KT = g.KST, g.NS, g.K // 32
    TB = KST * 1024
    SB = g.SB

    def read_list(t):
        st, kk = t // KST, t % KST
        sl = st % NS
        p = t & 1
        L = []
        for i in range(g.mtw):
            off = sl * SB + i * TB + kk * 1024
            L.append(lambda i=i, off=off: a(f'ds_read_b128 {R4(g.fa(p, i))}, v{g.v_a + (off >> 16)} offset:{off & 0xffff}', tag=('rd', t)))
        for b in range(g.ntw):
            off = sl * SB + (g.MT + b) * TB + kk * 1024
            L.append(lambda b=b, off=off: a(f'ds_read_b128 {R4(g.fb(p, b))}, v{g.v_b + (off >> 16)} offset:{off & 0xffff}', tag=('rd', t)))
        return L

    def mfmas(t, R):
        p = t & 1
        nm = g.mtw * g.ntw
        nr = len(R)
        span = max(1, int(nm * 0.6))
        cnt = 0
        si = 0
        for i in range(g.mtw):
            for b in range(g.ntw):
                acc = g.acc(i, b)
                A = g.fa(p, i)
                B = g.fb(p, b)
                c = '0' if t == 0 else f'v[{acc}:{acc+3}]'
                if swap:
                    a(f'v_mfma_f32_16x16x32_bf16 v[{acc}:{acc+3}], {R4(A)}, {R4(B)}, {c}')
                else:
                    a(f'v_mfma_f32_16x16x32_bf16 v[{acc}:{acc+3}], {R4(B)}, {R4(A)}, {c}')
                cnt += 1
                while si < nr and (si * span) / nr < cnt:
                    R[si]()
                    si += 1
        while si < nr:
            R[si]()
            si += 1

    stamp(a, g.name)
    if g.mid_prologue:
        g.mid_prologue()
    a.wait(lg_all=True)
    a('s_barrier')
    stamp(a, g.name)
    for f in read_list(0):
        f()
    for t in range(KT):
        a.wait(lg_all=True)
        if t + 1 < KT and (t + 1) % KST == 0:
            a('s_barrier')
            if (t + 1) in (2, 8, KT - 2):
                stamp(a, g.name)
        mfmas(t, read_list(t + 1) if t + 1 < KT else [])
    stamp(a, g.name)


def loader_path(a, g):
    KST, NS, KT = g.KST, g.NS, g.K // 32
    KS = KT // KST
    TB = KST * 1024
    SB = g.SB
    ntile = g.MT + g.NT
    per = (ntile + NL - 1) // NL
    split_last = (ntile % NL != 0)
    assert not split_last or (KST == NL and ntile % NL == 1)
    a('s_sub_u32 s12, s12, 4')

    def offs(j):
        last = split_last and j == per - 1
        if last:
            a(f's_mov_b32 s18, {ntile - 1}')
        else:
            a(f's_add_u32 s18, s12, {NL * j}')
        a(f's_mul_i32 s{g.s_l + j}, s18, {TB}')
        a(f's_mul_i32 s20, s13, {g.MT}')
        a('s_add_u32 s20, s20, s18')
        a(f's_mul_i32 s20, s20, {KT * 1024}')
        a(f's_add_u32 s20, s20, {g.a_base}')
        a(f's_mul_i32 s21, s14, {g.NT}')
        a('s_add_u32 s21, s21, s18')
        a(f's_sub_u32 s21, s21, {g.MT}')
        a(f's_mul_i32 s21, s21, {KT * 1024}')
        a(f's_add_u32 s21, s21, {g.b_base}')
        a(f's_cmp_lt_u32 s18, {g.MT}')
        a(f's_cselect_b32 s{g.s_g + j}, s20, s21')
        if last:
            a('s_lshl_b32 s18, s12, 10')
            a(f's_add_u32 s{g.s_g + j}, s{g.s_g + j}, s18')
            a(f's_add_u32 s{g.s_l + j}, s{g.s_l + j}, s18')

    def dma1(st, j):
        sl = st % NS
        last = split_last and j == per - 1
        a(f's_add_u32 m0, s{g.s_l + j}, {sl * SB}')
        t = g.s_tmp + (j & 1)
        a(f's_add_u32 s{t}, s{g.s_g + j}, {st * TB}')
        for kk in range(1 if last else KST):
            a(f'buffer_load_dwordx4 v{g.v_l16}, s[4:7], s{t} offen offset:{kk * 1024} lds', tag=('dma', st))

    for j in range(per):
        offs(j)
        dma1(0, j)
    for st in range(1, min(NS, KS)):
        for j in range(per):
            dma1(st, j)
    for st in range(KS):
        a.wait(vm=('dma', st))
        a('s_barrier')
        if st >= 1 and st + NS - 1 < KS:
            for j in range(per):
                dma1(st + NS - 1, j)
    a('s_endpgm')


def gemm_setup(a, g, name, MB, NB, need_out=False):
    NWG = MB * NB
    g.name = name
    begin(a, name)
    a(f's_cmp_ge_u32 s2, {NWG}')
    a.branch(f's_cbranch_scc1 {name}_end')
    ws_srd(a, 4)
    if need_out:
        a('s_load_dwordx2 s[8:9], s[0:1], 56')
    a('v_lshrrev_b32 v2, 6, v0')
    a('v_readfirstlane_b32 s12, v2')
    a('v_and_b32 v1, 63, v0')
    a(f'v_lshlrev_b32 v{g.v_l16}, 4, v1')
    BA = g.band
    nbands = MB // BA
    XPB = 8 // nbands
    per = MB * NB // 8
    a('s_and_b32 s17, s2, 7')
    a('s_lshr_b32 s18, s2, 3')
    a(f's_and_b32 s19, s17, {XPB - 1}')
    a(f's_lshr_b32 s17, s17, {int(math.log2(XPB))}')
    a(f's_mul_i32 s19, s19, {per}')
    a('s_add_u32 s18, s18, s19')
    a(f's_and_b32 s13, s18, {BA - 1}')
    a(f's_lshl_b32 s17, s17, {int(math.log2(BA))}')
    a('s_add_u32 s13, s13, s17')
    a(f's_lshr_b32 s14, s18, {int(math.log2(BA))}')
    a('s_waitcnt lgkmcnt(0)')
    fin_srd(a, 4, WS_SIZE)
    a('s_cmp_lt_u32 s12, 4')
    a.branch(f's_cbranch_scc1 {name}_comp')
    loader_path(a, g)
    a.label(f'{name}_comp')
    a.vmq = []
    if need_out:
        fin_srd(a, 8, S * D * 2)
    if g.WN == 1:
        a('s_mov_b32 s15, s12')
        a('s_mov_b32 s16, 0')
    elif g.WM == 1:
        a('s_mov_b32 s15, 0')
        a('s_mov_b32 s16, s12')
    else:
        a('s_lshr_b32 s15, s12, 1')
        a('s_and_b32 s16, s12, 1')
    a(f's_mul_i32 s17, s15, {g.mtw * g.KST * 1024}')
    a(f's_mul_i32 s18, s16, {g.ntw * g.KST * 1024}')
    for h in range(3):
        a(f'v_add_u32 v{g.v_a + h}, s17, v{g.v_l16}')
        a(f'v_add_u32 v{g.v_b + h}, s18, v{g.v_l16}')
        if h:
            a(f'v_add_u32 v{g.v_a + h}, {h << 16}, v{g.v_a + h}')
            a(f'v_add_u32 v{g.v_b + h}, {h << 16}, v{g.v_b + h}')


def alloc(g, extra_base):
    g.v_l16 = 3
    g.v_a = 4
    g.v_b = 7
    g.mtw = g.MT // g.WM
    g.ntw = g.NT // g.WN
    g.SB = (g.MT + g.NT) * g.KST * 1024
    g.s_g = 24
    g.s_l = 56
    g.s_tmp = 22
    nacc = g.mtw * g.ntw * 4
    g.acc0 = extra_base
    g.acc = lambda i, b: g.acc0 + (i * g.ntw + b) * 4
    g.f0 = g.acc0 + nacc
    setsz = (g.mtw + g.ntw) * 4
    g.fa = lambda p, i: g.f0 + p * setsz + i * 4
    g.fb = lambda p, b: g.f0 + p * setsz + (g.mtw + b) * 4
    g.vend = g.f0 + 2 * setsz
    g.mid_prologue = None


def ln_stats_issue(a, g, st_base, vt):
    a(f'v_and_b32 v2, 127, v0')
    a(f'v_lshlrev_b32 v2, 6, v2')
    a(f's_lshl_b32 s17, s13, 13')
    a(f's_add_u32 s17, s17, {st_base}')
    for i in range(4):
        a(f'buffer_load_dwordx4 v[{vt+4*i}:{vt+4*i+3}], v2, s[4:7], s17 offen offset:{16*i}', tag='stats')


def ln_stats_finish(a, g, vt, lds_off):
    a.wait(vm='stats')
    for i in range(1, 8):
        a(f'v_add_f32 v{vt}, v{vt}, v{vt+2*i}')
        a(f'v_add_f32 v{vt+1}, v{vt+1}, v{vt+2*i+1}')
    inv = f32hex(1.0 / D)
    a(f'v_mul_f32 v{vt}, {inv}, v{vt}')
    a(f'v_mul_f32 v{vt+1}, {inv}, v{vt+1}')
    a(f'v_fma_f32 v{vt+1}, -v{vt}, v{vt}, v{vt+1}')
    a(f'v_max_f32 v{vt+1}, 0, v{vt+1}')
    bf16r(a, vt)
    bf16r(a, vt + 1)
    a(f'v_add_f32 v{vt+1}, {f32hex(1e-5)}, v{vt+1}')
    bf16r(a, vt + 1)
    a(f'v_sqrt_f32 v{vt+1}, v{vt+1}')
    bf16r(a, vt + 1)
    a(f'v_rcp_f32 v{vt+1}, v{vt+1}')
    a(f'v_and_b32 v{vt+2}, 127, v0')
    a(f'v_lshlrev_b32 v{vt+2}, 3, v{vt+2}')
    a(f'v_add_u32 v{vt+2}, {lds_off}, v{vt+2}')
    a(f'ds_write_b64 v{vt+2}, v[{vt}:{vt+1}]')


def gen_qkv(name, x_base, st_base):
    a = Asm()
    g = G()
    g.MT, g.NT, g.WM, g.WN, g.K = 8, 8, 2, 2, 640
    g.KST, g.NS = int(os.environ.get('QKV_KST', 2)), int(os.environ.get('QKV_NS', 4))
    g.a_base, g.b_base = x_base, WQKV
    g.band = 4
    g.pro = 3
    MISC = 10
    alloc(g, 48)
    STL = g.NS * g.SB
    lds = STL + 1024
    MB, NB = 16, 15
    gemm_setup(a, g, name, MB, NB)
    VT_, VCS = 10, 26
    ln_stats_issue(a, g, st_base, VT_)
    a('v_lshrrev_b32 v2, 4, v1')
    a(f's_cmp_ge_u32 s14, 10')
    a.branch(f's_cbranch_scc1 {name}_v')
    a('v_lshlrev_b32 v42, 4, v2')
    a('s_lshl_b32 s17, s14, 9')
    a('s_lshl_b32 s18, s16, 8')
    a('s_add_u32 s17, s17, s18')
    a(f's_add_u32 s17, s17, {CSQ}')
    for b in range(4):
        a(f'buffer_load_dwordx4 v[{VCS+4*b}:{VCS+4*b+3}], v42, s[4:7], s17 offen offset:{64*b}', tag='cs')
    g.mid_prologue = lambda: ln_stats_finish(a, g, VT_, STL)
    gemm_core(a, g, swap=False)
    a.wait(vm='cs')
    a('v_and_b32 v43, 15, v1')
    a('v_lshlrev_b32 v44, 3, v43')
    a('s_lshl_b32 s17, s15, 9')
    a(f's_add_u32 s17, s17, {STL}')
    a('v_add_u32 v44, s17, v44')
    for i in range(4):
        a(f'ds_read_b64 v[{VT_+2*i}:{VT_+2*i+1}], v44 offset:{i*128}', tag='tst')
    a.wait(lg_all=True)
    for i in range(4):
        for b in range(4):
            acc = g.acc(i, b)
            for r in (0, 2):
                a(f'v_pk_fma_f32 v[{acc+r}:{acc+r+1}], v[{VT_+2*i}:{VT_+2*i+1}], v[{VCS+4*b+r}:{VCS+4*b+r+1}], v[{acc+r}:{acc+r+1}] op_sel_hi:[0,1,1] neg_lo:[1,0,0] neg_hi:[1,0,0]')
                a(f'v_pk_mul_f32 v[{acc+r}:{acc+r+1}], v[{VT_+2*i}:{VT_+2*i+1}], v[{acc+r}:{acc+r+1}] op_sel:[1,0] op_sel_hi:[1,1]')
    a('s_cmp_ge_u32 s14, 5')
    a('s_cselect_b32 s17, 1, 0')
    a('s_mul_i32 s18, s17, 5')
    a('s_sub_u32 s18, s14, s18')
    a('s_lshl_b32 s19, s13, 7')
    a('s_lshl_b32 s20, s15, 6')
    a('s_add_u32 s19, s19, s20')
    a('s_cmp_eq_u32 s18, 4')
    a.branch(f's_cbranch_scc1 {name}_tail')
    a('v_lshrrev_b32 v44, 1, v2')
    a('v_lshlrev_b32 v44, 16, v44')
    a('v_lshlrev_b32 v45, 5, v43')
    a('v_add_u32 v44, v44, v45')
    a('v_and_b32 v45, 1, v2')
    a('v_lshlrev_b32 v45, 4, v45')
    a('v_add_u32 v44, v44, v45')
    a('s_lshl_b32 s20, s17, 21')
    a(f's_add_u32 s20, s20, {QM}')
    a('s_lshl_b32 s21, s18, 19')
    a('s_add_u32 s20, s20, s21')
    a('s_lshl_b32 s21, s16, 18')
    a('s_add_u32 s20, s20, s21')
    a('s_lshl_b32 s21, s19, 5')
    a('s_add_u32 s20, s20, s21')
    a(f's_add_u32 s21, s20, {2*65536}')
    for i in range(4):
        for bp in range(2):
            a0, a1 = g.acc(i, 2 * bp), g.acc(i, 2 * bp + 1)
            t = VT_ + 8 + ((i * 2 + bp) & 1) * 4
            a(f'v_cvt_pk_bf16_f32 v{t}, v{a0}, v{a0+1}')
            a(f'v_cvt_pk_bf16_f32 v{t+1}, v{a0+2}, v{a0+3}')
            a(f'v_cvt_pk_bf16_f32 v{t+2}, v{a1}, v{a1+1}')
            a(f'v_cvt_pk_bf16_f32 v{t+3}, v{a1+2}, v{a1+3}')
            a(f'buffer_store_dwordx4 v[{t}:{t+3}], v44, s[4:7], s{20+bp} offen offset:{i*512}')
    if STAMP == name:
        a.wait(vm_all=True)
        stamp(a, name)
        stamp_out(a, name)
    a('s_endpgm')
    a.label(f'{name}_tail')
    a('v_lshlrev_b32 v44, 15, v2')
    a('v_lshlrev_b32 v45, 3, v43')
    a('v_add_u32 v44, v44, v45')
    a('s_lshl_b32 s20, s17, 19')
    a(f's_add_u32 s20, s20, {QT}')
    a('s_lshl_b32 s21, s16, 18')
    a('s_add_u32 s20, s20, s21')
    a('s_lshl_b32 s21, s19, 3')
    a('s_add_u32 s20, s20, s21')
    for bp in range(2):
        for t in range(2):
            a(f's_add_u32 s{40+bp*2+t}, s20, {(bp*8 + t) * 16384}')
    for i in range(4):
        for b in range(4):
            a0 = g.acc(i, b)
            t = VT_ + 8 + ((i * 4 + b) & 3) * 2
            a(f'v_cvt_pk_bf16_f32 v{t}, v{a0}, v{a0+1}')
            a(f'v_cvt_pk_bf16_f32 v{t+1}, v{a0+2}, v{a0+3}')
            a(f'buffer_store_dwordx2 v[{t}:{t+1}], v44, s[4:7], s{40+b} offen offset:{i*128}')
    a('s_endpgm')
    a.label(f'{name}_v')
    a.vmq = ['stats'] * 4
    a('v_and_b32 v43, 15, v1')
    a('v_lshlrev_b32 v42, 2, v43')
    a('s_lshl_b32 s17, s14, 9')
    a('s_lshl_b32 s18, s16, 8')
    a('s_add_u32 s17, s17, s18')
    a(f's_add_u32 s17, s17, {CSQ}')
    for b in range(4):
        a(f'buffer_load_dword v{VCS+b}, v42, s[4:7], s17 offen offset:{64*b}', tag='cs')
    g.mid_prologue = lambda: ln_stats_finish(a, g, VT_, STL)
    gemm_core(a, g, swap=True)
    a.wait(vm='cs')
    a('s_sub_u32 s17, s14, 10')
    a('s_lshl_b32 s17, s17, 7')
    a('s_lshl_b32 s18, s16, 6')
    a('s_add_u32 s17, s17, s18')
    a('v_add_u32 v44, s17, v43')
    a('v_and_b32 v45, 1, v2')
    a('v_lshlrev_b32 v45, 4, v45')
    a('v_lshrrev_b32 v46, 1, v2')
    a('v_lshlrev_b32 v46, 3, v46')
    a('v_add_u32 v45, v45, v46')
    a('s_mov_b32 s18, 3277')
    for b in range(4):
        vo = VCS + 4 + b
        a(f'v_add_u32 v46, {16*b}, v44')
        a('v_mul_lo_u32 v47, v46, s18')
        a('v_lshrrev_b32 v47, 16, v47')
        a(f'v_mul_u32_u24 v{vo}, 20, v47')
        a(f'v_sub_u32 v{vo}, v46, v{vo}')
        a(f'v_lshlrev_b32 v{vo}, 5, v{vo}')
        a('v_lshlrev_b32 v47, 17, v47')
        a(f'v_add_u32 v{vo}, v{vo}, v47')
        a(f'v_add_u32 v{vo}, v{vo}, v45')
    a('s_lshl_b32 s20, s13, 13')
    a('s_lshl_b32 s21, s15, 12')
    a('s_add_u32 s20, s20, s21')
    a(f's_add_u32 s20, s20, {VT}')
    a('v_lshlrev_b32 v44, 5, v2')
    a('s_lshl_b32 s17, s15, 9')
    a(f's_add_u32 s17, s17, {STL}')
    a('v_add_u32 v44, s17, v44')
    for i in range(4):
        a(f'ds_read_b128 v[{VT_}:{VT_+3}], v44 offset:{i*128}', tag='tst')
        a(f'ds_read_b128 v[{VT_+4}:{VT_+7}], v44 offset:{i*128+16}', tag='tst')
        a.wait(lg_all=True)
        for b in range(4):
            acc = g.acc(i, b)
            for r in range(4):
                a(f'v_fma_f32 v{acc+r}, -v{VT_+2*r}, v{VCS+b}, v{acc+r}')
                a(f'v_mul_f32 v{acc+r}, v{VT_+2*r+1}, v{acc+r}')
            t = VT_ + 8 + (b & 3) * 2
            a(f'v_cvt_pk_bf16_f32 v{t}, v{acc}, v{acc+1}')
            a(f'v_cvt_pk_bf16_f32 v{t+1}, v{acc+2}, v{acc+3}')
            a(f'buffer_store_dwordx2 v[{t}:{t+1}], v{VCS+4+b}, s[4:7], s20 offen offset:{i*1024}')
    a.label(f'{name}_end')
    a('s_endpgm')
    kernels.append((name, MB * NB, 256 + 64 * NL, lds, g.vend, 100, a.text()))


def gen_res(name, K, a_base, b_base, xin, xout, st_out, final=False):
    a = Asm()
    g = G()
    g.MT, g.NT, g.WM, g.WN, g.K = 4, 5, 4, 1, K
    g.KST, g.NS = 2, 8
    g.a_base, g.b_base = a_base, b_base
    g.band = 8
    g.pro = 5
    alloc(g, 32)
    lds = g.NS * g.SB
    MB, NB = 32, 8
    gemm_setup(a, g, name, MB, NB, need_out=final)
    VR = 10
    a('s_lshl_b32 s17, s13, 2')
    a('s_add_u32 s17, s17, s15')
    a('s_mul_i32 s18, s14, 5')
    for b in range(5):
        a(f's_add_u32 s19, s18, {b}')
        a('s_lshr_b32 s20, s19, 1')
        a('s_and_b32 s21, s19, 1')
        a('s_lshl_b32 s21, s21, 3')
        a('s_mul_i32 s22, s17, 20')
        a('s_add_u32 s22, s22, s20')
        a('s_lshl_b32 s22, s22, 10')
        a(f's_add_u32 s{40+b}, s22, s21')
        if final:
            a(f's_mul_i32 s22, s17, {16*1280}')
            a('s_lshl_b32 s20, s20, 6')
            a('s_add_u32 s22, s22, s20')
            a(f's_add_u32 s{46+b}, s22, s21')
        a(f's_add_u32 s22, s{40+b}, {xin}')
        a(f'buffer_load_dwordx2 v[{VR+2*b}:{VR+2*b+1}], v{g.v_l16}, s[4:7], s22 offen', tag='res')
    gemm_core(a, g, swap=False)
    a.wait(vm='res')
    VS = 20
    a(f'v_mov_b32 v{VS}, 0')
    a(f'v_mov_b32 v{VS+1}, 0')
    if final:
        a('v_and_b32 v24, 15, v1')
        a('v_mul_u32_u24 v24, 1280, v24')
        a('v_lshrrev_b32 v25, 4, v1')
        a('v_lshlrev_b32 v25, 4, v25')
        a('v_add_u32 v24, v24, v25')
    for b in range(5):
        acc = g.acc(0, b)
        a(f'v_cvt_pk_bf16_f32 v{acc}, v{acc}, v{acc+1}')
        a(f'v_cvt_pk_bf16_f32 v{acc+2}, v{acc+2}, v{acc+3}')
        a(f'v_and_b32 v{acc+1}, 0xffff0000, v{acc}')
        a(f'v_lshlrev_b32 v{acc}, 16, v{acc}')
        a(f'v_and_b32 v{acc+3}, 0xffff0000, v{acc+2}')
        a(f'v_lshlrev_b32 v{acc+2}, 16, v{acc+2}')
        r0, r1 = VR + 2 * b, VR + 2 * b + 1
        a(f'v_lshlrev_b32 v22, 16, v{r0}')
        a(f'v_and_b32 v23, 0xffff0000, v{r0}')
        a(f'v_add_f32 v{acc}, v{acc}, v22')
        a(f'v_add_f32 v{acc+1}, v{acc+1}, v23')
        a(f'v_lshlrev_b32 v22, 16, v{r1}')
        a(f'v_and_b32 v23, 0xffff0000, v{r1}')
        a(f'v_add_f32 v{acc+2}, v{acc+2}, v22')
        a(f'v_add_f32 v{acc+3}, v{acc+3}, v23')
        a(f'v_cvt_pk_bf16_f32 v{r0}, v{acc}, v{acc+1}')
        a(f'v_cvt_pk_bf16_f32 v{r1}, v{acc+2}, v{acc+3}')
        if final:
            a(f'buffer_store_dwordx2 v[{r0}:{r1}], v24, s[8:11], s{46+b} offen')
        else:
            a(f's_add_u32 s22, s{40+b}, {xout}')
            a(f'buffer_store_dwordx2 v[{r0}:{r1}], v{g.v_l16}, s[4:7], s22 offen')
            for r in (r0, r1):
                a(f'v_lshlrev_b32 v22, 16, v{r}')
                a(f'v_and_b32 v23, 0xffff0000, v{r}')
                a(f'v_add_f32 v{VS}, v{VS}, v22')
                a(f'v_fma_f32 v{VS+1}, v22, v22, v{VS+1}')
                a(f'v_add_f32 v{VS}, v{VS}, v23')
                a(f'v_fma_f32 v{VS+1}, v23, v23, v{VS+1}')
    if not final:
        for sw in ('v_permlane16_swap_b32', 'v_permlane32_swap_b32'):
            for r in (VS, VS + 1):
                a(f'v_mov_b32 v22, v{r}')
                a(f'{sw} v22, v{r}')
                a(f'v_add_f32 v{r}, v{r}, v22')
        a('v_lshlrev_b32 v22, 6, v1')
        a('s_lshl_b32 s22, s17, 10')
        a('s_lshl_b32 s23, s14, 3')
        a('s_add_u32 s22, s22, s23')
        a(f's_add_u32 s22, s22, {st_out}')
        a('s_mov_b64 exec, 0xffff')
        a(f'buffer_store_dwordx2 v[{VS}:{VS+1}], v22, s[4:7], s22 offen')
    if STAMP == name:
        a.wait(vm_all=True)
        stamp(a, name)
        stamp_out(a, name)
    a.label(f'{name}_end')
    a('s_endpgm')
    kernels.append((name, MB * NB, 256 + 64 * NL, lds, g.vend, 100, a.text()))


def gen_gu(name, x_base, st_base):
    a = Asm()
    g = G()
    g.MT, g.NT, g.WM, g.WN, g.K = 8, 12, 4, 1, 640
    g.KST, g.NS = int(os.environ.get('GU_KST', 2)), int(os.environ.get('GU_NS', 3))
    g.a_base, g.b_base = x_base, WGU
    g.band = 8
    g.pro = 2
    alloc(g, 32)
    STL = g.NS * g.SB
    CSL = STL + 1024
    lds = STL + 2048
    MB, NB = 16, 16
    gemm_setup(a, g, name, MB, NB)
    VT_, VCS = 10, g.f0
    ln_stats_issue(a, g, st_base, VT_)
    a('v_lshlrev_b32 v26, 2, v0')
    a(f's_mul_i32 s17, s14, {12*64}')
    a(f's_add_u32 s17, s17, {CSG}')
    a('buffer_load_dword v27, v26, s[4:7], s17 offen', tag='cs')

    def mp():
        ln_stats_finish(a, g, VT_, STL)
        a.wait(vm='cs')
        a(f'v_add_u32 v26, {CSL}, v26')
        a('ds_write_b32 v26, v27')
    g.mid_prologue = mp
    gemm_core(a, g, swap=False)
    a('v_lshrrev_b32 v2, 4, v1')
    a('v_lshlrev_b32 v26, 4, v2')
    a(f'v_add_u32 v26, {CSL}, v26')
    for b in range(12):
        a(f'ds_read_b128 v[{VCS+4*b}:{VCS+4*b+3}], v26 offset:{64*b}', tag='tst')
    a('v_and_b32 v27, 15, v1')
    a('v_lshlrev_b32 v27, 3, v27')
    a('s_lshl_b32 s17, s15, 8')
    a(f's_add_u32 s17, s17, {STL}')
    a('v_add_u32 v27, s17, v27')
    for i in range(2):
        a(f'ds_read_b64 v[{VT_+4*i}:{VT_+4*i+1}], v27 offset:{i*128}', tag='tst')
    a('s_lshl_b32 s17, s13, 3')
    a('s_lshl_b32 s18, s15, 1')
    a('s_add_u32 s17, s17, s18')
    a('s_mul_i32 s17, s17, 48')
    a('s_mul_i32 s18, s14, 3')
    a('s_add_u32 s17, s17, s18')
    a('s_lshl_b32 s17, s17, 10')
    a(f's_add_u32 s17, s17, {HF}')
    a(f's_add_u32 s18, s17, {48*1024}')
    a.wait(lg_all=True)
    for i in range(2):
        a(f'v_mul_f32 v{VT_+4*i+2}, {f32hex(-LOG2E)}, v{VT_+4*i+1}')
        a(f'v_mov_b32 v{VT_+4*i+3}, 1.0')
    for i in range(2):
        M = f'v[{VT_+4*i}:{VT_+4*i+1}]'
        E = f'v[{VT_+4*i+2}:{VT_+4*i+3}]'
        for fg in range(3):
            t = g.acc(i, fg * 4)
            for tt in range(2):
                ag, au = g.acc(i, fg * 4 + tt), g.acc(i, fg * 4 + 2 + tt)
                cg, cu = VCS + 4 * (fg * 4 + tt), VCS + 4 * (fg * 4 + 2 + tt)
                for r in (0, 2):
                    G2, U2 = f'v[{ag+r}:{ag+r+1}]', f'v[{au+r}:{au+r+1}]'
                    a(f'v_pk_fma_f32 {G2}, {M}, v[{cg+r}:{cg+r+1}], {G2} op_sel_hi:[0,1,1] neg_lo:[1,0,0] neg_hi:[1,0,0]')
                    a(f'v_pk_mul_f32 {G2}, {E}, {G2} op_sel_hi:[0,1]')
                    a(f'v_exp_f32 v{ag+r}, v{ag+r}')
                    a(f'v_exp_f32 v{ag+r+1}, v{ag+r+1}')
                    a(f'v_pk_fma_f32 {U2}, {M}, v[{cu+r}:{cu+r+1}], {U2} op_sel_hi:[0,1,1] neg_lo:[1,0,0] neg_hi:[1,0,0]')
                    a(f'v_pk_mul_f32 {U2}, {M}, {U2} op_sel:[1,0] op_sel_hi:[1,1]')
                    a(f'v_pk_add_f32 {G2}, {E}, {G2} op_sel:[1,0] op_sel_hi:[1,1]')
                    a(f'v_rcp_f32 v{ag+r}, v{ag+r}')
                    a(f'v_rcp_f32 v{ag+r+1}, v{ag+r+1}')
                for r in (0, 2):
                    a(f'v_pk_mul_f32 v[{au+r}:{au+r+1}], v[{au+r}:{au+r+1}], v[{ag+r}:{ag+r+1}]')
            for tt in range(2):
                au = g.acc(i, fg * 4 + 2 + tt)
                a(f'v_cvt_pk_bf16_f32 v{t+2*tt}, v{au}, v{au+1}')
                a(f'v_cvt_pk_bf16_f32 v{t+2*tt+1}, v{au+2}, v{au+3}')
            a(f'buffer_store_dwordx4 v[{t}:{t+3}], v{g.v_l16}, s[4:7], s{17+i} offen offset:{fg*1024}')
    if STAMP == name:
        a.wait(vm_all=True)
        stamp(a, name)
        stamp_out(a, name)
    a.label(f'{name}_end')
    a('s_endpgm')
    kernels.append((name, MB * NB, 256 + 64 * NL, lds, g.vend, 100, a.text()))


TR_ROLES = [
    ('wo', 80, 16, 640, 640, 'A', WO_),
    ('wg', 80, 32, 640, 1536, 'G', WGU),
    ('wu', 80, 40, 640, 1536, 'U', WGU),
    ('wd', 192, 48, 1536, 640, 'A', WD_),
]


def tr_dma(a, role, start, swave, vl16, lbase):
    lab, nsl, slot, K, N, kind, dst = role
    RB = N * 2
    a(f's_load_dwordx2 s[40:41], s[0:1], {slot}')
    a(f's_sub_u32 s44, s2, {start}')
    if lab == 'wo':
        a('s_lshr_b32 s45, s44, 1')
        a('s_mul_i32 s45, s45, 20')
        a('s_and_b32 s46, s44, 1')
        a('s_lshl_b32 s46, s46, 2')
        a('s_add_u32 s45, s45, s46')
        a('s_add_u32 s46, s45, 8')
        a('s_sub_u32 s47, s44, 64')
        a('s_mul_i32 s47, s47, 40')
        a('s_add_u32 s47, s47, 16')
        a('s_add_u32 s48, s47, 20')
        a('s_cmp_lt_u32 s44, 64')
        a('s_cselect_b32 s45, s45, s47')
        a('s_cselect_b32 s46, s46, s48')
    else:
        a('s_lshl_b32 s45, s44, 3')
        a('s_add_u32 s46, s45, 4')
    a(f's_mul_i32 s45, s45, {RB}')
    a(f's_mul_i32 s46, s46, {RB}')
    a('s_waitcnt lgkmcnt(0)')
    a.lgq = []
    fin_srd(a, 40, K * N * 2)
    nch = 4 * RB // 1024
    tot = 2 * nch
    a(f's_lshl_b32 s47, s{swave}, 10')
    for i in range((tot + 3) // 4):
        a(f's_add_u32 s48, s47, {4096*i}')
        if 4 * i + 3 >= tot:
            a(f's_min_u32 s48, s48, {(tot-1)*1024}')
        a(f's_add_u32 m0, s48, {lbase}')
        a(f's_sub_u32 s49, s48, {nch*1024}')
        a('s_add_u32 s49, s49, s46')
        a('s_add_u32 s50, s48, s45')
        a(f's_cmp_lt_u32 s48, {nch*1024}')
        a('s_cselect_b32 s49, s50, s49')
        a(f'buffer_load_dwordx4 v{vl16}, s[40:43], s49 offen lds', tag='w')


def tr_out(a, role, swave, vlane, lbase, V0):
    lab, nsl, slot, K, N, kind, dst = role
    KT = K // 32
    RB = N * 2
    NTL = N // 16
    v4, v5, v6, v7 = V0, V0 + 1, V0 + 2, V0 + 3
    a(f'v_lshrrev_b32 v{v4}, 4, v{vlane}')
    a(f'v_bfe_u32 v{v5}, v{vlane}, 2, 2')
    a(f'v_and_b32 v{v6}, 3, v{vlane}')
    a(f'v_mul_u32_u24 v{v5}, {RB}, v{v5}')
    a(f'v_add_u32 v{v5}, {lbase}, v{v5}')
    a(f'v_and_b32 v{v7}, 15, v{vlane}')
    a(f'v_lshlrev_b32 v{v7}, 4, v{v7}')
    a('s_lshr_b32 s45, s44, 2')
    a('s_lshl_b32 s45, s45, 10')
    a('s_and_b32 s46, s44, 3')
    a('s_lshl_b32 s46, s46, 8')
    a('s_add_u32 s45, s45, s46')
    a(f's_add_u32 s45, s45, {dst}')
    a(f's_lshl_b32 s46, s{swave}, 2')
    a(f'v_add_u32 v{v4}, s46, v{v4}')
    nit = (NTL + 15) // 16
    for it in range(nit):
        vb = V0 + 4 + 12 * (it % 3)
        a(f'v_add_u32 v{vb}, {16*it}, v{v4}')
        if 16 * it + 15 >= NTL:
            a(f'v_min_u32 v{vb}, {NTL-1}, v{vb}')
        src_col(a, kind, vb, v6, vb + 1, vb + 2, vb + 3, vb + 4)
        a(f'v_lshl_add_u32 v{vb+1}, v{vb+1}, 1, v{v5}')
        a(f'ds_read_b64_tr_b16 v[{vb+8}:{vb+9}], v{vb+1}', tag='t')
        a(f'ds_read_b64_tr_b16 v[{vb+10}:{vb+11}], v{vb+1} offset:{4*RB}', tag='t')
        a(f'v_mul_u32_u24 v{vb}, {KT*1024}, v{vb}')
        a(f'v_add_u32 v{vb}, v{vb}, v{v7}')
        a.wait(lg_all=True)
        a(f'buffer_store_dwordx4 v[{vb+8}:{vb+11}], v{vb}, s[4:7], s45 offen')


def tr_dispatch(a, name, tag, fn):
    starts = []
    base = 0
    for r in TR_ROLES:
        starts.append(base)
        base += r[1]
    Lend = f'{name}_{tag}_end'
    a(f's_cmp_ge_u32 s2, {base}')
    a.branch(f's_cbranch_scc1 {Lend}')
    for i in reversed(range(1, len(TR_ROLES))):
        a(f's_cmp_ge_u32 s2, {starts[i]}')
        a.branch(f's_cbranch_scc1 {name}_{tag}_{TR_ROLES[i][0]}')
    for i, r in enumerate(TR_ROLES):
        a.label(f'{name}_{tag}_{r[0]}')
        fn(r, starts[i])
        if i + 1 < len(TR_ROLES):
            a.branch(f's_branch {Lend}')
    a.label(Lend)


def gen_attn(name, with_tr=False):
    a = Asm()
    NWG = 512
    begin(a, name)
    a(f's_cmp_ge_u32 s2, {NWG}')
    a.branch(f's_cbranch_scc1 {name}_end')
    ws_srd(a, 4)
    SB = 16
    OB = 160
    KV = 176
    QB = 248
    L_KM, L_KT, L_V = 0, 12 * 1024, 15 * 1024
    lds = L_V + 24 * 1024
    L_TR = lds
    if with_tr:
        lds += 24 * 1024
    a('v_lshrrev_b32 v2, 6, v0')
    a('v_readfirstlane_b32 s12, v2')
    a('v_and_b32 v1, 63, v0')
    a('v_and_b32 v3, 31, v1')
    a('v_lshrrev_b32 v4, 5, v1')
    a('v_lshlrev_b32 v5, 5, v3')
    a('v_lshlrev_b32 v6, 4, v4')
    a('v_add_u32 v5, v5, v6')
    a('v_lshlrev_b32 v7, 3, v3')
    a('v_min_u32 v8, 20, v3')
    a('v_lshlrev_b32 v8, 5, v8')
    a('v_add_u32 v8, v8, v6')
    a('v_lshlrev_b32 v15, 4, v1')
    a('s_and_b32 s13, s2, 7')
    a('s_lshl_b32 s13, s13, 2')
    a('s_lshr_b32 s14, s2, 7')
    a('s_add_u32 s13, s13, s14')
    a('s_lshr_b32 s14, s2, 3')
    a('s_and_b32 s14, s14, 15')
    a('s_lshl_b32 s23, s14, 7')
    a('s_lshl_b32 s15, s12, 5')
    a('s_add_u32 s15, s15, s23')
    a('s_lshl_b32 s16, s13, 11')
    a('s_waitcnt lgkmcnt(0)')
    fin_srd(a, 4, WS_SIZE)
    stamp(a, name)
    for i in range(3):
        a(f's_add_i32 s19, s15, {-256 + 128*i}')
        a('s_max_i32 s19, s19, 0')
        a('s_add_u32 s19, s19, s16')
        a('s_lshl_b32 s20, s19, 5')
        a(f's_add_u32 s20, s20, {KM}')
        a(f's_lshl_b32 s21, s12, 10')
        a(f's_add_u32 m0, s21, {L_KM + 4096*i}')
        a('buffer_load_dwordx4 v5, s[4:7], s20 offen lds', tag='k')
    a('s_min_u32 s21, s12, 2')
    a('s_lshl_b32 s19, s21, 7')
    a('s_add_u32 s19, s19, s23')
    a('s_add_i32 s19, s19, -256')
    a('s_max_i32 s19, s19, 0')
    a('s_add_u32 s19, s19, s16')
    a('s_lshl_b32 s20, s19, 3')
    a(f's_add_u32 s20, s20, {KT_}')
    a('s_lshl_b32 s21, s21, 10')
    a(f's_add_u32 m0, s21, {L_KT}')
    a('buffer_load_dwordx4 v15, s[4:7], s20 offen lds', tag='k')
    a('s_add_u32 s17, s16, s15')
    a('s_lshl_b32 s18, s17, 5')
    a(f's_add_u32 s18, s18, {QM}')
    a(f'buffer_load_dwordx4 v[{QB}:{QB+3}], v5, s[4:7], s18 offen', tag='q')
    a('s_lshl_b32 s18, s17, 3')
    a(f's_add_u32 s18, s18, {QT}')
    a(f'buffer_load_dwordx2 v[{QB+4}:{QB+5}], v7, s[4:7], s18 offen', tag='q')
    a('s_lshl_b32 s24, s13, 17')
    a(f's_add_u32 s24, s24, {VT}')
    a('s_lshl_b32 s25, s12, 4')
    a('s_add_u32 s25, s25, s23')
    for i in range(6):
        a(f's_add_i32 s19, s25, {-256 + 64*i}')
        a('s_max_i32 s19, s19, 0')
        a('s_lshl_b32 s19, s19, 6')
        a('s_add_u32 s19, s19, s24')
        a(f's_lshl_b32 s21, s12, 10')
        a(f's_add_u32 m0, s21, {L_V + 4096*i}')
        a('buffer_load_dwordx4 v8, s[4:7], s19 offen lds', tag='v')
    NEG = '0xff7fffff'
    a('v_lshlrev_b32 v9, 2, v4')
    a('v_sub_u32 v9, v3, v9')
    a(f'v_mov_b32 v10, {NEG}')
    for r in range(16):
        c = 8 * (r >> 2) + (r & 3)
        a(f'v_cmp_le_i32 vcc, {c}, v9')
        a(f'v_cndmask_b32_e64 v{SB+8*16+r}, v10, 0, vcc')
        a(f'v_cndmask_b32_e64 v{SB+r}, 0, v10, vcc')
    a('s_lshl_b32 s21, s12, 10')
    a('v_add_u32 v13, s21, v15')
    a('s_lshl_b32 s21, s12, 8')
    a('v_add_u32 v14, s21, v7')
    a('s_lshl_b32 s21, s12, 11')
    a('v_add_u32 v2, s21, v15')
    a.wait(vm='q')
    a('s_barrier')
    stamp(a, name)
    if with_tr:
        tr_dispatch(a, name, 'd', lambda r, st: tr_dma(a, r, st, 12, 15, L_TR))
    for t in range(9):
        a(f'ds_read_b128 v[{KV+8*t}:{KV+8*t+3}], v13 offset:{L_KM + 1024*t}', tag=('k', t))
        a(f'ds_read_b64 v[{KV+8*t+4}:{KV+8*t+5}], v14 offset:{L_KT + 256*t}', tag=('k', t))
        if t == 6:
            break
    a('v_cmp_eq_u32 vcc, 0, v4')
    a(f'v_cndmask_b32_e64 v{QB+4}, 0, v{QB+4}, vcc')
    a(f'v_cndmask_b32_e64 v{QB+5}, 0, v{QB+5}, vcc')
    for t in range(9):
        a.wait(lg=('k', t))
        s0 = SB + 16 * t
        c = f'v[{s0}:{s0+15}]' if t in (0, 8) else '0'
        a(f'v_mfma_f32_32x32x16_bf16 v[{s0}:{s0+15}], v[{KV+8*t}:{KV+8*t+3}], v[{QB}:{QB+3}], {c}')
        a(f'v_mfma_f32_32x32x8_bf16 v[{s0}:{s0+15}], v[{KV+8*t+4}:{KV+8*t+5}], v[{QB+4}:{QB+5}], v[{s0}:{s0+15}]')
        if t < 2:
            t2 = 7 + t
            a(f'ds_read_b128 v[{KV+8*t2}:{KV+8*t2+3}], v13 offset:{L_KM + 1024*t2}', tag=('k', t2))
            a(f'ds_read_b64 v[{KV+8*t2+4}:{KV+8*t2+5}], v14 offset:{L_KT + 256*t2}', tag=('k', t2))
    for t in range(8):
        L = a.newlabel('skip')
        a(f's_cmp_ge_i32 s15, {256 - 32*t}')
        a.branch(f's_cbranch_scc1 {L}')
        for r in range(16):
            a(f'v_mov_b32 v{SB+16*t+r}, v10')
        a.label(L)
    stamp(a, name)
    regs = [SB + i for i in range(144)]
    a(f'v_max3_f32 v11, v{regs[0]}, v{regs[1]}, v{regs[2]}')
    a(f'v_max3_f32 v12, v{regs[3]}, v{regs[4]}, v{regs[5]}')
    i = 6
    k = 0
    while i + 1 < 144:
        d = 11 + (k & 1)
        a(f'v_max3_f32 v{d}, v{d}, v{regs[i]}, v{regs[i+1]}')
        i += 2
        k += 1
    a('v_max_f32 v11, v11, v12')
    a('v_mov_b32 v12, v11')
    a('v_permlane32_swap_b32 v11, v12')
    a('v_max_f32 v11, v11, v12')
    cs = (DH ** -0.5) * LOG2E
    a(f's_mov_b32 s22, {f32hex(cs)}')
    a('v_mul_f32 v12, s22, v11')
    a('v_mov_b32 v13, s22')
    a.wait(vm_all=True)
    a('s_barrier')
    for t in range(9):
        s0 = SB + 16 * t
        for s in range(2):
            a(f'ds_read_b128 v[{KV+8*t+4*s}:{KV+8*t+4*s+3}], v2 offset:{L_V + 2048*t + 1024*s}', tag=('v', t))
        for r in range(0, 16, 2):
            a(f'v_pk_fma_f32 v[{s0+r}:{s0+r+1}], v[{s0+r}:{s0+r+1}], v[12:13], v[12:13] op_sel:[0,1,0] op_sel_hi:[1,1,0] neg_lo:[0,0,1] neg_hi:[0,0,1]')
        for r in range(16):
            a(f'v_exp_f32 v{s0+r}, v{s0+r}')
        for r in range(8):
            a(f'v_cvt_pk_bf16_f32 v{s0+r}, v{s0+2*r}, v{s0+2*r+1}')
        a.wait(lg=('v', t))
        for s in range(2):
            c = '0' if (t == 0 and s == 0) else f'v[{OB}:{OB+15}]'
            a(f'v_mfma_f32_32x32x16_bf16 v[{OB}:{OB+15}], v[{KV+8*t+4*s}:{KV+8*t+4*s+3}], v[{s0+4*s}:{s0+4*s+3}], {c}')
    stamp(a, name)
    a(f'v_mov_b32 v11, v{OB+8}')
    a(f'v_mov_b32 v12, v{OB+8}')
    a('v_permlane32_swap_b32 v11, v12')
    a('v_rcp_f32 v12, v12')
    for r in range(12):
        a(f'v_mul_f32 v{OB+r}, v{OB+r}, v12')
    for r in range(6):
        a(f'v_cvt_pk_bf16_f32 v{OB+r}, v{OB+2*r}, v{OB+2*r+1}')
    a('v_lshrrev_b32 v13, 4, v3')
    a(f'v_mul_u32_u24 v13, {20*1024}, v13')
    a('v_and_b32 v14, 15, v3')
    a('v_lshlrev_b32 v14, 4, v14')
    a('v_add_u32 v13, v13, v14')
    a('v_lshlrev_b32 v14, 8, v4')
    a('v_add_u32 v14, v14, v13')
    a('s_lshr_b32 s17, s15, 4')
    a(f's_mul_i32 s17, s17, {20*1024}')
    a(f's_add_u32 s17, s17, {OF}')
    a('s_lshr_b32 s18, s13, 1')
    a('s_lshl_b32 s18, s18, 10')
    a('s_and_b32 s19, s13, 1')
    a('s_lshl_b32 s20, s19, 9')
    a('s_add_u32 s18, s18, s20')
    a('s_add_u32 s18, s18, s17')
    a(f'buffer_store_dwordx4 v[{OB}:{OB+3}], v14, s[4:7], s18 offen')
    a('s_lshr_b32 s18, s13, 3')
    a('s_add_u32 s18, s18, 16')
    a('s_lshl_b32 s18, s18, 10')
    a('s_lshr_b32 s20, s13, 1')
    a('s_and_b32 s20, s20, 3')
    a('s_lshl_b32 s20, s20, 8')
    a('s_add_u32 s18, s18, s20')
    a('s_lshl_b32 s19, s19, 3')
    a('s_add_u32 s18, s18, s19')
    a('s_add_u32 s18, s18, s17')
    a('s_mov_b32 exec_hi, 0')
    a(f'buffer_store_dwordx2 v[{OB+4}:{OB+5}], v13, s[4:7], s18 offen')
    if with_tr:
        a('s_mov_b64 exec, -1')
        tr_dispatch(a, name, 'o', lambda r, st: tr_out(a, r, 12, 1, L_TR, 16))
    if STAMP == name:
        a.wait(vm_all=True)
        stamp(a, name)
        stamp_out(a, name)
    a.label(f'{name}_end')
    a('s_endpgm')
    kernels.append((name, NWG, 256, lds, 256, 100, a.text()))


def magic(d):
    return (2 ** 32 + d - 1) // d


def map_tile(a, kind, vn0, vT, vi0, t0, t1, t2):
    if kind in 'AGU':
        a(f'v_lshrrev_b32 v{t0}, 5, v{vn0}')
        a(f'v_bfe_u32 v{t1}, v{vn0}, 2, 1')
        a(f'v_bfe_u32 v{vi0}, v{vn0}, 3, 2')
        a(f'v_lshlrev_b32 v{vi0}, 2, v{vi0}')
        sh = 1 if kind == 'A' else 2
        a(f'v_lshlrev_b32 v{vT}, {sh}, v{t0}')
        a(f'v_add_u32 v{vT}, v{vT}, v{t1}')
        if kind == 'U':
            a(f'v_add_u32 v{vT}, 2, v{vT}')
    else:
        a(f's_mov_b32 s30, {magic(640)}')
        a(f'v_mul_hi_u32 v{t0}, v{vn0}, s30')
        a(f'v_mul_u32_u24 v{t1}, 640, v{t0}')
        a(f'v_sub_u32 v{t1}, v{vn0}, v{t1}')
        a('s_mov_b32 s30, 3277')
        a(f'v_mul_lo_u32 v{t2}, v{t1}, s30')
        a(f'v_lshrrev_b32 v{t2}, 16, v{t2}')
        a(f'v_mul_u32_u24 v{vi0}, 20, v{t2}')
        a(f'v_sub_u32 v{vi0}, v{t1}, v{vi0}')
        a(f'v_cmp_gt_u32 vcc, 16, v{vi0}')
        a(f'v_and_b32 v{vT}, 1, v{t2}')
        a(f'v_lshlrev_b32 v{vT}, 4, v{vT}')
        a(f'v_add_u32 v{vi0}, v{vi0}, v{vT}')
        a(f'v_and_b32 v{vT}, 7, v{t2}')
        a(f'v_lshlrev_b32 v{vT}, 2, v{vT}')
        a(f'v_cndmask_b32 v{vi0}, v{vT}, v{vi0}, vcc')
        a(f'v_lshrrev_b32 v{vT}, 3, v{t2}')
        a(f'v_add_u32 v{vT}, 16, v{vT}')
        a(f'v_lshrrev_b32 v{t2}, 1, v{t2}')
        a(f'v_cndmask_b32 v{t2}, v{vT}, v{t2}, vcc')
        a(f'v_lshlrev_b32 v{vT}, 1, v{t2}')
        a(f'v_bfe_u32 v{t2}, v{vi0}, 2, 1')
        a(f'v_add_u32 v{vT}, v{vT}, v{t2}')
        a(f'v_mul_u32_u24 v{t2}, 40, v{t0}')
        a(f'v_add_u32 v{vT}, v{vT}, v{t2}')
        a(f'v_lshrrev_b32 v{vi0}, 3, v{vi0}')
        a(f'v_lshlrev_b32 v{vi0}, 2, v{vi0}')
        a(f'v_cmp_eq_u32 vcc, 2, v{t0}')
        a(f'v_lshrrev_b32 v{t2}, 4, v{t1}')
        a(f'v_add_u32 v{t2}, 80, v{t2}')
        a(f'v_cndmask_b32 v{vT}, v{vT}, v{t2}, vcc')
        a(f'v_and_b32 v{t2}, 15, v{t1}')
        a(f'v_cndmask_b32 v{vi0}, v{vi0}, v{t2}, vcc')


def src_col(a, kind, vT, vc, vout, t0, t1, t2):
    if kind in 'AGU':
        a(f'v_lshrrev_b32 v{t0}, 1, v{vT}')
        a(f'v_and_b32 v{t1}, 1, v{vT}')
        a(f'v_lshlrev_b32 v{vout}, 5, v{t0}')
        a(f'v_lshl_add_u32 v{vout}, v{vc}, 3, v{vout}')
        a(f'v_lshl_add_u32 v{vout}, v{t1}, 2, v{vout}')
        if kind != 'A':
            a(f'v_lshlrev_b32 v{vT}, 2, v{t0}')
            a(f'v_add_u32 v{vT}, v{vT}, v{t1}')
            if kind == 'U':
                a(f'v_add_u32 v{vT}, 2, v{vT}')
    else:
        a(f'v_cmp_le_u32 vcc, 40, v{vT}')
        a(f'v_cndmask_b32_e64 v{t0}, 0, 1, vcc')
        a(f'v_cmp_le_u32 vcc, 80, v{vT}')
        a(f'v_cndmask_b32_e64 v{t0}, v{t0}, 2, vcc')
        a(f'v_mul_u32_u24 v{t1}, 40, v{t0}')
        a(f'v_sub_u32 v{t1}, v{vT}, v{t1}')
        a(f'v_and_b32 v{t2}, 1, v{t1}')
        a(f'v_lshlrev_b32 v{t2}, 2, v{t2}')
        a(f'v_lshl_add_u32 v{t2}, v{vc}, 3, v{t2}')
        a(f'v_and_b32 v{vout}, -2, v{t1}')
        a(f'v_lshrrev_b32 v{t2+1}, 4, v{t2}')
        a(f'v_add_u32 v{vout}, v{vout}, v{t2+1}')
        a(f'v_mul_u32_u24 v{vout}, 20, v{vout}')
        a(f'v_and_b32 v{t2+1}, 15, v{t2}')
        a(f'v_add_u32 v{vout}, v{vout}, v{t2+1}')
        a(f'v_lshrrev_b32 v{t2+1}, 1, v{t1}')
        a(f'v_subrev_u32 v{t2+1}, 16, v{t2+1}')
        a(f'v_lshlrev_b32 v{t2+1}, 3, v{t2+1}')
        a(f'v_lshrrev_b32 v{t2}, 2, v{t2}')
        a(f'v_add_u32 v{t2+1}, v{t2+1}, v{t2}')
        a(f'v_mul_u32_u24 v{t2+1}, 20, v{t2+1}')
        a(f'v_add_u32 v{t2+1}, 16, v{t2+1}')
        a(f'v_cmp_le_u32 vcc, 32, v{t1}')
        a(f'v_cndmask_b32 v{vout}, v{vout}, v{t2+1}, vcc')
        a(f'v_lshlrev_b32 v{t2+1}, 4, v{t1}')
        a(f'v_lshl_add_u32 v{t2+1}, v{vc}, 2, v{t2+1}')
        a(f'v_cmp_eq_u32 vcc, 2, v{t0}')
        a(f'v_cndmask_b32 v{vout}, v{vout}, v{t2+1}, vcc')
        a(f'v_mul_u32_u24 v{t0}, 640, v{t0}')
        a(f'v_add_u32 v{vout}, v{vout}, v{t0}')


def gen_prep(name):
    a = Asm()
    begin(a, name)
    roles = [
        ('wqkv', 80, 8, 640, 1920, 'Q', WQKV),
    ]
    cs_roles = [('csq', 30, 8, 1920, 'Q', CSQ), ('csg', 24, 32, 1536, 'G', CSG), ('csu', 24, 40, 1536, 'U', CSG)]
    NX = 128
    seq = [('x', NX)] + [(r[0], r[1]) for r in cs_roles] + [(r[0], r[1]) for r in roles]
    NWG = sum(n for _, n in seq)
    a(f's_cmp_ge_u32 s2, {NWG}')
    a.branch(f's_cbranch_scc1 {name}_end')
    ws_srd(a, 4)
    base = 0
    starts = {}
    for lab, n in seq:
        starts[lab] = base
        base += n
    for lab, _ in reversed(seq[1:]):
        a(f's_cmp_ge_u32 s2, {starts[lab]}')
        a.branch(f's_cbranch_scc1 {name}_{lab}')
    a.label(f'{name}_x')
    if os.environ.get('PREP_ONLY', 'x') != 'x':
        a('s_endpgm')
    a('s_load_dwordx2 s[8:9], s[0:1], 0')
    a('v_lshrrev_b32 v2, 6, v0')
    a('v_readfirstlane_b32 s12, v2')
    a('v_and_b32 v1, 63, v0')
    a('s_mov_b32 s14, s2')
    a('v_and_b32 v3, 15, v1')
    a('v_mul_u32_u24 v3, 1280, v3')
    a('v_lshrrev_b32 v4, 4, v1')
    a('v_lshlrev_b32 v4, 4, v4')
    a('v_add_u32 v3, v3, v4')
    a(f's_mul_i32 s15, s14, {16*1280}')
    a('s_mul_i32 s16, s12, 320')
    a('s_add_u32 s15, s15, s16')
    a('v_lshlrev_b32 v5, 4, v1')
    a('s_waitcnt lgkmcnt(0)')
    fin_srd(a, 4, WS_SIZE)
    fin_srd(a, 8, S * D * 2)
    for kt in range(5):
        a(f'buffer_load_dwordx4 v[{16+4*kt}:{19+4*kt}], v3, s[8:11], s15 offen offset:{64*kt}', tag=('x', kt))
    a(f's_mul_i32 s16, s14, {20*1024}')
    a(f's_add_u32 s16, s16, {XF[0]}')
    a(f's_mul_i32 s17, s12, {5*1024}')
    a('s_add_u32 s16, s16, s17')
    a(f's_add_u32 s17, s16, 4096')
    a('s_lshl_b32 s18, s2, 8')
    a('v_add_u32 v6, s18, v0')
    a('v_lshrrev_b32 v7, 1, v6')
    a('v_lshlrev_b32 v7, 10, v7')
    a('v_and_b32 v6, 1, v6')
    a('v_lshlrev_b32 v6, 4, v6')
    a('v_add_u32 v7, v7, v6')
    for i in range(4):
        a(f'v_mov_b32 v{40+i}, 0x3f803f80')
    a(f's_mov_b32 s18, {VT + 640}')
    Lx = a.newlabel('noones')
    a('s_cmp_ge_u32 s2, 32')
    a.branch(f's_cbranch_scc1 {Lx}')
    a('buffer_store_dwordx4 v[40:43], v7, s[4:7], s18 offen')
    a.label(Lx)
    a('v_mov_b32 v8, 0')
    a('v_mov_b32 v9, 0')
    a('s_waitcnt vmcnt(0)')
    a.vmq = []
    for kt in range(5):
        if kt < 4:
            a(f'buffer_store_dwordx4 v[{16+4*kt}:{19+4*kt}], v5, s[4:7], s16 offen offset:{1024*kt}')
        else:
            a(f'buffer_store_dwordx4 v[{16+4*kt}:{19+4*kt}], v5, s[4:7], s17 offen')
        for w in range(4):
            a(f'v_lshlrev_b32 v12, 16, v{16+4*kt+w}')
            a(f'v_and_b32 v13, 0xffff0000, v{16+4*kt+w}')
            a('v_add_f32 v8, v8, v12')
            a('v_fma_f32 v9, v12, v12, v9')
            a('v_add_f32 v8, v8, v13')
            a('v_fma_f32 v9, v13, v13, v9')
    for sw in ('v_permlane16_swap_b32', 'v_permlane32_swap_b32'):
        for r in (8, 9):
            a(f'v_mov_b32 v12, v{r}')
            a(f'{sw} v12, v{r}')
            a(f'v_add_f32 v{r}, v{r}, v12')
    a('v_mov_b32 v10, 0')
    a('v_mov_b32 v11, 0')
    a('v_lshlrev_b32 v6, 6, v1')
    a('s_lshl_b32 s17, s14, 10')
    a('s_lshl_b32 s18, s12, 3')
    a('s_add_u32 s17, s17, s18')
    a(f's_add_u32 s17, s17, {ST[0]}')
    a('s_mov_b64 exec, 0xffff')
    a('buffer_store_dwordx2 v[8:9], v6, s[4:7], s17 offen')
    a('buffer_store_dwordx2 v[10:11], v6, s[4:7], s17 offen offset:32')
    a('s_endpgm')
    for (lab, nwg, slot, K, N, kind, dst) in roles:
        a.label(f'{name}_{lab}')
        a.vmq, a.lgq = [], []
        if os.environ.get('PREP_ONLY', lab) != lab:
            a('s_endpgm')
        a(f's_load_dwordx2 s[8:9], s[0:1], {slot}')
        KT = K // 32
        RB = N * 2
        NTL = N // 16
        a('v_lshrrev_b32 v2, 6, v0')
        a('v_readfirstlane_b32 s12, v2')
        a('v_and_b32 v1, 63, v0')
        a('v_lshlrev_b32 v3, 4, v1')
        a(f's_sub_u32 s13, s2, {starts[lab]}')
        if lab == 'wo':
            a('s_lshr_b32 s14, s13, 1')
            a('s_mul_i32 s14, s14, 20')
            a('s_and_b32 s15, s13, 1')
            a('s_lshl_b32 s15, s15, 2')
            a('s_add_u32 s14, s14, s15')
            a('s_add_u32 s15, s14, 8')
            a('s_sub_u32 s16, s13, 64')
            a('s_mul_i32 s16, s16, 40')
            a('s_add_u32 s16, s16, 16')
            a('s_add_u32 s17, s16, 20')
            a('s_cmp_lt_u32 s13, 64')
            a('s_cselect_b32 s14, s14, s16')
            a('s_cselect_b32 s15, s15, s17')
        else:
            a('s_lshl_b32 s14, s13, 3')
            a('s_add_u32 s15, s14, 4')
        a(f's_mul_i32 s14, s14, {RB}')
        a(f's_mul_i32 s15, s15, {RB}')
        a('s_waitcnt lgkmcnt(0)')
        fin_srd(a, 4, WS_SIZE)
        fin_srd(a, 8, K * N * 2)
        nch = 4 * RB // 1024
        tot = 2 * nch
        a('s_lshl_b32 s16, s12, 10')
        for i in range((tot + 3) // 4):
            a(f's_add_u32 s17, s16, {4096*i}')
            if 4 * i + 3 >= tot:
                a(f's_min_u32 s17, s17, {(tot-1)*1024}')
            a('s_mov_b32 m0, s17')
            a(f's_sub_u32 s18, s17, {nch*1024}')
            a('s_add_u32 s18, s18, s15')
            a('s_add_u32 s19, s17, s14')
            a(f's_cmp_lt_u32 s17, {nch*1024}')
            a('s_cselect_b32 s18, s19, s18')
            a('buffer_load_dwordx4 v3, s[8:11], s18 offen lds', tag='w')
        a('v_lshrrev_b32 v4, 4, v1')
        a('v_bfe_u32 v5, v1, 2, 2')
        a('v_and_b32 v6, 3, v1')
        a(f'v_mul_u32_u24 v5, {RB}, v5')
        a('v_and_b32 v7, 15, v1')
        a('v_lshlrev_b32 v7, 4, v7')
        a('s_lshr_b32 s20, s13, 2')
        a('s_lshl_b32 s20, s20, 10')
        a('s_and_b32 s21, s13, 3')
        a('s_lshl_b32 s21, s21, 8')
        a('s_add_u32 s20, s20, s21')
        a(f's_add_u32 s20, s20, {dst}')
        a('s_lshl_b32 s21, s12, 2')
        a('v_add_u32 v4, s21, v4')
        a.wait(vm_all=True)
        a('s_barrier')
        nit = (NTL + 15) // 16
        for it in range(nit):
            vb = 16 + 12 * (it & 1)
            a(f'v_add_u32 v{vb}, {16*it}, v4')
            if 16 * it + 15 >= NTL:
                a(f'v_min_u32 v{vb}, {NTL-1}, v{vb}')
            src_col(a, kind, vb, 6, vb + 1, vb + 2, vb + 3, vb + 4)
            a(f'v_lshl_add_u32 v{vb+1}, v{vb+1}, 1, v5')
            a(f'ds_read_b64_tr_b16 v[{vb+8}:{vb+9}], v{vb+1}', tag='t')
            a(f'ds_read_b64_tr_b16 v[{vb+10}:{vb+11}], v{vb+1} offset:{4*RB}', tag='t')
            a(f'v_mul_u32_u24 v{vb}, {KT*1024}, v{vb}')
            a(f'v_add_u32 v{vb}, v{vb}, v7')
            a.wait(lg_all=True)
            a(f'buffer_store_dwordx4 v[{vb+8}:{vb+11}], v{vb}, s[4:7], s20 offen')
        a('s_endpgm')
    for (lab, nwg, slot, N, kind, dst) in cs_roles:
        a.label(f'{name}_{lab}')
        a.vmq, a.lgq = [], []
        if os.environ.get('PREP_ONLY', lab) != lab:
            a('s_endpgm')
        a(f's_load_dwordx2 s[8:9], s[0:1], {slot}')
        a(f's_sub_u32 s12, s2, {starts[lab]}')
        a('s_lshl_b32 s12, s12, 6')
        a('v_lshrrev_b32 v1, 4, v0')
        a('v_and_b32 v2, 15, v0')
        a(f'v_mul_u32_u24 v3, {40}, v1')
        a(f's_mov_b32 s13, {N*2}')
        a('v_mul_lo_u32 v3, v3, s13')
        a('v_lshlrev_b32 v4, 3, v2')
        a('v_add_u32 v3, v3, v4')
        a('s_lshl_b32 s14, s12, 1')
        a('v_add_u32 v3, s14, v3')
        a('s_waitcnt lgkmcnt(0)')
        fin_srd(a, 4, WS_SIZE)
        fin_srd(a, 8, 640 * N * 2)
        for r in range(40):
            a(f's_mov_b32 s{14+(r&3)}, {r*N*2}')
            a(f'buffer_load_dwordx2 v[{16+2*r}:{17+2*r}], v3, s[8:11], s{14+(r&3)} offen', tag=('c', r))
        for e in range(4):
            a(f'v_mov_b32 v{8+e}, 0')
        for r in range(40):
            a.wait(vm=('c', r))
            for w in range(2):
                a(f'v_lshlrev_b32 v12, 16, v{16+2*r+w}')
                a(f'v_and_b32 v13, 0xffff0000, v{16+2*r+w}')
                a(f'v_add_f32 v{8+2*w}, v{8+2*w}, v12')
                a(f'v_add_f32 v{9+2*w}, v{9+2*w}, v13')
        a('v_lshlrev_b32 v4, 4, v0')
        a('ds_write_b128 v4, v[8:11]')
        a.wait(lg_all=True)
        a('s_barrier')
        a('v_lshlrev_b32 v4, 2, v0')
        for kc in range(16):
            a(f'ds_read_b32 v{16+kc}, v4 offset:{kc*256}', tag='r')
        a('v_lshrrev_b32 v2, 2, v0')
        a('v_lshlrev_b32 v2, 2, v2')
        a('v_add_u32 v2, s12, v2')
        map_tile(a, kind, 2, 5, 6, 7, 8, 9)
        a('v_lshlrev_b32 v5, 4, v5')
        a('v_add_u32 v5, v5, v6')
        a('v_and_b32 v6, 3, v0')
        a('v_add_u32 v5, v5, v6')
        a('v_lshlrev_b32 v5, 2, v5')
        a.wait(lg_all=True)
        for kc in range(1, 16):
            a(f'v_add_f32 v16, v16, v{16+kc}')
        a(f's_mov_b32 s22, {dst}')
        a('v_cmp_gt_u32 vcc, 64, v0')
        a('s_and_saveexec_b64 s[24:25], vcc')
        a.branch(f's_cbranch_execz {name}_end')
        a('buffer_store_dword v16, v5, s[4:7], s22 offen')
        a('s_endpgm')
    a.label(f'{name}_end')
    a('s_endpgm')
    kernels.append((name, NWG, 256, 30720, 128, 40, a.text()))


def build():
    gen_prep('prep_kernel')
    gen_qkv('qkv1_kernel', XF[0], ST[0])
    gen_attn('attn1_kernel', with_tr=True)
    gen_attn('attn_kernel')
    gen_res('wo1_kernel', 640, OF, WO_, XF[0], XF[1], ST[1])
    gen_gu('gu1_kernel', XF[1], ST[1])
    gen_res('dn1_kernel', 1536, HF, WD_, XF[1], XF[2], ST[2])
    gen_qkv('qkv2_kernel', XF[2], ST[2])
    gen_res('wo2_kernel', 640, OF, WO_, XF[2], XF[3], ST[3])
    gen_gu('gu2_kernel', XF[3], ST[3])
    gen_res('dn2_kernel', 1536, HF, WD_, XF[3], None, None, final=True)
    order = ['prep_kernel', 'qkv1_kernel', 'attn1_kernel', 'wo1_kernel', 'gu1_kernel', 'dn1_kernel',
             'qkv2_kernel', 'attn_kernel', 'wo2_kernel', 'gu2_kernel', 'dn2_kernel']
    kd = {k[0]: k for k in kernels}
    hdr = open('interleave_layers__sliding_block__glu_gated_glu__prompt.s.ref').read().split('\n')
    out = [l for l in hdr if l.startswith(';') and '@launch' not in l and 'Override' not in l and 'grid=ceil' not in l]
    for n in order:
        k = kd[n]
        out.append(f'; @launch kernel={n} grid=({k[1]},1,1) block=({k[2]},1,1) lds={k[3]}')
    out.append('.amdgcn_target "amdgcn-amd-amdhsa--gfx950"')
    for k in kernels:
        out.append(k[6])
    out.append('.section .rodata,"a"')
    for k in kernels:
        nv = (k[4] + 7) // 8 * 8
        out.append('.p2align 6')
        out.append(f'.amdhsa_kernel {k[0]}')
        out.append(f'  .amdhsa_next_free_vgpr {nv}')
        out.append(f'  .amdhsa_next_free_sgpr {k[5]}')
        out.append(f'  .amdhsa_accum_offset {min(nv, 256)}')
        out.append('  .amdhsa_group_segment_fixed_size 0')
        out.append('  .amdhsa_kernarg_size 80')
        out.append('  .amdhsa_user_sgpr_count 2')
        out.append('  .amdhsa_user_sgpr_kernarg_segment_ptr 1')
        out.append('  .amdhsa_system_sgpr_workgroup_id_x 1')
        out.append('.end_amdhsa_kernel')
    open(os.environ.get('OUT', 'interleave_layers__sliding_block__glu_gated_glu__prompt.s'), 'w').write('\n'.join(out) + '\n')
    for k in kernels:
        print(k[0], 'grid', k[1], 'lds', k[3], 'vgpr', k[4])


if __name__ == '__main__':
    build()
```

```python
import sys, math
sys.path.insert(0, 'gen')
from asmlib import Asm

S, D, H, DH, F = 2048, 640, 32, 20, 1536
WQKV = 0x0
WO_ = 0x260000
WGU = 0x330000
WD_ = 0x6F0000
CSQ = 0x8D0000
CSG = 0x8D2000
XF = [0x900000, 0xC00000, 0xF00000, 0x1200000]
ST = [0x1500000 + i * 0x20000 for i in range(4)]
QM = 0x1600000
KM = 0x1800000
QT = 0x1A00000
KT_ = 0x1A80000
VT = 0x1B00000
OF = 0x1F00000
HF = 0x2200000
WS_SIZE = 0x10000000

LOG2E = 1.4426950408889634


def f32hex(x):
    import struct
    return '0x%08x' % struct.unpack('<I', struct.pack('<f', x))[0]


kernels = []
import os
STAMP = os.environ.get('STAMP', '')
stamp_n = [0]


def stamp(a, name):
    if STAMP != name:
        return
    i = stamp_n[0]
    stamp_n[0] += 1
    a(f'{"s_memrealtime" if os.environ.get("STAMP_RT") else "s_memtime"} s[{80+2*i}:{81+2*i}]')
    a('s_waitcnt lgkmcnt(0)')


def stamp_out(a, name):
    if STAMP != name:
        return
    n = stamp_n[0]
    L = a.newlabel('so')
    a('s_mov_b64 exec, -1')
    if os.environ.get('STAMP_RT'):
        a('s_cmp_lg_u32 s12, 0')
        a.branch(f's_cbranch_scc1 {L}')
        a('s_lshl_b32 s76, s2, 6')
        a('s_add_u32 s76, s76, 0x3000000')
        a('v_mov_b32 v0, 0')
        for i in range(n):
            a(f'v_mov_b32 v1, s{80+2*i}')
            a(f'buffer_store_dword v1, v0, s[4:7], s76 offen offset:{4*i}')
        a.label(L)
        stamp_n[0] = 0
        return
    a(f's_cmp_lg_u32 s2, {os.environ.get("STAMP_WG", "0")}')
    a.branch(f's_cbranch_scc1 {L}')
    a('s_load_dwordx2 s[76:77], s[0:1], 64')
    a('s_waitcnt lgkmcnt(0)')
    a('s_and_b32 s77, s77, 0xffff')
    a('s_mov_b32 s78, 256')
    a('s_mov_b32 s79, 0x00020000')
    a('v_lshrrev_b32 v0, 6, v0')
    a('v_lshlrev_b32 v0, 6, v0')
    for i in range(n):
        a(f'v_mov_b32 v1, s{80+2*i}')
        a(f'buffer_store_dword v1, v0, s[76:79], 0 offen offset:{4*i}')
    a.label(L)
    stamp_n[0] = 0


def begin(a, name):
    a.raw('.text')
    a.raw(f'.globl {name}')
    a.raw('.p2align 8')
    a.raw(f'.type {name},@function')
    a.raw(f'{name}:')


def ws_srd(a, sreg=4, slot=72, size=WS_SIZE):
    a(f's_load_dwordx2 s[{sreg}:{sreg+1}], s[0:1], {slot}')


def fin_srd(a, sreg, size):
    a(f's_and_b32 s{sreg+1}, s{sreg+1}, 0xffff')
    a(f's_mov_b32 s{sreg+2}, {size}')
    a(f's_mov_b32 s{sreg+3}, 0x00020000')


def R4(i):
    return f'v[{i}:{i+3}]' if i < 256 else f'a[{i-256}:{i-253}]'


def bf16r(a, v):
    a(f'v_cvt_pk_bf16_f32 v{v}, v{v}, v{v}')
    a(f'v_lshlrev_b32 v{v}, 16, v{v}')


class G:
    pass


NL = 2


def gemm_core(a, g, swap):
    KST, NS, KT = g.KST, g.NS, g.K // 32
    TB = KST * 1024
    SB = g.SB

    def read_list(t):
        st, kk = t // KST, t % KST
        sl = st % NS
        p = t & 1
        L = []
        for i in range(g.mtw):
            off = sl * SB + i * TB + kk * 1024
            L.append(lambda i=i, off=off: a(f'ds_read_b128 {R4(g.fa(p, i))}, v{g.v_a + (off >> 16)} offset:{off & 0xffff}', tag=('rd', t)))
        for b in range(g.ntw):
            off = sl * SB + (g.MT + b) * TB + kk * 1024
            L.append(lambda b=b, off=off: a(f'ds_read_b128 {R4(g.fb(p, b))}, v{g.v_b + (off >> 16)} offset:{off & 0xffff}', tag=('rd', t)))
        return L

    def mfmas(t, R):
        p = t & 1
        nm = g.mtw * g.ntw
        nr = len(R)
        span = max(1, int(nm * 0.6))
        cnt = 0
        si = 0
        for i in range(g.mtw):
            for b in range(g.ntw):
                acc = g.acc(i, b)
                A = g.fa(p, i)
                B = g.fb(p, b)
                c = '0' if t == 0 else f'v[{acc}:{acc+3}]'
                if swap:
                    a(f'v_mfma_f32_16x16x32_bf16 v[{acc}:{acc+3}], {R4(A)}, {R4(B)}, {c}')
                else:
                    a(f'v_mfma_f32_16x16x32_bf16 v[{acc}:{acc+3}], {R4(B)}, {R4(A)}, {c}')
                cnt += 1
                while si < nr and (si * span) / nr < cnt:
                    R[si]()
                    si += 1
        while si < nr:
            R[si]()
            si += 1

    stamp(a, g.name)
    if g.mid_prologue:
        g.mid_prologue()
    a.wait(lg_all=True)
    a('s_barrier')
    stamp(a, g.name)
    for f in read_list(0):
        f()
    for t in range(KT):
        a.wait(lg_all=True)
        if t + 1 < KT and (t + 1) % KST == 0:
            a('s_barrier')
            if (t + 1) in (2, 8, KT - 2):
                stamp(a, g.name)
        mfmas(t, read_list(t + 1) if t + 1 < KT else [])
    stamp(a, g.name)


def gemm_core_adirect(a, g):
    KST, NS, KT, DA = g.KST, g.NS, g.K // 32, g.DA
    TB, SB = KST * 1024, g.SB

    def a_load(t):
        for i in range(g.mtw):
            a(f's_add_u32 s{22 + (i & 1)}, s{48 + i}, {t * 1024}')
            r = g.fa(t % DA, i)
            a(f'buffer_load_dwordx4 v[{r}:{r+3}], v{g.v_l16}, s[4:7], s{22 + (i & 1)} offen', tag=('a', t))

    def b_read(t, b):
        st, kk = t // KST, t % KST
        off = (st % NS) * SB + b * TB + kk * 1024
        a(f'ds_read_b128 {R4(g.fb(0, b))}, v{g.v_b + (off >> 16)} offset:{off & 0xffff}', tag=('rd', t, b))

    for i in range(g.mtw):
        a(f's_mul_i32 s22, s13, {g.MT}')
        a(f's_mul_i32 s23, s15, {g.mtw}')
        a('s_add_u32 s22, s22, s23')
        a(f's_add_u32 s22, s22, {i}')
        a(f's_mul_i32 s22, s22, {KT * 1024}')
        a(f's_add_u32 s{48 + i}, s22, {g.a_base}')
    stamp(a, g.name)
    for t in range(min(DA, KT)):
        a_load(t)
    if g.mid_prologue:
        g.mid_prologue()
    a.wait(lg_all=True)
    a('s_barrier')
    stamp(a, g.name)
    for b in range(g.ntw):
        b_read(0, b)
    for t in range(KT):
        if t + 1 < KT and (t + 1) % KST == 0:
            a.wait(lg_all=True)
            a('s_barrier')
            if (t + 1) in (2, 8, KT - 2):
                stamp(a, g.name)
        a.wait(vm=('a', t))
        for b in range(g.ntw):
            a.wait(lg=('rd', t, b))
            for i in range(g.mtw):
                acc = g.acc(i, b)
                c = '0' if t == 0 else f'v[{acc}:{acc+3}]'
                a(f'v_mfma_f32_16x16x32_bf16 v[{acc}:{acc+3}], {R4(g.fb(0, b))}, {R4(g.fa(t % DA, i))}, {c}')
            if t + 1 < KT:
                b_read(t + 1, b)
        if t + DA < KT:
            a_load(t + DA)
    stamp(a, g.name)


def loader_path(a, g):
    KST, NS, KT = g.KST, g.NS, g.K // 32
    KS = KT // KST
    TB = KST * 1024
    SB = g.SB
    ad = getattr(g, 'a_direct', False)
    ntile = g.NT if ad else g.MT + g.NT
    per = (ntile + NL - 1) // NL
    split_last = (ntile % NL != 0)
    assert not split_last or (KST == NL and ntile % NL == 1)
    a('s_sub_u32 s12, s12, 4')

    def offs(j):
        last = split_last and j == per - 1
        if last:
            a(f's_mov_b32 s18, {ntile - 1}')
        else:
            a(f's_add_u32 s18, s12, {NL * j}')
        a(f's_mul_i32 s{g.s_l + j}, s18, {TB}')
        if ad:
            a(f's_mul_i32 s21, s14, {g.NT}')
            a('s_add_u32 s21, s21, s18')
            a(f's_mul_i32 s21, s21, {KT * 1024}')
            a(f's_add_u32 s{g.s_g + j}, s21, {g.b_base}')
            if last:
                a('s_lshl_b32 s18, s12, 10')
                a(f's_add_u32 s{g.s_g + j}, s{g.s_g + j}, s18')
                a(f's_add_u32 s{g.s_l + j}, s{g.s_l + j}, s18')
            return
        a(f's_mul_i32 s20, s13, {g.MT}')
        a('s_add_u32 s20, s20, s18')
        a(f's_mul_i32 s20, s20, {KT * 1024}')
        a(f's_add_u32 s20, s20, {g.a_base}')
        a(f's_mul_i32 s21, s14, {g.NT}')
        a('s_add_u32 s21, s21, s18')
        a(f's_sub_u32 s21, s21, {g.MT}')
        a(f's_mul_i32 s21, s21, {KT * 1024}')
        a(f's_add_u32 s21, s21, {g.b_base}')
        a(f's_cmp_lt_u32 s18, {g.MT}')
        a(f's_cselect_b32 s{g.s_g + j}, s20, s21')
        if last:
            a('s_lshl_b32 s18, s12, 10')
            a(f's_add_u32 s{g.s_g + j}, s{g.s_g + j}, s18')
            a(f's_add_u32 s{g.s_l + j}, s{g.s_l + j}, s18')

    def dma1(st, j):
        sl = st % NS
        last = split_last and j == per - 1
        a(f's_add_u32 m0, s{g.s_l + j}, {sl * SB}')
        t = g.s_tmp + (j & 1)
        a(f's_add_u32 s{t}, s{g.s_g + j}, {st * TB}')
        for kk in range(1 if last else KST):
            a(f'buffer_load_dwordx4 v{g.v_l16}, s[4:7], s{t} offen offset:{kk * 1024} lds', tag=('dma', st))

    for j in range(per):
        offs(j)
    a('s_waitcnt lgkmcnt(0)')
    fin_srd(a, 4, WS_SIZE)
    P = min(NS, KS, g.lpro)
    for st in range(0, P):
        for j in range(per):
            dma1(st, j)
    issued = P
    for st in range(KS):
        a.wait(vm=('dma', st))
        a('s_barrier')
        allowed = min(KS, st + NS)
        n = 0
        while issued < allowed and n < g.lramp:
            for j in range(per):
                dma1(issued, j)
            issued += 1
            n += 1
    a('s_endpgm')


def gemm_setup(a, g, name, MB, NB, need_out=False):
    NWG = MB * NB
    g.name = name
    begin(a, name)
    if os.environ.get('STAMP_RT'):
        stamp(a, name)
    a(f's_cmp_ge_u32 s2, {NWG}')
    a.branch(f's_cbranch_scc1 {name}_end')
    ws_srd(a, 4)
    if need_out:
        a('s_load_dwordx2 s[8:9], s[0:1], 56')
    a('v_lshrrev_b32 v2, 6, v0')
    a('v_readfirstlane_b32 s12, v2')
    a('v_and_b32 v1, 63, v0')
    a(f'v_lshlrev_b32 v{g.v_l16}, 4, v1')
    BA = g.band
    nbands = MB // BA
    XPB = 8 // nbands
    per = MB * NB // 8
    a('s_and_b32 s17, s2, 7')
    a('s_lshr_b32 s18, s2, 3')
    a(f's_and_b32 s19, s17, {XPB - 1}')
    a(f's_lshr_b32 s17, s17, {int(math.log2(XPB))}')
    a(f's_mul_i32 s19, s19, {per}')
    a('s_add_u32 s18, s18, s19')
    a(f's_and_b32 s13, s18, {BA - 1}')
    a(f's_lshl_b32 s17, s17, {int(math.log2(BA))}')
    a('s_add_u32 s13, s13, s17')
    a(f's_lshr_b32 s14, s18, {int(math.log2(BA))}')
    a('s_cmp_lt_u32 s12, 4')
    a.branch(f's_cbranch_scc1 {name}_comp')
    loader_path(a, g)
    a.label(f'{name}_comp')
    a.vmq = []
    if g.WN == 1:
        a('s_mov_b32 s15, s12')
        a('s_mov_b32 s16, 0')
    elif g.WM == 1:
        a('s_mov_b32 s15, 0')
        a('s_mov_b32 s16, s12')
    else:
        a('s_lshr_b32 s15, s12, 1')
        a('s_and_b32 s16, s12, 1')
    a(f's_mul_i32 s17, s15, {g.mtw * g.KST * 1024}')
    a(f's_mul_i32 s18, s16, {g.ntw * g.KST * 1024}')
    for h in range(3):
        a(f'v_add_u32 v{g.v_a + h}, s17, v{g.v_l16}')
        a(f'v_add_u32 v{g.v_b + h}, s18, v{g.v_l16}')
        if h:
            a(f'v_add_u32 v{g.v_a + h}, {h << 16}, v{g.v_a + h}')
            a(f'v_add_u32 v{g.v_b + h}, {h << 16}, v{g.v_b + h}')
    a('s_waitcnt lgkmcnt(0)')
    fin_srd(a, 4, WS_SIZE)
    if need_out:
        fin_srd(a, 8, S * D * 2)


def alloc(g, extra_base):
    g.v_l16 = 3
    g.v_a = 4
    g.v_b = 7
    g.mtw = g.MT // g.WM
    g.ntw = g.NT // g.WN
    g.SB = (g.MT + g.NT) * g.KST * 1024
    g.s_g = 24
    g.s_l = 56
    g.s_tmp = 22
    nacc = g.mtw * g.ntw * 4
    g.acc0 = extra_base
    g.acc = lambda i, b: g.acc0 + (i * g.ntw + b) * 4
    g.f0 = g.acc0 + nacc
    setsz = (g.mtw + g.ntw) * 4
    g.fa = lambda p, i: g.f0 + p * setsz + i * 4
    g.fb = lambda p, b: g.f0 + p * setsz + (g.mtw + b) * 4
    g.vend = g.f0 + 2 * setsz
    g.mid_prologue = None
    dflt = {8: (2, 1), 12: (2, 99), 5: ((2, 2) if g.K == 640 else (3, 3))}[g.NT]
    g.lpro = int(os.environ.get('LPRO_' + str(g.NT), dflt[0]))
    g.lramp = int(os.environ.get('LRAMP', dflt[1]))
    if getattr(g, 'a_direct', False):
        g.SB = g.NT * g.KST * 1024
        g.fb = lambda p, b: g.f0 + b * 4
        g.fa = lambda d, i: g.f0 + g.ntw * 4 + (d * g.mtw + i) * 4
        g.vend = g.f0 + g.ntw * 4 + g.DA * g.mtw * 4


def ln_stats_issue(a, g, st_base, vt):
    a(f'v_and_b32 v2, 127, v0')
    a(f'v_lshlrev_b32 v2, 6, v2')
    a(f's_lshl_b32 s17, s13, 13')
    a(f's_add_u32 s17, s17, {st_base}')
    for i in range(4):
        a(f'buffer_load_dwordx4 v[{vt+4*i}:{vt+4*i+3}], v2, s[4:7], s17 offen offset:{16*i}', tag='stats')


def ln_stats_finish(a, g, vt, lds_off):
    a.wait(vm='stats')
    for i in range(1, 8):
        a(f'v_add_f32 v{vt}, v{vt}, v{vt+2*i}')
        a(f'v_add_f32 v{vt+1}, v{vt+1}, v{vt+2*i+1}')
    inv = f32hex(1.0 / D)
    a(f'v_mul_f32 v{vt}, {inv}, v{vt}')
    a(f'v_mul_f32 v{vt+1}, {inv}, v{vt+1}')
    a(f'v_fma_f32 v{vt+1}, -v{vt}, v{vt}, v{vt+1}')
    a(f'v_max_f32 v{vt+1}, 0, v{vt+1}')
    bf16r(a, vt)
    bf16r(a, vt + 1)
    a(f'v_add_f32 v{vt+1}, {f32hex(1e-5)}, v{vt+1}')
    bf16r(a, vt + 1)
    a(f'v_sqrt_f32 v{vt+1}, v{vt+1}')
    bf16r(a, vt + 1)
    a(f'v_rcp_f32 v{vt+1}, v{vt+1}')
    a(f'v_and_b32 v{vt+2}, 127, v0')
    a(f'v_lshlrev_b32 v{vt+2}, 3, v{vt+2}')
    a(f'v_add_u32 v{vt+2}, {lds_off}, v{vt+2}')
    a(f'ds_write_b64 v{vt+2}, v[{vt}:{vt+1}]')


def gen_qkv(name, x_base, st_base):
    a = Asm()
    g = G()
    g.MT, g.NT, g.WM, g.WN, g.K = 8, 8, 2, 2, 640
    g.KST, g.NS = int(os.environ.get('QKV_KST', 2)), int(os.environ.get('QKV_NS', 4))
    g.a_base, g.b_base = x_base, WQKV
    g.band = int(os.environ.get('QKV_BAND', 4))
    g.pro = 3
    MISC = 10
    alloc(g, 48)
    STL = g.NS * g.SB
    lds = STL + 1024
    MB, NB = 16, 15
    gemm_setup(a, g, name, MB, NB)
    VT_, VCS = 10, 26
    ln_stats_issue(a, g, st_base, VT_)
    a('v_lshrrev_b32 v2, 4, v1')
    a(f's_cmp_ge_u32 s14, 10')
    a.branch(f's_cbranch_scc1 {name}_v')
    a('v_lshlrev_b32 v42, 4, v2')
    a('s_lshl_b32 s17, s14, 9')
    a('s_lshl_b32 s18, s16, 8')
    a('s_add_u32 s17, s17, s18')
    a(f's_add_u32 s17, s17, {CSQ}')
    for b in range(4):
        a(f'buffer_load_dwordx4 v[{VCS+4*b}:{VCS+4*b+3}], v42, s[4:7], s17 offen offset:{64*b}', tag='cs')
    g.mid_prologue = lambda: ln_stats_finish(a, g, VT_, STL)
    gemm_core(a, g, swap=False)
    a.wait(vm='cs')
    a('v_and_b32 v43, 15, v1')
    a('v_lshlrev_b32 v44, 3, v43')
    a('s_lshl_b32 s17, s15, 9')
    a(f's_add_u32 s17, s17, {STL}')
    a('v_add_u32 v44, s17, v44')
    for i in range(4):
        a(f'ds_read_b64 v[{VT_+2*i}:{VT_+2*i+1}], v44 offset:{i*128}', tag='tst')
    a.wait(lg_all=True)
    for i in range(4):
        for b in range(4):
            acc = g.acc(i, b)
            for r in (0, 2):
                a(f'v_pk_fma_f32 v[{acc+r}:{acc+r+1}], v[{VT_+2*i}:{VT_+2*i+1}], v[{VCS+4*b+r}:{VCS+4*b+r+1}], v[{acc+r}:{acc+r+1}] op_sel_hi:[0,1,1] neg_lo:[1,0,0] neg_hi:[1,0,0]')
                a(f'v_pk_mul_f32 v[{acc+r}:{acc+r+1}], v[{VT_+2*i}:{VT_+2*i+1}], v[{acc+r}:{acc+r+1}] op_sel:[1,0] op_sel_hi:[1,1]')
    a('s_cmp_ge_u32 s14, 5')
    a('s_cselect_b32 s17, 1, 0')
    a('s_mul_i32 s18, s17, 5')
    a('s_sub_u32 s18, s14, s18')
    a('s_lshl_b32 s19, s13, 7')
    a('s_lshl_b32 s20, s15, 6')
    a('s_add_u32 s19, s19, s20')
    a('s_cmp_eq_u32 s18, 4')
    a.branch(f's_cbranch_scc1 {name}_tail')
    a('v_lshrrev_b32 v44, 1, v2')
    a('v_lshlrev_b32 v44, 16, v44')
    a('v_lshlrev_b32 v45, 5, v43')
    a('v_add_u32 v44, v44, v45')
    a('v_and_b32 v45, 1, v2')
    a('v_lshlrev_b32 v45, 4, v45')
    a('v_add_u32 v44, v44, v45')
    a('s_lshl_b32 s20, s17, 21')
    a(f's_add_u32 s20, s20, {QM}')
    a('s_lshl_b32 s21, s18, 19')
    a('s_add_u32 s20, s20, s21')
    a('s_lshl_b32 s21, s16, 18')
    a('s_add_u32 s20, s20, s21')
    a('s_lshl_b32 s21, s19, 5')
    a('s_add_u32 s20, s20, s21')
    a(f's_add_u32 s21, s20, {2*65536}')
    for i in range(4):
        for bp in range(2):
            a0, a1 = g.acc(i, 2 * bp), g.acc(i, 2 * bp + 1)
            t = VT_ + 8 + ((i * 2 + bp) & 1) * 4
            a(f'v_cvt_pk_bf16_f32 v{t}, v{a0}, v{a0+1}')
            a(f'v_cvt_pk_bf16_f32 v{t+1}, v{a0+2}, v{a0+3}')
            a(f'v_cvt_pk_bf16_f32 v{t+2}, v{a1}, v{a1+1}')
            a(f'v_cvt_pk_bf16_f32 v{t+3}, v{a1+2}, v{a1+3}')
            a(f'buffer_store_dwordx4 v[{t}:{t+3}], v44, s[4:7], s{20+bp} offen offset:{i*512}')
    if STAMP == name:
        a.wait(vm_all=True)
        stamp(a, name)
        stamp_out(a, name)
    a('s_endpgm')
    a.label(f'{name}_tail')
    a('v_lshlrev_b32 v44, 15, v2')
    a('v_lshlrev_b32 v45, 3, v43')
    a('v_add_u32 v44, v44, v45')
    a('s_lshl_b32 s20, s17, 19')
    a(f's_add_u32 s20, s20, {QT}')
    a('s_lshl_b32 s21, s16, 18')
    a('s_add_u32 s20, s20, s21')
    a('s_lshl_b32 s21, s19, 3')
    a('s_add_u32 s20, s20, s21')
    for bp in range(2):
        for t in range(2):
            a(f's_add_u32 s{40+bp*2+t}, s20, {(bp*8 + t) * 16384}')
    for i in range(4):
        for b in range(4):
            a0 = g.acc(i, b)
            t = VT_ + 8 + ((i * 4 + b) & 3) * 2
            a(f'v_cvt_pk_bf16_f32 v{t}, v{a0}, v{a0+1}')
            a(f'v_cvt_pk_bf16_f32 v{t+1}, v{a0+2}, v{a0+3}')
            a(f'buffer_store_dwordx2 v[{t}:{t+1}], v44, s[4:7], s{40+b} offen offset:{i*128}')
    a('s_endpgm')
    a.label(f'{name}_v')
    a.vmq = ['stats'] * 4
    a('v_and_b32 v43, 15, v1')
    a('v_lshlrev_b32 v42, 2, v43')
    a('s_lshl_b32 s17, s14, 9')
    a('s_lshl_b32 s18, s16, 8')
    a('s_add_u32 s17, s17, s18')
    a(f's_add_u32 s17, s17, {CSQ}')
    for b in range(4):
        a(f'buffer_load_dword v{VCS+b}, v42, s[4:7], s17 offen offset:{64*b}', tag='cs')
    g.mid_prologue = lambda: ln_stats_finish(a, g, VT_, STL)
    gemm_core(a, g, swap=True)
    a.wait(vm='cs')
    a('s_sub_u32 s17, s14, 10')
    a('s_lshl_b32 s17, s17, 7')
    a('s_lshl_b32 s18, s16, 6')
    a('s_add_u32 s17, s17, s18')
    a('v_add_u32 v44, s17, v43')
    a('v_and_b32 v45, 1, v2')
    a('v_lshlrev_b32 v45, 4, v45')
    a('v_lshrrev_b32 v46, 1, v2')
    a('v_lshlrev_b32 v46, 3, v46')
    a('v_add_u32 v45, v45, v46')
    a('s_mov_b32 s18, 3277')
    for b in range(4):
        vo = VCS + 4 + b
        a(f'v_add_u32 v46, {16*b}, v44')
        a('v_mul_lo_u32 v47, v46, s18')
        a('v_lshrrev_b32 v47, 16, v47')
        a(f'v_mul_u32_u24 v{vo}, 20, v47')
        a(f'v_sub_u32 v{vo}, v46, v{vo}')
        a(f'v_lshlrev_b32 v{vo}, 5, v{vo}')
        a('v_lshlrev_b32 v47, 17, v47')
        a(f'v_add_u32 v{vo}, v{vo}, v47')
        a(f'v_add_u32 v{vo}, v{vo}, v45')
    a('s_lshl_b32 s20, s13, 13')
    a('s_lshl_b32 s21, s15, 12')
    a('s_add_u32 s20, s20, s21')
    a(f's_add_u32 s20, s20, {VT}')
    a('v_lshlrev_b32 v44, 5, v2')
    a('s_lshl_b32 s17, s15, 9')
    a(f's_add_u32 s17, s17, {STL}')
    a('v_add_u32 v44, s17, v44')
    for i in range(4):
        a(f'ds_read_b128 v[{VT_}:{VT_+3}], v44 offset:{i*128}', tag='tst')
        a(f'ds_read_b128 v[{VT_+4}:{VT_+7}], v44 offset:{i*128+16}', tag='tst')
        a.wait(lg_all=True)
        for b in range(4):
            acc = g.acc(i, b)
            for r in range(4):
                a(f'v_fma_f32 v{acc+r}, -v{VT_+2*r}, v{VCS+b}, v{acc+r}')
                a(f'v_mul_f32 v{acc+r}, v{VT_+2*r+1}, v{acc+r}')
            t = VT_ + 8 + (b & 3) * 2
            a(f'v_cvt_pk_bf16_f32 v{t}, v{acc}, v{acc+1}')
            a(f'v_cvt_pk_bf16_f32 v{t+1}, v{acc+2}, v{acc+3}')
            a(f'buffer_store_dwordx2 v[{t}:{t+1}], v{VCS+4+b}, s[4:7], s20 offen offset:{i*1024}')
    a.label(f'{name}_end')
    a('s_endpgm')
    kernels.append((name, MB * NB, 256 + 64 * NL, lds, g.vend, 100, a.text()))


def gen_res(name, K, a_base, b_base, xin, xout, st_out, final=False):
    a = Asm()
    g = G()
    g.MT, g.NT, g.WM, g.WN, g.K = 4, 5, 4, 1, K
    g.KST, g.NS = 2, 8
    g.a_base, g.b_base = a_base, b_base
    g.band = int(os.environ.get('RES_BAND', 8))
    g.pro = 5
    alloc(g, 32)
    lds = g.NS * g.SB
    MB, NB = 32, 8
    gemm_setup(a, g, name, MB, NB, need_out=final)
    VR = 10
    a('s_lshl_b32 s17, s13, 2')
    a('s_add_u32 s17, s17, s15')
    a('s_mul_i32 s18, s14, 5')
    for b in range(5):
        a(f's_add_u32 s19, s18, {b}')
        a('s_lshr_b32 s20, s19, 1')
        a('s_and_b32 s21, s19, 1')
        a('s_lshl_b32 s21, s21, 3')
        a('s_mul_i32 s22, s17, 20')
        a('s_add_u32 s22, s22, s20')
        a('s_lshl_b32 s22, s22, 10')
        a(f's_add_u32 s{40+b}, s22, s21')
        if final:
            a(f's_mul_i32 s22, s17, {16*1280}')
            a('s_lshl_b32 s20, s20, 6')
            a('s_add_u32 s22, s22, s20')
            a(f's_add_u32 s{46+b}, s22, s21')
        a(f's_add_u32 s22, s{40+b}, {xin}')
        a(f'buffer_load_dwordx2 v[{VR+2*b}:{VR+2*b+1}], v{g.v_l16}, s[4:7], s22 offen', tag='res')
    gemm_core(a, g, swap=False)
    a.wait(vm='res')
    VS = 20
    a(f'v_mov_b32 v{VS}, 0')
    a(f'v_mov_b32 v{VS+1}, 0')
    if final:
        a('v_and_b32 v24, 15, v1')
        a('v_mul_u32_u24 v24, 1280, v24')
        a('v_lshrrev_b32 v25, 4, v1')
        a('v_lshlrev_b32 v25, 4, v25')
        a('v_add_u32 v24, v24, v25')
    for b in range(5):
        acc = g.acc(0, b)
        a(f'v_cvt_pk_bf16_f32 v{acc}, v{acc}, v{acc+1}')
        a(f'v_cvt_pk_bf16_f32 v{acc+2}, v{acc+2}, v{acc+3}')
        a(f'v_and_b32 v{acc+1}, 0xffff0000, v{acc}')
        a(f'v_lshlrev_b32 v{acc}, 16, v{acc}')
        a(f'v_and_b32 v{acc+3}, 0xffff0000, v{acc+2}')
        a(f'v_lshlrev_b32 v{acc+2}, 16, v{acc+2}')
        r0, r1 = VR + 2 * b, VR + 2 * b + 1
        a(f'v_lshlrev_b32 v22, 16, v{r0}')
        a(f'v_and_b32 v23, 0xffff0000, v{r0}')
        a(f'v_add_f32 v{acc}, v{acc}, v22')
        a(f'v_add_f32 v{acc+1}, v{acc+1}, v23')
        a(f'v_lshlrev_b32 v22, 16, v{r1}')
        a(f'v_and_b32 v23, 0xffff0000, v{r1}')
        a(f'v_add_f32 v{acc+2}, v{acc+2}, v22')
        a(f'v_add_f32 v{acc+3}, v{acc+3}, v23')
        a(f'v_cvt_pk_bf16_f32 v{r0}, v{acc}, v{acc+1}')
        a(f'v_cvt_pk_bf16_f32 v{r1}, v{acc+2}, v{acc+3}')
        if final:
            a(f'buffer_store_dwordx2 v[{r0}:{r1}], v24, s[8:11], s{46+b} offen')
        else:
            a(f's_add_u32 s22, s{40+b}, {xout}')
            a(f'buffer_store_dwordx2 v[{r0}:{r1}], v{g.v_l16}, s[4:7], s22 offen')
            for r in (r0, r1):
                a(f'v_lshlrev_b32 v22, 16, v{r}')
                a(f'v_and_b32 v23, 0xffff0000, v{r}')
                a(f'v_add_f32 v{VS}, v{VS}, v22')
                a(f'v_fma_f32 v{VS+1}, v22, v22, v{VS+1}')
                a(f'v_add_f32 v{VS}, v{VS}, v23')
                a(f'v_fma_f32 v{VS+1}, v23, v23, v{VS+1}')
    if not final:
        for sw in ('v_permlane16_swap_b32', 'v_permlane32_swap_b32'):
            for r in (VS, VS + 1):
                a(f'v_mov_b32 v22, v{r}')
                a(f'{sw} v22, v{r}')
                a(f'v_add_f32 v{r}, v{r}, v22')
        a('v_lshlrev_b32 v22, 6, v1')
        a('s_lshl_b32 s22, s17, 10')
        a('s_lshl_b32 s23, s14, 3')
        a('s_add_u32 s22, s22, s23')
        a(f's_add_u32 s22, s22, {st_out}')
        a('s_mov_b64 exec, 0xffff')
        a(f'buffer_store_dwordx2 v[{VS}:{VS+1}], v22, s[4:7], s22 offen')
    if STAMP == name:
        a.wait(vm_all=True)
        stamp(a, name)
        stamp_out(a, name)
    a.label(f'{name}_end')
    a('s_endpgm')
    kernels.append((name, MB * NB, 256 + 64 * NL, lds, g.vend, 100, a.text()))


def gen_gu(name, x_base, st_base):
    a = Asm()
    g = G()
    g.MT, g.NT, g.WM, g.WN, g.K = 8, 12, 4, 1, 640
    g.a_direct, g.DA = bool(os.environ.get('GU_AD')), int(os.environ.get('GU_DA', 8))
    g.KST, g.NS = int(os.environ.get('GU_KST', 2)), int(os.environ.get('GU_NS', 6 if g.a_direct else 3))
    g.a_base, g.b_base = x_base, WGU
    g.band = int(os.environ.get('GU_BAND', 8))
    g.pro = 2
    alloc(g, 32)
    STL = g.NS * g.SB
    CSL = STL + 1024
    lds = STL + 2048
    MB, NB = 16, 16
    gemm_setup(a, g, name, MB, NB)
    VT_, VCS = 10, g.f0
    ln_stats_issue(a, g, st_base, VT_)
    a('v_lshlrev_b32 v26, 2, v0')
    a(f's_mul_i32 s17, s14, {12*64}')
    a(f's_add_u32 s17, s17, {CSG}')
    a('buffer_load_dword v27, v26, s[4:7], s17 offen', tag='cs')

    def mp():
        ln_stats_finish(a, g, VT_, STL)
        a.wait(vm='cs')
        a(f'v_add_u32 v26, {CSL}, v26')
        a('ds_write_b32 v26, v27')
    g.mid_prologue = mp
    if g.a_direct:
        gemm_core_adirect(a, g)
    else:
        gemm_core(a, g, swap=False)
    a('v_lshrrev_b32 v2, 4, v1')
    a('v_lshlrev_b32 v26, 4, v2')
    a(f'v_add_u32 v26, {CSL}, v26')
    for b in range(12):
        a(f'ds_read_b128 v[{VCS+4*b}:{VCS+4*b+3}], v26 offset:{64*b}', tag='tst')
    a('v_and_b32 v27, 15, v1')
    a('v_lshlrev_b32 v27, 3, v27')
    a('s_lshl_b32 s17, s15, 8')
    a(f's_add_u32 s17, s17, {STL}')
    a('v_add_u32 v27, s17, v27')
    for i in range(2):
        a(f'ds_read_b64 v[{VT_+4*i}:{VT_+4*i+1}], v27 offset:{i*128}', tag='tst')
    a('s_lshl_b32 s17, s13, 3')
    a('s_lshl_b32 s18, s15, 1')
    a('s_add_u32 s17, s17, s18')
    a('s_mul_i32 s17, s17, 48')
    a('s_mul_i32 s18, s14, 3')
    a('s_add_u32 s17, s17, s18')
    a('s_lshl_b32 s17, s17, 10')
    a(f's_add_u32 s17, s17, {HF}')
    a(f's_add_u32 s18, s17, {48*1024}')
    a.wait(lg_all=True)
    for i in range(2):
        a(f'v_mul_f32 v{VT_+4*i+2}, {f32hex(-LOG2E)}, v{VT_+4*i+1}')
        a(f'v_mov_b32 v{VT_+4*i+3}, 1.0')
    for i in range(2):
        M = f'v[{VT_+4*i}:{VT_+4*i+1}]'
        E = f'v[{VT_+4*i+2}:{VT_+4*i+3}]'
        for fg in range(3):
            t = g.acc(i, fg * 4)
            for tt in range(2):
                ag, au = g.acc(i, fg * 4 + tt), g.acc(i, fg * 4 + 2 + tt)
                cg, cu = VCS + 4 * (fg * 4 + tt), VCS + 4 * (fg * 4 + 2 + tt)
                for r in (0, 2):
                    G2, U2 = f'v[{ag+r}:{ag+r+1}]', f'v[{au+r}:{au+r+1}]'
                    a(f'v_pk_fma_f32 {G2}, {M}, v[{cg+r}:{cg+r+1}], {G2} op_sel_hi:[0,1,1] neg_lo:[1,0,0] neg_hi:[1,0,0]')
                    a(f'v_pk_mul_f32 {G2}, {E}, {G2} op_sel_hi:[0,1]')
                    a(f'v_exp_f32 v{ag+r}, v{ag+r}')
                    a(f'v_exp_f32 v{ag+r+1}, v{ag+r+1}')
                    a(f'v_pk_fma_f32 {U2}, {M}, v[{cu+r}:{cu+r+1}], {U2} op_sel_hi:[0,1,1] neg_lo:[1,0,0] neg_hi:[1,0,0]')
                    a(f'v_pk_mul_f32 {U2}, {M}, {U2} op_sel:[1,0] op_sel_hi:[1,1]')
                    a(f'v_pk_add_f32 {G2}, {E}, {G2} op_sel:[1,0] op_sel_hi:[1,1]')
                    a(f'v_rcp_f32 v{ag+r}, v{ag+r}')
                    a(f'v_rcp_f32 v{ag+r+1}, v{ag+r+1}')
                for r in (0, 2):
                    a(f'v_pk_mul_f32 v[{au+r}:{au+r+1}], v[{au+r}:{au+r+1}], v[{ag+r}:{ag+r+1}]')
            for tt in range(2):
                au = g.acc(i, fg * 4 + 2 + tt)
                a(f'v_cvt_pk_bf16_f32 v{t+2*tt}, v{au}, v{au+1}')
                a(f'v_cvt_pk_bf16_f32 v{t+2*tt+1}, v{au+2}, v{au+3}')
            a(f'buffer_store_dwordx4 v[{t}:{t+3}], v{g.v_l16}, s[4:7], s{17+i} offen offset:{fg*1024}')
    if STAMP == name:
        a.wait(vm_all=True)
        stamp(a, name)
        stamp_out(a, name)
    a.label(f'{name}_end')
    a('s_endpgm')
    kernels.append((name, MB * NB, 256 + 64 * NL, lds, g.vend, 100, a.text()))


TR_ROLES = [
    ('wo', 80, 16, 640, 640, 'A', WO_),
    ('wg', 80, 32, 640, 1536, 'G', WGU),
    ('wu', 80, 40, 640, 1536, 'U', WGU),
    ('wd', 192, 48, 1536, 640, 'A', WD_),
]


def tr_dma(a, role, start, swave, vl16, lbase):
    lab, nsl, slot, K, N, kind, dst = role
    RB = N * 2
    a(f's_load_dwordx2 s[40:41], s[0:1], {slot}')
    a(f's_sub_u32 s44, s2, {start}')
    if lab == 'wo':
        a('s_lshr_b32 s45, s44, 1')
        a('s_mul_i32 s45, s45, 20')
        a('s_and_b32 s46, s44, 1')
        a('s_lshl_b32 s46, s46, 2')
        a('s_add_u32 s45, s45, s46')
        a('s_add_u32 s46, s45, 8')
        a('s_sub_u32 s47, s44, 64')
        a('s_mul_i32 s47, s47, 40')
        a('s_add_u32 s47, s47, 16')
        a('s_add_u32 s48, s47, 20')
        a('s_cmp_lt_u32 s44, 64')
        a('s_cselect_b32 s45, s45, s47')
        a('s_cselect_b32 s46, s46, s48')
    else:
        a('s_lshl_b32 s45, s44, 3')
        a('s_add_u32 s46, s45, 4')
    a(f's_mul_i32 s45, s45, {RB}')
    a(f's_mul_i32 s46, s46, {RB}')
    a('s_waitcnt lgkmcnt(0)')
    a.lgq = []
    fin_srd(a, 40, K * N * 2)
    nch = 4 * RB // 1024
    tot = 2 * nch
    a(f's_lshl_b32 s47, s{swave}, 10')
    for i in range((tot + 3) // 4):
        a(f's_add_u32 s48, s47, {4096*i}')
        if 4 * i + 3 >= tot:
            a(f's_min_u32 s48, s48, {(tot-1)*1024}')
        a(f's_add_u32 m0, s48, {lbase}')
        a(f's_sub_u32 s49, s48, {nch*1024}')
        a('s_add_u32 s49, s49, s46')
        a('s_add_u32 s50, s48, s45')
        a(f's_cmp_lt_u32 s48, {nch*1024}')
        a('s_cselect_b32 s49, s50, s49')
        a(f'buffer_load_dwordx4 v{vl16}, s[40:43], s49 offen lds', tag='w')


def tr_out(a, role, swave, vlane, lbase, V0):
    lab, nsl, slot, K, N, kind, dst = role
    KT = K // 32
    RB = N * 2
    NTL = N // 16
    v4, v5, v6, v7 = V0, V0 + 1, V0 + 2, V0 + 3
    a(f'v_lshrrev_b32 v{v4}, 4, v{vlane}')
    a(f'v_bfe_u32 v{v5}, v{vlane}, 2, 2')
    a(f'v_and_b32 v{v6}, 3, v{vlane}')
    a(f'v_mul_u32_u24 v{v5}, {RB}, v{v5}')
    a(f'v_add_u32 v{v5}, {lbase}, v{v5}')
    a(f'v_and_b32 v{v7}, 15, v{vlane}')
    a(f'v_lshlrev_b32 v{v7}, 4, v{v7}')
    a('s_lshr_b32 s45, s44, 2')
    a('s_lshl_b32 s45, s45, 10')
    a('s_and_b32 s46, s44, 3')
    a('s_lshl_b32 s46, s46, 8')
    a('s_add_u32 s45, s45, s46')
    a(f's_add_u32 s45, s45, {dst}')
    a(f's_lshl_b32 s46, s{swave}, 2')
    a(f'v_add_u32 v{v4}, s46, v{v4}')
    nit = (NTL + 15) // 16
    for it in range(nit):
        vb = V0 + 4 + 12 * (it % 3)
        a(f'v_add_u32 v{vb}, {16*it}, v{v4}')
        if 16 * it + 15 >= NTL:
            a(f'v_min_u32 v{vb}, {NTL-1}, v{vb}')
        src_col(a, kind, vb, v6, vb + 1, vb + 2, vb + 3, vb + 4)
        a(f'v_lshl_add_u32 v{vb+1}, v{vb+1}, 1, v{v5}')
        a(f'ds_read_b64_tr_b16 v[{vb+8}:{vb+9}], v{vb+1}', tag='t')
        a(f'ds_read_b64_tr_b16 v[{vb+10}:{vb+11}], v{vb+1} offset:{4*RB}', tag='t')
        a(f'v_mul_u32_u24 v{vb}, {KT*1024}, v{vb}')
        a(f'v_add_u32 v{vb}, v{vb}, v{v7}')
        a.wait(lg_all=True)
        a(f'buffer_store_dwordx4 v[{vb+8}:{vb+11}], v{vb}, s[4:7], s45 offen')


def tr_dispatch(a, name, tag, fn):
    starts = []
    base = 0
    for r in TR_ROLES:
        starts.append(base)
        base += r[1]
    Lend = f'{name}_{tag}_end'
    a(f's_cmp_ge_u32 s2, {base}')
    a.branch(f's_cbranch_scc1 {Lend}')
    for i in reversed(range(1, len(TR_ROLES))):
        a(f's_cmp_ge_u32 s2, {starts[i]}')
        a.branch(f's_cbranch_scc1 {name}_{tag}_{TR_ROLES[i][0]}')
    for i, r in enumerate(TR_ROLES):
        a.label(f'{name}_{tag}_{r[0]}')
        fn(r, starts[i])
        if i + 1 < len(TR_ROLES):
            a.branch(f's_branch {Lend}')
    a.label(Lend)


def gen_attn(name, with_tr=False):
    a = Asm()
    NWG = 512
    begin(a, name)
    if os.environ.get('STAMP_RT'):
        stamp(a, name)
    a(f's_cmp_ge_u32 s2, {NWG}')
    a.branch(f's_cbranch_scc1 {name}_end')
    ws_srd(a, 4)
    SB = 16
    OB = 160
    KV = 176
    QB = 248
    L_KM, L_KT, L_V = 0, 12 * 1024, 15 * 1024
    lds = L_V + 24 * 1024
    L_TR = lds
    if with_tr:
        lds += 24 * 1024
    a('v_lshrrev_b32 v2, 6, v0')
    a('v_readfirstlane_b32 s12, v2')
    a('v_and_b32 v1, 63, v0')
    a('v_and_b32 v3, 31, v1')
    a('v_lshrrev_b32 v4, 5, v1')
    a('v_lshlrev_b32 v5, 5, v3')
    a('v_lshlrev_b32 v6, 4, v4')
    a('v_add_u32 v5, v5, v6')
    a('v_lshlrev_b32 v7, 3, v3')
    a('v_min_u32 v8, 20, v3')
    a('v_lshlrev_b32 v8, 5, v8')
    a('v_add_u32 v8, v8, v6')
    a('v_lshlrev_b32 v15, 4, v1')
    a('s_and_b32 s13, s2, 7')
    a('s_lshl_b32 s13, s13, 2')
    a('s_lshr_b32 s14, s2, 7')
    a('s_add_u32 s13, s13, s14')
    a('s_lshr_b32 s14, s2, 3')
    a('s_and_b32 s14, s14, 15')
    a('s_lshl_b32 s23, s14, 7')
    a('s_lshl_b32 s15, s12, 5')
    a('s_add_u32 s15, s15, s23')
    a('s_lshl_b32 s16, s13, 11')
    a('s_waitcnt lgkmcnt(0)')
    fin_srd(a, 4, WS_SIZE)
    stamp(a, name)
    for i in range(3):
        a(f's_add_i32 s19, s15, {-256 + 128*i}')
        a('s_max_i32 s19, s19, 0')
        a('s_add_u32 s19, s19, s16')
        a('s_lshl_b32 s20, s19, 5')
        a(f's_add_u32 s20, s20, {KM}')
        a(f's_lshl_b32 s21, s12, 10')
        a(f's_add_u32 m0, s21, {L_KM + 4096*i}')
        a('buffer_load_dwordx4 v5, s[4:7], s20 offen lds', tag='k')
    a('s_min_u32 s21, s12, 2')
    a('s_lshl_b32 s19, s21, 7')
    a('s_add_u32 s19, s19, s23')
    a('s_add_i32 s19, s19, -256')
    a('s_max_i32 s19, s19, 0')
    a('s_add_u32 s19, s19, s16')
    a('s_lshl_b32 s20, s19, 3')
    a(f's_add_u32 s20, s20, {KT_}')
    a('s_lshl_b32 s21, s21, 10')
    a(f's_add_u32 m0, s21, {L_KT}')
    a('buffer_load_dwordx4 v15, s[4:7], s20 offen lds', tag='k')
    a('s_add_u32 s17, s16, s15')
    a('s_lshl_b32 s18, s17, 5')
    a(f's_add_u32 s18, s18, {QM}')
    a(f'buffer_load_dwordx4 v[{QB}:{QB+3}], v5, s[4:7], s18 offen', tag='q')
    a('s_lshl_b32 s18, s17, 3')
    a(f's_add_u32 s18, s18, {QT}')
    a(f'buffer_load_dwordx2 v[{QB+4}:{QB+5}], v7, s[4:7], s18 offen', tag='q')
    a('s_lshl_b32 s24, s13, 17')
    a(f's_add_u32 s24, s24, {VT}')
    a('s_lshl_b32 s25, s12, 4')
    a('s_add_u32 s25, s25, s23')
    for i in range(6):
        a(f's_add_i32 s19, s25, {-256 + 64*i}')
        a('s_max_i32 s19, s19, 0')
        a('s_lshl_b32 s19, s19, 6')
        a('s_add_u32 s19, s19, s24')
        a(f's_lshl_b32 s21, s12, 10')
        a(f's_add_u32 m0, s21, {L_V + 4096*i}')
        a('buffer_load_dwordx4 v8, s[4:7], s19 offen lds', tag='v')
    NEG = '0xff7fffff'
    a('v_lshlrev_b32 v9, 2, v4')
    a('v_sub_u32 v9, v3, v9')
    a(f'v_mov_b32 v10, {NEG}')
    for r in range(16):
        c = 8 * (r >> 2) + (r & 3)
        a(f'v_cmp_le_i32 vcc, {c}, v9')
        a(f'v_cndmask_b32_e64 v{SB+8*16+r}, v10, 0, vcc')
        a(f'v_cndmask_b32_e64 v{SB+r}, 0, v10, vcc')
    a('s_lshl_b32 s21, s12, 10')
    a('v_add_u32 v13, s21, v15')
    a('s_lshl_b32 s21, s12, 8')
    a('v_add_u32 v14, s21, v7')
    a('s_lshl_b32 s21, s12, 11')
    a('v_add_u32 v2, s21, v15')
    a.wait(vm='q')
    a('s_barrier')
    stamp(a, name)
    if with_tr:
        tr_dispatch(a, name, 'd', lambda r, st: tr_dma(a, r, st, 12, 15, L_TR))
    for t in range(9):
        a(f'ds_read_b128 v[{KV+8*t}:{KV+8*t+3}], v13 offset:{L_KM + 1024*t}', tag=('k', t))
        a(f'ds_read_b64 v[{KV+8*t+4}:{KV+8*t+5}], v14 offset:{L_KT + 256*t}', tag=('k', t))
        if t == 6:
            break
    a('v_cmp_eq_u32 vcc, 0, v4')
    a(f'v_cndmask_b32_e64 v{QB+4}, 0, v{QB+4}, vcc')
    a(f'v_cndmask_b32_e64 v{QB+5}, 0, v{QB+5}, vcc')
    for t in range(9):
        a.wait(lg=('k', t))
        s0 = SB + 16 * t
        c = f'v[{s0}:{s0+15}]' if t in (0, 8) else '0'
        a(f'v_mfma_f32_32x32x16_bf16 v[{s0}:{s0+15}], v[{KV+8*t}:{KV+8*t+3}], v[{QB}:{QB+3}], {c}')
        a(f'v_mfma_f32_32x32x8_bf16 v[{s0}:{s0+15}], v[{KV+8*t+4}:{KV+8*t+5}], v[{QB+4}:{QB+5}], v[{s0}:{s0+15}]')
        if t < 2:
            t2 = 7 + t
            a(f'ds_read_b128 v[{KV+8*t2}:{KV+8*t2+3}], v13 offset:{L_KM + 1024*t2}', tag=('k', t2))
            a(f'ds_read_b64 v[{KV+8*t2+4}:{KV+8*t2+5}], v14 offset:{L_KT + 256*t2}', tag=('k', t2))
    for t in range(8):
        L = a.newlabel('skip')
        a(f's_cmp_ge_i32 s15, {256 - 32*t}')
        a.branch(f's_cbranch_scc1 {L}')
        for r in range(16):
            a(f'v_mov_b32 v{SB+16*t+r}, v10')
        a.label(L)
    stamp(a, name)
    regs = [SB + i for i in range(144)]
    a(f'v_max3_f32 v11, v{regs[0]}, v{regs[1]}, v{regs[2]}')
    a(f'v_max3_f32 v12, v{regs[3]}, v{regs[4]}, v{regs[5]}')
    i = 6
    k = 0
    while i + 1 < 144:
        d = 11 + (k & 1)
        a(f'v_max3_f32 v{d}, v{d}, v{regs[i]}, v{regs[i+1]}')
        i += 2
        k += 1
    a('v_max_f32 v11, v11, v12')
    a('v_mov_b32 v12, v11')
    a('v_permlane32_swap_b32 v11, v12')
    a('v_max_f32 v11, v11, v12')
    cs = (DH ** -0.5) * LOG2E
    a(f's_mov_b32 s22, {f32hex(cs)}')
    a('v_mul_f32 v12, s22, v11')
    a('v_mov_b32 v13, s22')
    a.wait(vm_all=True)
    a('s_barrier')
    for t in range(9):
        s0 = SB + 16 * t
        for s in range(2):
            a(f'ds_read_b128 v[{KV+8*t+4*s}:{KV+8*t+4*s+3}], v2 offset:{L_V + 2048*t + 1024*s}', tag=('v', t))
        for r in range(0, 16, 2):
            a(f'v_pk_fma_f32 v[{s0+r}:{s0+r+1}], v[{s0+r}:{s0+r+1}], v[12:13], v[12:13] op_sel:[0,1,0] op_sel_hi:[1,1,0] neg_lo:[0,0,1] neg_hi:[0,0,1]')
        for r in range(16):
            a(f'v_exp_f32 v{s0+r}, v{s0+r}')
        for r in range(8):
            a(f'v_cvt_pk_bf16_f32 v{s0+r}, v{s0+2*r}, v{s0+2*r+1}')
        a.wait(lg=('v', t))
        for s in range(2):
            c = '0' if (t == 0 and s == 0) else f'v[{OB}:{OB+15}]'
            a(f'v_mfma_f32_32x32x16_bf16 v[{OB}:{OB+15}], v[{KV+8*t+4*s}:{KV+8*t+4*s+3}], v[{s0+4*s}:{s0+4*s+3}], {c}')
    stamp(a, name)
    a(f'v_mov_b32 v11, v{OB+8}')
    a(f'v_mov_b32 v12, v{OB+8}')
    a('v_permlane32_swap_b32 v11, v12')
    a('v_rcp_f32 v12, v12')
    for r in range(12):
        a(f'v_mul_f32 v{OB+r}, v{OB+r}, v12')
    for r in range(6):
        a(f'v_cvt_pk_bf16_f32 v{OB+r}, v{OB+2*r}, v{OB+2*r+1}')
    a('v_lshrrev_b32 v13, 4, v3')
    a(f'v_mul_u32_u24 v13, {20*1024}, v13')
    a('v_and_b32 v14, 15, v3')
    a('v_lshlrev_b32 v14, 4, v14')
    a('v_add_u32 v13, v13, v14')
    a('v_lshlrev_b32 v14, 8, v4')
    a('v_add_u32 v14, v14, v13')
    a('s_lshr_b32 s17, s15, 4')
    a(f's_mul_i32 s17, s17, {20*1024}')
    a(f's_add_u32 s17, s17, {OF}')
    a('s_lshr_b32 s18, s13, 1')
    a('s_lshl_b32 s18, s18, 10')
    a('s_and_b32 s19, s13, 1')
    a('s_lshl_b32 s20, s19, 9')
    a('s_add_u32 s18, s18, s20')
    a('s_add_u32 s18, s18, s17')
    a(f'buffer_store_dwordx4 v[{OB}:{OB+3}], v14, s[4:7], s18 offen')
    a('s_lshr_b32 s18, s13, 3')
    a('s_add_u32 s18, s18, 16')
    a('s_lshl_b32 s18, s18, 10')
    a('s_lshr_b32 s20, s13, 1')
    a('s_and_b32 s20, s20, 3')
    a('s_lshl_b32 s20, s20, 8')
    a('s_add_u32 s18, s18, s20')
    a('s_lshl_b32 s19, s19, 3')
    a('s_add_u32 s18, s18, s19')
    a('s_add_u32 s18, s18, s17')
    a('s_mov_b32 exec_hi, 0')
    a(f'buffer_store_dwordx2 v[{OB+4}:{OB+5}], v13, s[4:7], s18 offen')
    if with_tr:
        a('s_mov_b64 exec, -1')
        tr_dispatch(a, name, 'o', lambda r, st: tr_out(a, r, 12, 1, L_TR, 16))
    if STAMP == name:
        a.wait(vm_all=True)
        stamp(a, name)
        stamp_out(a, name)
    a.label(f'{name}_end')
    a('s_endpgm')
    kernels.append((name, NWG, 256, lds, 256, 100, a.text()))


def magic(d):
    return (2 ** 32 + d - 1) // d


def map_tile(a, kind, vn0, vT, vi0, t0, t1, t2):
    if kind in 'AGU':
        a(f'v_lshrrev_b32 v{t0}, 5, v{vn0}')
        a(f'v_bfe_u32 v{t1}, v{vn0}, 2, 1')
        a(f'v_bfe_u32 v{vi0}, v{vn0}, 3, 2')
        a(f'v_lshlrev_b32 v{vi0}, 2, v{vi0}')
        sh = 1 if kind == 'A' else 2
        a(f'v_lshlrev_b32 v{vT}, {sh}, v{t0}')
        a(f'v_add_u32 v{vT}, v{vT}, v{t1}')
        if kind == 'U':
            a(f'v_add_u32 v{vT}, 2, v{vT}')
    else:
        a(f's_mov_b32 s30, {magic(640)}')
        a(f'v_mul_hi_u32 v{t0}, v{vn0}, s30')
        a(f'v_mul_u32_u24 v{t1}, 640, v{t0}')
        a(f'v_sub_u32 v{t1}, v{vn0}, v{t1}')
        a('s_mov_b32 s30, 3277')
        a(f'v_mul_lo_u32 v{t2}, v{t1}, s30')
        a(f'v_lshrrev_b32 v{t2}, 16, v{t2}')
        a(f'v_mul_u32_u24 v{vi0}, 20, v{t2}')
        a(f'v_sub_u32 v{vi0}, v{t1}, v{vi0}')
        a(f'v_cmp_gt_u32 vcc, 16, v{vi0}')
        a(f'v_and_b32 v{vT}, 1, v{t2}')
        a(f'v_lshlrev_b32 v{vT}, 4, v{vT}')
        a(f'v_add_u32 v{vi0}, v{vi0}, v{vT}')
        a(f'v_and_b32 v{vT}, 7, v{t2}')
        a(f'v_lshlrev_b32 v{vT}, 2, v{vT}')
        a(f'v_cndmask_b32 v{vi0}, v{vT}, v{vi0}, vcc')
        a(f'v_lshrrev_b32 v{vT}, 3, v{t2}')
        a(f'v_add_u32 v{vT}, 16, v{vT}')
        a(f'v_lshrrev_b32 v{t2}, 1, v{t2}')
        a(f'v_cndmask_b32 v{t2}, v{vT}, v{t2}, vcc')
        a(f'v_lshlrev_b32 v{vT}, 1, v{t2}')
        a(f'v_bfe_u32 v{t2}, v{vi0}, 2, 1')
        a(f'v_add_u32 v{vT}, v{vT}, v{t2}')
        a(f'v_mul_u32_u24 v{t2}, 40, v{t0}')
        a(f'v_add_u32 v{vT}, v{vT}, v{t2}')
        a(f'v_lshrrev_b32 v{vi0}, 3, v{vi0}')
        a(f'v_lshlrev_b32 v{vi0}, 2, v{vi0}')
        a(f'v_cmp_eq_u32 vcc, 2, v{t0}')
        a(f'v_lshrrev_b32 v{t2}, 4, v{t1}')
        a(f'v_add_u32 v{t2}, 80, v{t2}')
        a(f'v_cndmask_b32 v{vT}, v{vT}, v{t2}, vcc')
        a(f'v_and_b32 v{t2}, 15, v{t1}')
        a(f'v_cndmask_b32 v{vi0}, v{vi0}, v{t2}, vcc')


def src_col(a, kind, vT, vc, vout, t0, t1, t2):
    if kind in 'AGU':
        a(f'v_lshrrev_b32 v{t0}, 1, v{vT}')
        a(f'v_and_b32 v{t1}, 1, v{vT}')
        a(f'v_lshlrev_b32 v{vout}, 5, v{t0}')
        a(f'v_lshl_add_u32 v{vout}, v{vc}, 3, v{vout}')
        a(f'v_lshl_add_u32 v{vout}, v{t1}, 2, v{vout}')
        if kind != 'A':
            a(f'v_lshlrev_b32 v{vT}, 2, v{t0}')
            a(f'v_add_u32 v{vT}, v{vT}, v{t1}')
            if kind == 'U':
                a(f'v_add_u32 v{vT}, 2, v{vT}')
    else:
        a(f'v_cmp_le_u32 vcc, 40, v{vT}')
        a(f'v_cndmask_b32_e64 v{t0}, 0, 1, vcc')
        a(f'v_cmp_le_u32 vcc, 80, v{vT}')
        a(f'v_cndmask_b32_e64 v{t0}, v{t0}, 2, vcc')
        a(f'v_mul_u32_u24 v{t1}, 40, v{t0}')
        a(f'v_sub_u32 v{t1}, v{vT}, v{t1}')
        a(f'v_and_b32 v{t2}, 1, v{t1}')
        a(f'v_lshlrev_b32 v{t2}, 2, v{t2}')
        a(f'v_lshl_add_u32 v{t2}, v{vc}, 3, v{t2}')
        a(f'v_and_b32 v{vout}, -2, v{t1}')
        a(f'v_lshrrev_b32 v{t2+1}, 4, v{t2}')
        a(f'v_add_u32 v{vout}, v{vout}, v{t2+1}')
        a(f'v_mul_u32_u24 v{vout}, 20, v{vout}')
        a(f'v_and_b32 v{t2+1}, 15, v{t2}')
        a(f'v_add_u32 v{vout}, v{vout}, v{t2+1}')
        a(f'v_lshrrev_b32 v{t2+1}, 1, v{t1}')
        a(f'v_subrev_u32 v{t2+1}, 16, v{t2+1}')
        a(f'v_lshlrev_b32 v{t2+1}, 3, v{t2+1}')
        a(f'v_lshrrev_b32 v{t2}, 2, v{t2}')
        a(f'v_add_u32 v{t2+1}, v{t2+1}, v{t2}')
        a(f'v_mul_u32_u24 v{t2+1}, 20, v{t2+1}')
        a(f'v_add_u32 v{t2+1}, 16, v{t2+1}')
        a(f'v_cmp_le_u32 vcc, 32, v{t1}')
        a(f'v_cndmask_b32 v{vout}, v{vout}, v{t2+1}, vcc')
        a(f'v_lshlrev_b32 v{t2+1}, 4, v{t1}')
        a(f'v_lshl_add_u32 v{t2+1}, v{vc}, 2, v{t2+1}')
        a(f'v_cmp_eq_u32 vcc, 2, v{t0}')
        a(f'v_cndmask_b32 v{vout}, v{vout}, v{t2+1}, vcc')
        a(f'v_mul_u32_u24 v{t0}, 640, v{t0}')
        a(f'v_add_u32 v{vout}, v{vout}, v{t0}')


def gen_prep(name):
    a = Asm()
    begin(a, name)
    roles = [
        ('wqkv', 80, 8, 640, 1920, 'Q', WQKV),
    ]
    cs_roles = [('csq', 30, 8, 1920, 'Q', CSQ), ('csg', 24, 32, 1536, 'G', CSG), ('csu', 24, 40, 1536, 'U', CSG)]
    NX = 128
    seq = [('x', NX)] + [(r[0], r[1]) for r in cs_roles] + [(r[0], r[1]) for r in roles]
    NWG = sum(n for _, n in seq)
    a(f's_cmp_ge_u32 s2, {NWG}')
    a.branch(f's_cbranch_scc1 {name}_end')
    ws_srd(a, 4)
    base = 0
    starts = {}
    for lab, n in seq:
        starts[lab] = base
        base += n
    for lab, _ in reversed(seq[1:]):
        a(f's_cmp_ge_u32 s2, {starts[lab]}')
        a.branch(f's_cbranch_scc1 {name}_{lab}')
    a.label(f'{name}_x')
    if os.environ.get('PREP_ONLY', 'x') != 'x':
        a('s_endpgm')
    a('s_load_dwordx2 s[8:9], s[0:1], 0')
    a('v_lshrrev_b32 v2, 6, v0')
    a('v_readfirstlane_b32 s12, v2')
    a('v_and_b32 v1, 63, v0')
    a('s_mov_b32 s14, s2')
    a('v_and_b32 v3, 15, v1')
    a('v_mul_u32_u24 v3, 1280, v3')
    a('v_lshrrev_b32 v4, 4, v1')
    a('v_lshlrev_b32 v4, 4, v4')
    a('v_add_u32 v3, v3, v4')
    a(f's_mul_i32 s15, s14, {16*1280}')
    a('s_mul_i32 s16, s12, 320')
    a('s_add_u32 s15, s15, s16')
    a('v_lshlrev_b32 v5, 4, v1')
    a('s_waitcnt lgkmcnt(0)')
    fin_srd(a, 4, WS_SIZE)
    fin_srd(a, 8, S * D * 2)
    for kt in range(5):
        a(f'buffer_load_dwordx4 v[{16+4*kt}:{19+4*kt}], v3, s[8:11], s15 offen offset:{64*kt}', tag=('x', kt))
    a(f's_mul_i32 s16, s14, {20*1024}')
    a(f's_add_u32 s16, s16, {XF[0]}')
    a(f's_mul_i32 s17, s12, {5*1024}')
    a('s_add_u32 s16, s16, s17')
    a(f's_add_u32 s17, s16, 4096')
    a('s_lshl_b32 s18, s2, 8')
    a('v_add_u32 v6, s18, v0')
    a('v_lshrrev_b32 v7, 1, v6')
    a('v_lshlrev_b32 v7, 10, v7')
    a('v_and_b32 v6, 1, v6')
    a('v_lshlrev_b32 v6, 4, v6')
    a('v_add_u32 v7, v7, v6')
    for i in range(4):
        a(f'v_mov_b32 v{40+i}, 0x3f803f80')
    a(f's_mov_b32 s18, {VT + 640}')
    Lx = a.newlabel('noones')
    a('s_cmp_ge_u32 s2, 32')
    a.branch(f's_cbranch_scc1 {Lx}')
    a('buffer_store_dwordx4 v[40:43], v7, s[4:7], s18 offen')
    a.label(Lx)
    a('v_mov_b32 v8, 0')
    a('v_mov_b32 v9, 0')
    a('s_waitcnt vmcnt(0)')
    a.vmq = []
    for kt in range(5):
        if kt < 4:
            a(f'buffer_store_dwordx4 v[{16+4*kt}:{19+4*kt}], v5, s[4:7], s16 offen offset:{1024*kt}')
        else:
            a(f'buffer_store_dwordx4 v[{16+4*kt}:{19+4*kt}], v5, s[4:7], s17 offen')
        for w in range(4):
            a(f'v_lshlrev_b32 v12, 16, v{16+4*kt+w}')
            a(f'v_and_b32 v13, 0xffff0000, v{16+4*kt+w}')
            a('v_add_f32 v8, v8, v12')
            a('v_fma_f32 v9, v12, v12, v9')
            a('v_add_f32 v8, v8, v13')
            a('v_fma_f32 v9, v13, v13, v9')
    for sw in ('v_permlane16_swap_b32', 'v_permlane32_swap_b32'):
        for r in (8, 9):
            a(f'v_mov_b32 v12, v{r}')
            a(f'{sw} v12, v{r}')
            a(f'v_add_f32 v{r}, v{r}, v12')
    a('v_mov_b32 v10, 0')
    a('v_mov_b32 v11, 0')
    a('v_lshlrev_b32 v6, 6, v1')
    a('s_lshl_b32 s17, s14, 10')
    a('s_lshl_b32 s18, s12, 3')
    a('s_add_u32 s17, s17, s18')
    a(f's_add_u32 s17, s17, {ST[0]}')
    a('s_mov_b64 exec, 0xffff')
    a('buffer_store_dwordx2 v[8:9], v6, s[4:7], s17 offen')
    a('buffer_store_dwordx2 v[10:11], v6, s[4:7], s17 offen offset:32')
    a('s_endpgm')
    for (lab, nwg, slot, K, N, kind, dst) in roles:
        a.label(f'{name}_{lab}')
        a.vmq, a.lgq = [], []
        if os.environ.get('PREP_ONLY', lab) != lab:
            a('s_endpgm')
        a(f's_load_dwordx2 s[8:9], s[0:1], {slot}')
        KT = K // 32
        RB = N * 2
        NTL = N // 16
        a('v_lshrrev_b32 v2, 6, v0')
        a('v_readfirstlane_b32 s12, v2')
        a('v_and_b32 v1, 63, v0')
        a('v_lshlrev_b32 v3, 4, v1')
        a(f's_sub_u32 s13, s2, {starts[lab]}')
        if lab == 'wo':
            a('s_lshr_b32 s14, s13, 1')
            a('s_mul_i32 s14, s14, 20')
            a('s_and_b32 s15, s13, 1')
            a('s_lshl_b32 s15, s15, 2')
            a('s_add_u32 s14, s14, s15')
            a('s_add_u32 s15, s14, 8')
            a('s_sub_u32 s16, s13, 64')
            a('s_mul_i32 s16, s16, 40')
            a('s_add_u32 s16, s16, 16')
            a('s_add_u32 s17, s16, 20')
            a('s_cmp_lt_u32 s13, 64')
            a('s_cselect_b32 s14, s14, s16')
            a('s_cselect_b32 s15, s15, s17')
        else:
            a('s_lshl_b32 s14, s13, 3')
            a('s_add_u32 s15, s14, 4')
        a(f's_mul_i32 s14, s14, {RB}')
        a(f's_mul_i32 s15, s15, {RB}')
        a('s_waitcnt lgkmcnt(0)')
        fin_srd(a, 4, WS_SIZE)
        fin_srd(a, 8, K * N * 2)
        nch = 4 * RB // 1024
        tot = 2 * nch
        a('s_lshl_b32 s16, s12, 10')
        for i in range((tot + 3) // 4):
            a(f's_add_u32 s17, s16, {4096*i}')
            if 4 * i + 3 >= tot:
                a(f's_min_u32 s17, s17, {(tot-1)*1024}')
            a('s_mov_b32 m0, s17')
            a(f's_sub_u32 s18, s17, {nch*1024}')
            a('s_add_u32 s18, s18, s15')
            a('s_add_u32 s19, s17, s14')
            a(f's_cmp_lt_u32 s17, {nch*1024}')
            a('s_cselect_b32 s18, s19, s18')
            a('buffer_load_dwordx4 v3, s[8:11], s18 offen lds', tag='w')
        a('v_lshrrev_b32 v4, 4, v1')
        a('v_bfe_u32 v5, v1, 2, 2')
        a('v_and_b32 v6, 3, v1')
        a(f'v_mul_u32_u24 v5, {RB}, v5')
        a('v_and_b32 v7, 15, v1')
        a('v_lshlrev_b32 v7, 4, v7')
        a('s_lshr_b32 s20, s13, 2')
        a('s_lshl_b32 s20, s20, 10')
        a('s_and_b32 s21, s13, 3')
        a('s_lshl_b32 s21, s21, 8')
        a('s_add_u32 s20, s20, s21')
        a(f's_add_u32 s20, s20, {dst}')
        a('s_lshl_b32 s21, s12, 2')
        a('v_add_u32 v4, s21, v4')
        a.wait(vm_all=True)
        a('s_barrier')
        nit = (NTL + 15) // 16
        for it in range(nit):
            vb = 16 + 12 * (it & 1)
            a(f'v_add_u32 v{vb}, {16*it}, v4')
            if 16 * it + 15 >= NTL:
                a(f'v_min_u32 v{vb}, {NTL-1}, v{vb}')
            src_col(a, kind, vb, 6, vb + 1, vb + 2, vb + 3, vb + 4)
            a(f'v_lshl_add_u32 v{vb+1}, v{vb+1}, 1, v5')
            a(f'ds_read_b64_tr_b16 v[{vb+8}:{vb+9}], v{vb+1}', tag='t')
            a(f'ds_read_b64_tr_b16 v[{vb+10}:{vb+11}], v{vb+1} offset:{4*RB}', tag='t')
            a(f'v_mul_u32_u24 v{vb}, {KT*1024}, v{vb}')
            a(f'v_add_u32 v{vb}, v{vb}, v7')
            a.wait(lg_all=True)
            a(f'buffer_store_dwordx4 v[{vb+8}:{vb+11}], v{vb}, s[4:7], s20 offen')
        a('s_endpgm')
    for (lab, nwg, slot, N, kind, dst) in cs_roles:
        a.label(f'{name}_{lab}')
        a.vmq, a.lgq = [], []
        if os.environ.get('PREP_ONLY', lab) != lab:
            a('s_endpgm')
        a(f's_load_dwordx2 s[8:9], s[0:1], {slot}')
        a(f's_sub_u32 s12, s2, {starts[lab]}')
        a('s_lshl_b32 s12, s12, 6')
        a('v_lshrrev_b32 v1, 4, v0')
        a('v_and_b32 v2, 15, v0')
        a(f'v_mul_u32_u24 v3, {40}, v1')
        a(f's_mov_b32 s13, {N*2}')
        a('v_mul_lo_u32 v3, v3, s13')
        a('v_lshlrev_b32 v4, 3, v2')
        a('v_add_u32 v3, v3, v4')
        a('s_lshl_b32 s14, s12, 1')
        a('v_add_u32 v3, s14, v3')
        a('s_waitcnt lgkmcnt(0)')
        fin_srd(a, 4, WS_SIZE)
        fin_srd(a, 8, 640 * N * 2)
        for r in range(40):
            a(f's_mov_b32 s{14+(r&3)}, {r*N*2}')
            a(f'buffer_load_dwordx2 v[{16+2*r}:{17+2*r}], v3, s[8:11], s{14+(r&3)} offen', tag=('c', r))
        for e in range(4):
            a(f'v_mov_b32 v{8+e}, 0')
        for r in range(40):
            a.wait(vm=('c', r))
            for w in range(2):
                a(f'v_lshlrev_b32 v12, 16, v{16+2*r+w}')
                a(f'v_and_b32 v13, 0xffff0000, v{16+2*r+w}')
                a(f'v_add_f32 v{8+2*w}, v{8+2*w}, v12')
                a(f'v_add_f32 v{9+2*w}, v{9+2*w}, v13')
        a('v_lshlrev_b32 v4, 4, v0')
        a('ds_write_b128 v4, v[8:11]')
        a.wait(lg_all=True)
        a('s_barrier')
        a('v_lshlrev_b32 v4, 2, v0')
        for kc in range(16):
            a(f'ds_read_b32 v{16+kc}, v4 offset:{kc*256}', tag='r')
        a('v_lshrrev_b32 v2, 2, v0')
        a('v_lshlrev_b32 v2, 2, v2')
        a('v_add_u32 v2, s12, v2')
        map_tile(a, kind, 2, 5, 6, 7, 8, 9)
        a('v_lshlrev_b32 v5, 4, v5')
        a('v_add_u32 v5, v5, v6')
        a('v_and_b32 v6, 3, v0')
        a('v_add_u32 v5, v5, v6')
        a('v_lshlrev_b32 v5, 2, v5')
        a.wait(lg_all=True)
        for kc in range(1, 16):
            a(f'v_add_f32 v16, v16, v{16+kc}')
        a(f's_mov_b32 s22, {dst}')
        a('v_cmp_gt_u32 vcc, 64, v0')
        a('s_and_saveexec_b64 s[24:25], vcc')
        a.branch(f's_cbranch_execz {name}_end')
        a('buffer_store_dword v16, v5, s[4:7], s22 offen')
        a('s_endpgm')
    a.label(f'{name}_end')
    a('s_endpgm')
    kernels.append((name, NWG, 256, 30720, 128, 40, a.text()))


def build():
    gen_prep('prep_kernel')
    gen_qkv('qkv1_kernel', XF[0], ST[0])
    gen_attn('attn1_kernel', with_tr=True)
    gen_attn('attn_kernel')
    gen_res('wo1_kernel', 640, OF, WO_, XF[0], XF[1], ST[1])
    gen_gu('gu1_kernel', XF[1], ST[1])
    gen_res('dn1_kernel', 1536, HF, WD_, XF[1], XF[2], ST[2])
    gen_qkv('qkv2_kernel', XF[2], ST[2])
    gen_res('wo2_kernel', 640, OF, WO_, XF[2], XF[3], ST[3])
    gen_gu('gu2_kernel', XF[3], ST[3])
    gen_res('dn2_kernel', 1536, HF, WD_, XF[3], None, None, final=True)
    order = ['prep_kernel', 'qkv1_kernel', 'attn1_kernel', 'wo1_kernel', 'gu1_kernel', 'dn1_kernel',
             'qkv2_kernel', 'attn_kernel', 'wo2_kernel', 'gu2_kernel', 'dn2_kernel']
    kd = {k[0]: k for k in kernels}
    hdr = open('interleave_layers__sliding_block__glu_gated_glu__prompt.s.ref').read().split('\n')
    out = [l for l in hdr if l.startswith(';') and '@launch' not in l and 'Override' not in l and 'grid=ceil' not in l]
    for n in order:
        k = kd[n]
        out.append(f'; @launch kernel={n} grid=({k[1]},1,1) block=({k[2]},1,1) lds={k[3]}')
    out.append('.amdgcn_target "amdgcn-amd-amdhsa--gfx950"')
    for k in kernels:
        out.append(k[6])
    out.append('.section .rodata,"a"')
    for k in kernels:
        nv = (k[4] + 7) // 8 * 8
        out.append('.p2align 6')
        out.append(f'.amdhsa_kernel {k[0]}')
        out.append(f'  .amdhsa_next_free_vgpr {nv}')
        out.append(f'  .amdhsa_next_free_sgpr {k[5]}')
        out.append(f'  .amdhsa_accum_offset {min(nv, 256)}')
        out.append('  .amdhsa_group_segment_fixed_size 0')
        out.append('  .amdhsa_kernarg_size 80')
        out.append('  .amdhsa_user_sgpr_count 2')
        out.append('  .amdhsa_user_sgpr_kernarg_segment_ptr 1')
        out.append('  .amdhsa_system_sgpr_workgroup_id_x 1')
        out.append('.end_amdhsa_kernel')
    open(os.environ.get('OUT', 'interleave_layers__sliding_block__glu_gated_glu__prompt.s'), 'w').write('\n'.join(out) + '\n')
    for k in kernels:
        print(k[0], 'grid', k[1], 'lds', k[3], 'vgpr', k[4])


if __name__ == '__main__':
    build()
```

```python
import sys, math
sys.path.insert(0, 'gen')
from asmlib import Asm

S, D, H, DH, F = 2048, 640, 32, 20, 1536
WQKV = 0x0
WO_ = 0x260000
WGU = 0x330000
WD_ = 0x6F0000
CSQ = 0x8D0000
CSG = 0x8D2000
XF = [0x900000, 0xC00000, 0xF00000, 0x1200000]
ST = [0x1500000 + i * 0x20000 for i in range(4)]
QM = 0x1600000
KM = 0x1800000
QT = 0x1A00000
KT_ = 0x1A80000
VT = 0x1B00000
OF = 0x1F00000
HF = 0x2200000
WS_SIZE = 0x10000000

LOG2E = 1.4426950408889634


def f32hex(x):
    import struct
    return '0x%08x' % struct.unpack('<I', struct.pack('<f', x))[0]


kernels = []
import os
STAMP = os.environ.get('STAMP', '')
stamp_n = [0]


def stamp(a, name):
    if STAMP != name:
        return
    i = stamp_n[0]
    stamp_n[0] += 1
    a(f'{"s_memrealtime" if os.environ.get("STAMP_RT") else "s_memtime"} s[{80+2*i}:{81+2*i}]')
    a('s_waitcnt lgkmcnt(0)')


def stamp_out(a, name):
    if STAMP != name:
        return
    n = stamp_n[0]
    L = a.newlabel('so')
    a('s_mov_b64 exec, -1')
    if os.environ.get('STAMP_RT'):
        a('s_cmp_lg_u32 s12, 0')
        a.branch(f's_cbranch_scc1 {L}')
        a('s_lshl_b32 s76, s2, 6')
        a('s_add_u32 s76, s76, 0x3000000')
        a('v_mov_b32 v0, 0')
        for i in range(n):
            a(f'v_mov_b32 v1, s{80+2*i}')
            a(f'buffer_store_dword v1, v0, s[4:7], s76 offen offset:{4*i}')
        a.label(L)
        stamp_n[0] = 0
        return
    a(f's_cmp_lg_u32 s2, {os.environ.get("STAMP_WG", "0")}')
    a.branch(f's_cbranch_scc1 {L}')
    a('s_load_dwordx2 s[76:77], s[0:1], 64')
    a('s_waitcnt lgkmcnt(0)')
    a('s_and_b32 s77, s77, 0xffff')
    a('s_mov_b32 s78, 256')
    a('s_mov_b32 s79, 0x00020000')
    a('v_lshrrev_b32 v0, 6, v0')
    a('v_lshlrev_b32 v0, 6, v0')
    for i in range(n):
        a(f'v_mov_b32 v1, s{80+2*i}')
        a(f'buffer_store_dword v1, v0, s[76:79], 0 offen offset:{4*i}')
    a.label(L)
    stamp_n[0] = 0


def begin(a, name):
    a.raw('.text')
    a.raw(f'.globl {name}')
    a.raw('.p2align 8')
    a.raw(f'.type {name},@function')
    a.raw(f'{name}:')


def ws_srd(a, sreg=4, slot=72, size=WS_SIZE):
    a(f's_load_dwordx2 s[{sreg}:{sreg+1}], s[0:1], {slot}')


def fin_srd(a, sreg, size):
    a(f's_and_b32 s{sreg+1}, s{sreg+1}, 0xffff')
    a(f's_mov_b32 s{sreg+2}, {size}')
    a(f's_mov_b32 s{sreg+3}, 0x00020000')


def R4(i):
    return f'v[{i}:{i+3}]' if i < 256 else f'a[{i-256}:{i-253}]'


def bf16r(a, v):
    a(f'v_cvt_pk_bf16_f32 v{v}, v{v}, v{v}')
    a(f'v_lshlrev_b32 v{v}, 16, v{v}')


class G:
    pass


NL = 2


def gemm_core(a, g, swap):
    KST, NS, KT = g.KST, g.NS, g.K // 32
    TB = KST * 1024
    SB = g.SB

    def read_list(t):
        st, kk = t // KST, t % KST
        sl = st % NS
        p = t & 1
        L = []
        for i in range(g.mtw):
            off = sl * SB + i * TB + kk * 1024
            L.append(lambda i=i, off=off: a(f'ds_read_b128 {R4(g.fa(p, i))}, v{g.v_a + (off >> 16)} offset:{off & 0xffff}', tag=('rd', t)))
        for b in range(g.ntw):
            off = sl * SB + (g.MT + b) * TB + kk * 1024
            L.append(lambda b=b, off=off: a(f'ds_read_b128 {R4(g.fb(p, b))}, v{g.v_b + (off >> 16)} offset:{off & 0xffff}', tag=('rd', t)))
        return L

    def mfmas(t, R):
        p = t & 1
        nm = g.mtw * g.ntw
        nr = len(R)
        span = max(1, int(nm * 0.6))
        cnt = 0
        si = 0
        for i in range(g.mtw):
            for b in range(g.ntw):
                acc = g.acc(i, b)
                A = g.fa(p, i)
                B = g.fb(p, b)
                c = '0' if t == 0 else f'v[{acc}:{acc+3}]'
                if swap:
                    a(f'v_mfma_f32_16x16x32_bf16 v[{acc}:{acc+3}], {R4(A)}, {R4(B)}, {c}')
                else:
                    a(f'v_mfma_f32_16x16x32_bf16 v[{acc}:{acc+3}], {R4(B)}, {R4(A)}, {c}')
                cnt += 1
                while si < nr and (si * span) / nr < cnt:
                    R[si]()
                    si += 1
        while si < nr:
            R[si]()
            si += 1

    stamp(a, g.name)
    if g.mid_prologue:
        g.mid_prologue()
    a.wait(lg_all=True)
    a('s_barrier')
    stamp(a, g.name)
    for f in read_list(0):
        f()
    for t in range(KT):
        a.wait(lg_all=True)
        if t + 1 < KT and (t + 1) % KST == 0:
            a('s_barrier')
            if (t + 1) in (2, 8, KT - 2):
                stamp(a, g.name)
        mfmas(t, read_list(t + 1) if t + 1 < KT else [])
    stamp(a, g.name)


def gemm_core_adirect(a, g):
    KST, NS, KT, DA = g.KST, g.NS, g.K // 32, g.DA
    TB, SB = KST * 1024, g.SB

    def a_load(t):
        for i in range(g.mtw):
            a(f's_add_u32 s{22 + (i & 1)}, s{48 + i}, {t * 1024}')
            r = g.fa(t % DA, i)
            a(f'buffer_load_dwordx4 v[{r}:{r+3}], v{g.v_l16}, s[4:7], s{22 + (i & 1)} offen', tag=('a', t))

    def b_read(t, b):
        st, kk = t // KST, t % KST
        off = (st % NS) * SB + b * TB + kk * 1024
        a(f'ds_read_b128 {R4(g.fb(0, b))}, v{g.v_b + (off >> 16)} offset:{off & 0xffff}', tag=('rd', t, b))

    for i in range(g.mtw):
        a(f's_mul_i32 s22, s13, {g.MT}')
        a(f's_mul_i32 s23, s15, {g.mtw}')
        a('s_add_u32 s22, s22, s23')
        a(f's_add_u32 s22, s22, {i}')
        a(f's_mul_i32 s22, s22, {KT * 1024}')
        a(f's_add_u32 s{48 + i}, s22, {g.a_base}')
    stamp(a, g.name)
    for t in range(min(DA, KT)):
        a_load(t)
    if g.mid_prologue:
        g.mid_prologue()
    a.wait(lg_all=True)
    a('s_barrier')
    stamp(a, g.name)
    for b in range(g.ntw):
        b_read(0, b)
    for t in range(KT):
        if t + 1 < KT and (t + 1) % KST == 0:
            a.wait(lg_all=True)
            a('s_barrier')
            if (t + 1) in (2, 8, KT - 2):
                stamp(a, g.name)
        a.wait(vm=('a', t))
        for b in range(g.ntw):
            a.wait(lg=('rd', t, b))
            for i in range(g.mtw):
                acc = g.acc(i, b)
                c = '0' if t == 0 else f'v[{acc}:{acc+3}]'
                a(f'v_mfma_f32_16x16x32_bf16 v[{acc}:{acc+3}], {R4(g.fb(0, b))}, {R4(g.fa(t % DA, i))}, {c}')
            if t + 1 < KT:
                b_read(t + 1, b)
        if t + DA < KT:
            a_load(t + DA)
    stamp(a, g.name)


def loader_path(a, g):
    KST, NS, KT = g.KST, g.NS, g.K // 32
    KS = KT // KST
    TB = KST * 1024
    SB = g.SB
    ad = getattr(g, 'a_direct', False)
    ntile = g.NT if ad else g.MT + g.NT
    per = (ntile + NL - 1) // NL
    split_last = (ntile % NL != 0)
    assert not split_last or (KST == NL and ntile % NL == 1)
    a('s_sub_u32 s12, s12, 4')

    def offs(j):
        last = split_last and j == per - 1
        if last:
            a(f's_mov_b32 s18, {ntile - 1}')
        else:
            a(f's_add_u32 s18, s12, {NL * j}')
        a(f's_mul_i32 s{g.s_l + j}, s18, {TB}')
        if ad:
            a(f's_mul_i32 s21, s14, {g.NT}')
            a('s_add_u32 s21, s21, s18')
            a(f's_mul_i32 s21, s21, {KT * 1024}')
            a(f's_add_u32 s{g.s_g + j}, s21, {g.b_base}')
            if last:
                a('s_lshl_b32 s18, s12, 10')
                a(f's_add_u32 s{g.s_g + j}, s{g.s_g + j}, s18')
                a(f's_add_u32 s{g.s_l + j}, s{g.s_l + j}, s18')
            return
        a(f's_mul_i32 s20, s13, {g.MT}')
        a('s_add_u32 s20, s20, s18')
        a(f's_mul_i32 s20, s20, {KT * 1024}')
        a(f's_add_u32 s20, s20, {g.a_base}')
        a(f's_mul_i32 s21, s14, {g.NT}')
        a('s_add_u32 s21, s21, s18')
        a(f's_sub_u32 s21, s21, {g.MT}')
        a(f's_mul_i32 s21, s21, {KT * 1024}')
        a(f's_add_u32 s21, s21, {g.b_base}')
        a(f's_cmp_lt_u32 s18, {g.MT}')
        a(f's_cselect_b32 s{g.s_g + j}, s20, s21')
        if last:
            a('s_lshl_b32 s18, s12, 10')
            a(f's_add_u32 s{g.s_g + j}, s{g.s_g + j}, s18')
            a(f's_add_u32 s{g.s_l + j}, s{g.s_l + j}, s18')

    def dma1(st, j):
        sl = st % NS
        last = split_last and j == per - 1
        a(f's_add_u32 m0, s{g.s_l + j}, {sl * SB}')
        t = g.s_tmp + (j & 1)
        a(f's_add_u32 s{t}, s{g.s_g + j}, {st * TB}')
        for kk in range(1 if last else KST):
            a(f'buffer_load_dwordx4 v{g.v_l16}, s[4:7], s{t} offen offset:{kk * 1024} lds', tag=('dma', st))

    for j in range(per):
        offs(j)
    a('s_waitcnt lgkmcnt(0)')
    fin_srd(a, 4, WS_SIZE)
    P = min(NS, KS, g.lpro)
    for st in range(0, P):
        for j in range(per):
            dma1(st, j)
    issued = P
    for st in range(KS):
        a.wait(vm=('dma', st))
        a('s_barrier')
        allowed = min(KS, st + NS)
        n = 0
        while issued < allowed and n < g.lramp:
            for j in range(per):
                dma1(issued, j)
            issued += 1
            n += 1
    a('s_endpgm')


def gemm_setup(a, g, name, MB, NB, need_out=False):
    NWG = MB * NB
    g.name = name
    begin(a, name)
    if os.environ.get('STAMP_RT'):
        stamp(a, name)
    a(f's_cmp_ge_u32 s2, {NWG}')
    a.branch(f's_cbranch_scc1 {name}_end')
    ws_srd(a, 4)
    if need_out:
        a('s_load_dwordx2 s[8:9], s[0:1], 56')
    a('v_lshrrev_b32 v2, 6, v0')
    a('v_readfirstlane_b32 s12, v2')
    a('v_and_b32 v1, 63, v0')
    a(f'v_lshlrev_b32 v{g.v_l16}, 4, v1')
    BA = g.band
    nbands = MB // BA
    XPB = 8 // nbands
    per = MB * NB // 8
    a('s_and_b32 s17, s2, 7')
    a('s_lshr_b32 s18, s2, 3')
    a(f's_and_b32 s19, s17, {XPB - 1}')
    a(f's_lshr_b32 s17, s17, {int(math.log2(XPB))}')
    a(f's_mul_i32 s19, s19, {per}')
    a('s_add_u32 s18, s18, s19')
    a(f's_and_b32 s13, s18, {BA - 1}')
    a(f's_lshl_b32 s17, s17, {int(math.log2(BA))}')
    a('s_add_u32 s13, s13, s17')
    a(f's_lshr_b32 s14, s18, {int(math.log2(BA))}')
    a('s_cmp_lt_u32 s12, 4')
    a.branch(f's_cbranch_scc1 {name}_comp')
    if getattr(g, 'cs_job', False):
        a(f's_cmp_lt_u32 s12, {4 + NL}')
        a.branch(f's_cbranch_scc1 {name}_ld')
        a('s_cmp_ge_u32 s2, 192')
        a.branch(f's_cbranch_scc1 {name}_end')
        a(f's_mul_i32 s20, s2, {20 * 1024}')
        a(f's_add_u32 s20, s20, {WGU}')
        for j in range(4):
            a(f'v_mov_b32 v{4 + j}, 0x3f803f80')
        a('s_waitcnt lgkmcnt(0)')
        fin_srd(a, 4, WS_SIZE)
        for kt in range(20):
            if kt % 4 == 0:
                a(f's_add_u32 s{21 + (kt // 4) % 2}, s20, {kt * 1024}')
            a(f'buffer_load_dwordx4 v[{12+4*kt}:{15+4*kt}], v{g.v_l16}, s[4:7], s{21 + (kt // 4) % 2} offen offset:{(kt % 4) * 1024}', tag=('w', kt))
        for kt in range(20):
            a.wait(vm=('w', kt))
            c = '0' if kt == 0 else 'v[8:11]'
            a(f'v_mfma_f32_16x16x32_bf16 v[8:11], v[{12+4*kt}:{15+4*kt}], v[4:7], {c}')
        a('v_lshrrev_b32 v2, 4, v1')
        a('v_lshlrev_b32 v2, 4, v2')
        a('s_lshl_b32 s20, s2, 6')
        a(f's_add_u32 s20, s20, {CSG}')
        a('s_mov_b32 exec_lo, 0x00010001')
        a('s_mov_b32 exec_hi, 0x00010001')
        a('buffer_store_dwordx4 v[8:11], v2, s[4:7], s20 offen')
        a('s_endpgm')
        a.label(f'{name}_ld')
        a.vmq = []
    loader_path(a, g)
    a.label(f'{name}_comp')
    a.vmq = []
    if g.WN == 1:
        a('s_mov_b32 s15, s12')
        a('s_mov_b32 s16, 0')
    elif g.WM == 1:
        a('s_mov_b32 s15, 0')
        a('s_mov_b32 s16, s12')
    else:
        a('s_lshr_b32 s15, s12, 1')
        a('s_and_b32 s16, s12, 1')
    a(f's_mul_i32 s17, s15, {g.mtw * g.KST * 1024}')
    a(f's_mul_i32 s18, s16, {g.ntw * g.KST * 1024}')
    for h in range(3):
        a(f'v_add_u32 v{g.v_a + h}, s17, v{g.v_l16}')
        a(f'v_add_u32 v{g.v_b + h}, s18, v{g.v_l16}')
        if h:
            a(f'v_add_u32 v{g.v_a + h}, {h << 16}, v{g.v_a + h}')
            a(f'v_add_u32 v{g.v_b + h}, {h << 16}, v{g.v_b + h}')
    a('s_waitcnt lgkmcnt(0)')
    fin_srd(a, 4, WS_SIZE)
    if need_out:
        fin_srd(a, 8, S * D * 2)


def alloc(g, extra_base):
    g.v_l16 = 3
    g.v_a = 4
    g.v_b = 7
    g.mtw = g.MT // g.WM
    g.ntw = g.NT // g.WN
    g.SB = (g.MT + g.NT) * g.KST * 1024
    g.s_g = 24
    g.s_l = 56
    g.s_tmp = 22
    nacc = g.mtw * g.ntw * 4
    g.acc0 = extra_base
    g.acc = lambda i, b: g.acc0 + (i * g.ntw + b) * 4
    g.f0 = g.acc0 + nacc
    setsz = (g.mtw + g.ntw) * 4
    g.fa = lambda p, i: g.f0 + p * setsz + i * 4
    g.fb = lambda p, b: g.f0 + p * setsz + (g.mtw + b) * 4
    g.vend = g.f0 + 2 * setsz
    g.mid_prologue = None
    dflt = {8: (2, 1), 12: (2, 99), 5: ((2, 2) if g.K == 640 else (3, 3))}[g.NT]
    g.lpro = int(os.environ.get('LPRO_' + str(g.NT), dflt[0]))
    g.lramp = int(os.environ.get('LRAMP', dflt[1]))
    if getattr(g, 'a_direct', False):
        g.SB = g.NT * g.KST * 1024
        g.fb = lambda p, b: g.f0 + b * 4
        g.fa = lambda d, i: g.f0 + g.ntw * 4 + (d * g.mtw + i) * 4
        g.vend = g.f0 + g.ntw * 4 + g.DA * g.mtw * 4


def ln_stats_issue(a, g, st_base, vt):
    a(f'v_and_b32 v2, 127, v0')
    a(f'v_lshlrev_b32 v2, 6, v2')
    a(f's_lshl_b32 s17, s13, 13')
    a(f's_add_u32 s17, s17, {st_base}')
    for i in range(4):
        a(f'buffer_load_dwordx4 v[{vt+4*i}:{vt+4*i+3}], v2, s[4:7], s17 offen offset:{16*i}', tag='stats')


def ln_stats_finish(a, g, vt, lds_off):
    a.wait(vm='stats')
    for i in range(1, 8):
        a(f'v_add_f32 v{vt}, v{vt}, v{vt+2*i}')
        a(f'v_add_f32 v{vt+1}, v{vt+1}, v{vt+2*i+1}')
    inv = f32hex(1.0 / D)
    a(f'v_mul_f32 v{vt}, {inv}, v{vt}')
    a(f'v_mul_f32 v{vt+1}, {inv}, v{vt+1}')
    a(f'v_fma_f32 v{vt+1}, -v{vt}, v{vt}, v{vt+1}')
    a(f'v_max_f32 v{vt+1}, 0, v{vt+1}')
    bf16r(a, vt)
    bf16r(a, vt + 1)
    a(f'v_add_f32 v{vt+1}, {f32hex(1e-5)}, v{vt+1}')
    bf16r(a, vt + 1)
    a(f'v_sqrt_f32 v{vt+1}, v{vt+1}')
    bf16r(a, vt + 1)
    a(f'v_rcp_f32 v{vt+1}, v{vt+1}')
    a(f'v_and_b32 v{vt+2}, 127, v0')
    a(f'v_lshlrev_b32 v{vt+2}, 3, v{vt+2}')
    a(f'v_add_u32 v{vt+2}, {lds_off}, v{vt+2}')
    a(f'ds_write_b64 v{vt+2}, v[{vt}:{vt+1}]')


def gen_qkv(name, x_base, st_base):
    a = Asm()
    g = G()
    g.MT, g.NT, g.WM, g.WN, g.K = 8, 8, 2, 2, 640
    g.KST, g.NS = int(os.environ.get('QKV_KST', 2)), int(os.environ.get('QKV_NS', 4))
    g.a_base, g.b_base = x_base, WQKV
    g.band = int(os.environ.get('QKV_BAND', 4))
    g.pro = 3
    MISC = 10
    alloc(g, 48)
    STL = g.NS * g.SB
    lds = STL + 1024
    MB, NB = 16, 15
    gemm_setup(a, g, name, MB, NB)
    VT_, VCS = 10, 26
    ln_stats_issue(a, g, st_base, VT_)
    a('v_lshrrev_b32 v2, 4, v1')
    a(f's_cmp_ge_u32 s14, 10')
    a.branch(f's_cbranch_scc1 {name}_v')
    a('v_lshlrev_b32 v42, 4, v2')
    a('s_lshl_b32 s17, s14, 9')
    a('s_lshl_b32 s18, s16, 8')
    a('s_add_u32 s17, s17, s18')
    a(f's_add_u32 s17, s17, {CSQ}')
    for b in range(4):
        a(f'buffer_load_dwordx4 v[{VCS+4*b}:{VCS+4*b+3}], v42, s[4:7], s17 offen offset:{64*b}', tag='cs')
    g.mid_prologue = lambda: ln_stats_finish(a, g, VT_, STL)
    gemm_core(a, g, swap=False)
    a.wait(vm='cs')
    a('v_and_b32 v43, 15, v1')
    a('v_lshlrev_b32 v44, 3, v43')
    a('s_lshl_b32 s17, s15, 9')
    a(f's_add_u32 s17, s17, {STL}')
    a('v_add_u32 v44, s17, v44')
    for i in range(4):
        a(f'ds_read_b64 v[{VT_+2*i}:{VT_+2*i+1}], v44 offset:{i*128}', tag='tst')
    a.wait(lg_all=True)
    for i in range(4):
        for b in range(4):
            acc = g.acc(i, b)
            for r in (0, 2):
                a(f'v_pk_fma_f32 v[{acc+r}:{acc+r+1}], v[{VT_+2*i}:{VT_+2*i+1}], v[{VCS+4*b+r}:{VCS+4*b+r+1}], v[{acc+r}:{acc+r+1}] op_sel_hi:[0,1,1] neg_lo:[1,0,0] neg_hi:[1,0,0]')
                a(f'v_pk_mul_f32 v[{acc+r}:{acc+r+1}], v[{VT_+2*i}:{VT_+2*i+1}], v[{acc+r}:{acc+r+1}] op_sel:[1,0] op_sel_hi:[1,1]')
    a('s_cmp_ge_u32 s14, 5')
    a('s_cselect_b32 s17, 1, 0')
    a('s_mul_i32 s18, s17, 5')
    a('s_sub_u32 s18, s14, s18')
    a('s_lshl_b32 s19, s13, 7')
    a('s_lshl_b32 s20, s15, 6')
    a('s_add_u32 s19, s19, s20')
    a('s_cmp_eq_u32 s18, 4')
    a.branch(f's_cbranch_scc1 {name}_tail')
    a('v_lshrrev_b32 v44, 1, v2')
    a('v_lshlrev_b32 v44, 16, v44')
    a('v_lshlrev_b32 v45, 5, v43')
    a('v_add_u32 v44, v44, v45')
    a('v_and_b32 v45, 1, v2')
    a('v_lshlrev_b32 v45, 4, v45')
    a('v_add_u32 v44, v44, v45')
    a('s_lshl_b32 s20, s17, 21')
    a(f's_add_u32 s20, s20, {QM}')
    a('s_lshl_b32 s21, s18, 19')
    a('s_add_u32 s20, s20, s21')
    a('s_lshl_b32 s21, s16, 18')
    a('s_add_u32 s20, s20, s21')
    a('s_lshl_b32 s21, s19, 5')
    a('s_add_u32 s20, s20, s21')
    a(f's_add_u32 s21, s20, {2*65536}')
    for i in range(4):
        for bp in range(2):
            a0, a1 = g.acc(i, 2 * bp), g.acc(i, 2 * bp + 1)
            t = VT_ + 8 + ((i * 2 + bp) & 1) * 4
            a(f'v_cvt_pk_bf16_f32 v{t}, v{a0}, v{a0+1}')
            a(f'v_cvt_pk_bf16_f32 v{t+1}, v{a0+2}, v{a0+3}')
            a(f'v_cvt_pk_bf16_f32 v{t+2}, v{a1}, v{a1+1}')
            a(f'v_cvt_pk_bf16_f32 v{t+3}, v{a1+2}, v{a1+3}')
            a(f'buffer_store_dwordx4 v[{t}:{t+3}], v44, s[4:7], s{20+bp} offen offset:{i*512}')
    if STAMP == name:
        a.wait(vm_all=True)
        stamp(a, name)
        stamp_out(a, name)
    a('s_endpgm')
    a.label(f'{name}_tail')
    a('v_lshlrev_b32 v44, 15, v2')
    a('v_lshlrev_b32 v45, 3, v43')
    a('v_add_u32 v44, v44, v45')
    a('s_lshl_b32 s20, s17, 19')
    a(f's_add_u32 s20, s20, {QT}')
    a('s_lshl_b32 s21, s16, 18')
    a('s_add_u32 s20, s20, s21')
    a('s_lshl_b32 s21, s19, 3')
    a('s_add_u32 s20, s20, s21')
    for bp in range(2):
        for t in range(2):
            a(f's_add_u32 s{40+bp*2+t}, s20, {(bp*8 + t) * 16384}')
    for i in range(4):
        for b in range(4):
            a0 = g.acc(i, b)
            t = VT_ + 8 + ((i * 4 + b) & 3) * 2
            a(f'v_cvt_pk_bf16_f32 v{t}, v{a0}, v{a0+1}')
            a(f'v_cvt_pk_bf16_f32 v{t+1}, v{a0+2}, v{a0+3}')
            a(f'buffer_store_dwordx2 v[{t}:{t+1}], v44, s[4:7], s{40+b} offen offset:{i*128}')
    a('s_endpgm')
    a.label(f'{name}_v')
    a.vmq = ['stats'] * 4
    a('v_and_b32 v43, 15, v1')
    a('v_lshlrev_b32 v42, 2, v43')
    a('s_lshl_b32 s17, s14, 9')
    a('s_lshl_b32 s18, s16, 8')
    a('s_add_u32 s17, s17, s18')
    a(f's_add_u32 s17, s17, {CSQ}')
    for b in range(4):
        a(f'buffer_load_dword v{VCS+b}, v42, s[4:7], s17 offen offset:{64*b}', tag='cs')
    g.mid_prologue = lambda: ln_stats_finish(a, g, VT_, STL)
    gemm_core(a, g, swap=True)
    a.wait(vm='cs')
    a('s_sub_u32 s17, s14, 10')
    a('s_lshl_b32 s17, s17, 7')
    a('s_lshl_b32 s18, s16, 6')
    a('s_add_u32 s17, s17, s18')
    a('v_add_u32 v44, s17, v43')
    a('v_and_b32 v45, 1, v2')
    a('v_lshlrev_b32 v45, 4, v45')
    a('v_lshrrev_b32 v46, 1, v2')
    a('v_lshlrev_b32 v46, 3, v46')
    a('v_add_u32 v45, v45, v46')
    a('s_mov_b32 s18, 3277')
    for b in range(4):
        vo = VCS + 4 + b
        a(f'v_add_u32 v46, {16*b}, v44')
        a('v_mul_lo_u32 v47, v46, s18')
        a('v_lshrrev_b32 v47, 16, v47')
        a(f'v_mul_u32_u24 v{vo}, 20, v47')
        a(f'v_sub_u32 v{vo}, v46, v{vo}')
        a(f'v_lshlrev_b32 v{vo}, 5, v{vo}')
        a('v_lshlrev_b32 v47, 17, v47')
        a(f'v_add_u32 v{vo}, v{vo}, v47')
        a(f'v_add_u32 v{vo}, v{vo}, v45')
    a('s_lshl_b32 s20, s13, 13')
    a('s_lshl_b32 s21, s15, 12')
    a('s_add_u32 s20, s20, s21')
    a(f's_add_u32 s20, s20, {VT}')
    a('v_lshlrev_b32 v44, 5, v2')
    a('s_lshl_b32 s17, s15, 9')
    a(f's_add_u32 s17, s17, {STL}')
    a('v_add_u32 v44, s17, v44')
    for i in range(4):
        a(f'ds_read_b128 v[{VT_}:{VT_+3}], v44 offset:{i*128}', tag='tst')
        a(f'ds_read_b128 v[{VT_+4}:{VT_+7}], v44 offset:{i*128+16}', tag='tst')
        a.wait(lg_all=True)
        for b in range(4):
            acc = g.acc(i, b)
            for r in range(4):
                a(f'v_fma_f32 v{acc+r}, -v{VT_+2*r}, v{VCS+b}, v{acc+r}')
                a(f'v_mul_f32 v{acc+r}, v{VT_+2*r+1}, v{acc+r}')
            t = VT_ + 8 + (b & 3) * 2
            a(f'v_cvt_pk_bf16_f32 v{t}, v{acc}, v{acc+1}')
            a(f'v_cvt_pk_bf16_f32 v{t+1}, v{acc+2}, v{acc+3}')
            a(f'buffer_store_dwordx2 v[{t}:{t+1}], v{VCS+4+b}, s[4:7], s20 offen offset:{i*1024}')
    a.label(f'{name}_end')
    a('s_endpgm')
    kernels.append((name, MB * NB, 256 + 64 * NL, lds, g.vend, 100, a.text()))


def gen_res(name, K, a_base, b_base, xin, xout, st_out, final=False, cs_job=False):
    a = Asm()
    g = G()
    g.cs_job = cs_job
    g.MT, g.NT, g.WM, g.WN, g.K = 4, 5, 4, 1, K
    g.KST, g.NS = 2, 8
    g.a_base, g.b_base = a_base, b_base
    g.band = int(os.environ.get('RES_BAND', 8))
    g.pro = 5
    alloc(g, 32)
    lds = g.NS * g.SB
    MB, NB = 32, 8
    gemm_setup(a, g, name, MB, NB, need_out=final)
    VR = 10
    a('s_lshl_b32 s17, s13, 2')
    a('s_add_u32 s17, s17, s15')
    a('s_mul_i32 s18, s14, 5')
    for b in range(5):
        a(f's_add_u32 s19, s18, {b}')
        a('s_lshr_b32 s20, s19, 1')
        a('s_and_b32 s21, s19, 1')
        a('s_lshl_b32 s21, s21, 3')
        a('s_mul_i32 s22, s17, 20')
        a('s_add_u32 s22, s22, s20')
        a('s_lshl_b32 s22, s22, 10')
        a(f's_add_u32 s{40+b}, s22, s21')
        if final:
            a(f's_mul_i32 s22, s17, {16*1280}')
            a('s_lshl_b32 s20, s20, 6')
            a('s_add_u32 s22, s22, s20')
            a(f's_add_u32 s{46+b}, s22, s21')
        a(f's_add_u32 s22, s{40+b}, {xin}')
        a(f'buffer_load_dwordx2 v[{VR+2*b}:{VR+2*b+1}], v{g.v_l16}, s[4:7], s22 offen', tag='res')
    gemm_core(a, g, swap=False)
    a.wait(vm='res')
    VS = 20
    a(f'v_mov_b32 v{VS}, 0')
    a(f'v_mov_b32 v{VS+1}, 0')
    if final:
        a('v_and_b32 v24, 15, v1')
        a('v_mul_u32_u24 v24, 1280, v24')
        a('v_lshrrev_b32 v25, 4, v1')
        a('v_lshlrev_b32 v25, 4, v25')
        a('v_add_u32 v24, v24, v25')
    for b in range(5):
        acc = g.acc(0, b)
        a(f'v_cvt_pk_bf16_f32 v{acc}, v{acc}, v{acc+1}')
        a(f'v_cvt_pk_bf16_f32 v{acc+2}, v{acc+2}, v{acc+3}')
        a(f'v_and_b32 v{acc+1}, 0xffff0000, v{acc}')
        a(f'v_lshlrev_b32 v{acc}, 16, v{acc}')
        a(f'v_and_b32 v{acc+3}, 0xffff0000, v{acc+2}')
        a(f'v_lshlrev_b32 v{acc+2}, 16, v{acc+2}')
        r0, r1 = VR + 2 * b, VR + 2 * b + 1
        a(f'v_lshlrev_b32 v22, 16, v{r0}')
        a(f'v_and_b32 v23, 0xffff0000, v{r0}')
        a(f'v_add_f32 v{acc}, v{acc}, v22')
        a(f'v_add_f32 v{acc+1}, v{acc+1}, v23')
        a(f'v_lshlrev_b32 v22, 16, v{r1}')
        a(f'v_and_b32 v23, 0xffff0000, v{r1}')
        a(f'v_add_f32 v{acc+2}, v{acc+2}, v22')
        a(f'v_add_f32 v{acc+3}, v{acc+3}, v23')
        a(f'v_cvt_pk_bf16_f32 v{r0}, v{acc}, v{acc+1}')
        a(f'v_cvt_pk_bf16_f32 v{r1}, v{acc+2}, v{acc+3}')
        if final:
            a(f'buffer_store_dwordx2 v[{r0}:{r1}], v24, s[8:11], s{46+b} offen')
        else:
            a(f's_add_u32 s22, s{40+b}, {xout}')
            a(f'buffer_store_dwordx2 v[{r0}:{r1}], v{g.v_l16}, s[4:7], s22 offen')
            for r in (r0, r1):
                a(f'v_lshlrev_b32 v22, 16, v{r}')
                a(f'v_and_b32 v23, 0xffff0000, v{r}')
                a(f'v_add_f32 v{VS}, v{VS}, v22')
                a(f'v_fma_f32 v{VS+1}, v22, v22, v{VS+1}')
                a(f'v_add_f32 v{VS}, v{VS}, v23')
                a(f'v_fma_f32 v{VS+1}, v23, v23, v{VS+1}')
    if not final:
        for sw in ('v_permlane16_swap_b32', 'v_permlane32_swap_b32'):
            for r in (VS, VS + 1):
                a(f'v_mov_b32 v22, v{r}')
                a(f'{sw} v22, v{r}')
                a(f'v_add_f32 v{r}, v{r}, v22')
        a('v_lshlrev_b32 v22, 6, v1')
        a('s_lshl_b32 s22, s17, 10')
        a('s_lshl_b32 s23, s14, 3')
        a('s_add_u32 s22, s22, s23')
        a(f's_add_u32 s22, s22, {st_out}')
        a('s_mov_b64 exec, 0xffff')
        a(f'buffer_store_dwordx2 v[{VS}:{VS+1}], v22, s[4:7], s22 offen')
    if STAMP == name:
        a.wait(vm_all=True)
        stamp(a, name)
        stamp_out(a, name)
    a.label(f'{name}_end')
    a('s_endpgm')
    kernels.append((name, MB * NB, 256 + 64 * NL + (64 if cs_job else 0), lds, max(g.vend, 96), 100, a.text()))


def gen_gu(name, x_base, st_base):
    a = Asm()
    g = G()
    g.MT, g.NT, g.WM, g.WN, g.K = 8, 12, 4, 1, 640
    g.a_direct, g.DA = bool(os.environ.get('GU_AD')), int(os.environ.get('GU_DA', 8))
    g.KST, g.NS = int(os.environ.get('GU_KST', 2)), int(os.environ.get('GU_NS', 6 if g.a_direct else 3))
    g.a_base, g.b_base = x_base, WGU
    g.band = int(os.environ.get('GU_BAND', 8))
    g.pro = 2
    alloc(g, 32)
    STL = g.NS * g.SB
    CSL = STL + 1024
    lds = STL + 2048
    MB, NB = 16, 16
    gemm_setup(a, g, name, MB, NB)
    VT_, VCS = 10, g.f0
    ln_stats_issue(a, g, st_base, VT_)
    a('v_lshlrev_b32 v26, 2, v0')
    a(f's_mul_i32 s17, s14, {12*64}')
    a(f's_add_u32 s17, s17, {CSG}')
    a('buffer_load_dword v27, v26, s[4:7], s17 offen', tag='cs')

    def mp():
        ln_stats_finish(a, g, VT_, STL)
        a.wait(vm='cs')
        a(f'v_add_u32 v26, {CSL}, v26')
        a('ds_write_b32 v26, v27')
    g.mid_prologue = mp
    if g.a_direct:
        gemm_core_adirect(a, g)
    else:
        gemm_core(a, g, swap=False)
    a('v_lshrrev_b32 v2, 4, v1')
    a('v_lshlrev_b32 v26, 4, v2')
    a(f'v_add_u32 v26, {CSL}, v26')
    for b in range(12):
        a(f'ds_read_b128 v[{VCS+4*b}:{VCS+4*b+3}], v26 offset:{64*b}', tag='tst')
    a('v_and_b32 v27, 15, v1')
    a('v_lshlrev_b32 v27, 3, v27')
    a('s_lshl_b32 s17, s15, 8')
    a(f's_add_u32 s17, s17, {STL}')
    a('v_add_u32 v27, s17, v27')
    for i in range(2):
        a(f'ds_read_b64 v[{VT_+4*i}:{VT_+4*i+1}], v27 offset:{i*128}', tag='tst')
    a('s_lshl_b32 s17, s13, 3')
    a('s_lshl_b32 s18, s15, 1')
    a('s_add_u32 s17, s17, s18')
    a('s_mul_i32 s17, s17, 48')
    a('s_mul_i32 s18, s14, 3')
    a('s_add_u32 s17, s17, s18')
    a('s_lshl_b32 s17, s17, 10')
    a(f's_add_u32 s17, s17, {HF}')
    a(f's_add_u32 s18, s17, {48*1024}')
    a.wait(lg_all=True)
    for i in range(2):
        a(f'v_mul_f32 v{VT_+4*i+2}, {f32hex(-LOG2E)}, v{VT_+4*i+1}')
        a(f'v_mov_b32 v{VT_+4*i+3}, 1.0')
    for i in range(2):
        M = f'v[{VT_+4*i}:{VT_+4*i+1}]'
        E = f'v[{VT_+4*i+2}:{VT_+4*i+3}]'
        for fg in range(3):
            t = g.acc(i, fg * 4)
            for tt in range(2):
                ag, au = g.acc(i, fg * 4 + tt), g.acc(i, fg * 4 + 2 + tt)
                cg, cu = VCS + 4 * (fg * 4 + tt), VCS + 4 * (fg * 4 + 2 + tt)
                for r in (0, 2):
                    G2, U2 = f'v[{ag+r}:{ag+r+1}]', f'v[{au+r}:{au+r+1}]'
                    a(f'v_pk_fma_f32 {G2}, {M}, v[{cg+r}:{cg+r+1}], {G2} op_sel_hi:[0,1,1] neg_lo:[1,0,0] neg_hi:[1,0,0]')
                    a(f'v_pk_mul_f32 {G2}, {E}, {G2} op_sel_hi:[0,1]')
                    a(f'v_exp_f32 v{ag+r}, v{ag+r}')
                    a(f'v_exp_f32 v{ag+r+1}, v{ag+r+1}')
                    a(f'v_pk_fma_f32 {U2}, {M}, v[{cu+r}:{cu+r+1}], {U2} op_sel_hi:[0,1,1] neg_lo:[1,0,0] neg_hi:[1,0,0]')
                    a(f'v_pk_mul_f32 {U2}, {M}, {U2} op_sel:[1,0] op_sel_hi:[1,1]')
                    a(f'v_pk_add_f32 {G2}, {E}, {G2} op_sel:[1,0] op_sel_hi:[1,1]')
                    a(f'v_rcp_f32 v{ag+r}, v{ag+r}')
                    a(f'v_rcp_f32 v{ag+r+1}, v{ag+r+1}')
                for r in (0, 2):
                    a(f'v_pk_mul_f32 v[{au+r}:{au+r+1}], v[{au+r}:{au+r+1}], v[{ag+r}:{ag+r+1}]')
            for tt in range(2):
                au = g.acc(i, fg * 4 + 2 + tt)
                a(f'v_cvt_pk_bf16_f32 v{t+2*tt}, v{au}, v{au+1}')
                a(f'v_cvt_pk_bf16_f32 v{t+2*tt+1}, v{au+2}, v{au+3}')
            a(f'buffer_store_dwordx4 v[{t}:{t+3}], v{g.v_l16}, s[4:7], s{17+i} offen offset:{fg*1024}')
    if STAMP == name:
        a.wait(vm_all=True)
        stamp(a, name)
        stamp_out(a, name)
    a.label(f'{name}_end')
    a('s_endpgm')
    kernels.append((name, MB * NB, 256 + 64 * NL, lds, g.vend, 100, a.text()))


TR_ROLES = [
    ('wo', 80, 16, 640, 640, 'A', WO_),
    ('wg', 80, 32, 640, 1536, 'G', WGU),
    ('wu', 80, 40, 640, 1536, 'U', WGU),
    ('wd', 192, 48, 1536, 640, 'A', WD_),
]


def tr_dma(a, role, start, swave, vl16, lbase):
    lab, nsl, slot, K, N, kind, dst = role
    RB = N * 2
    a(f's_load_dwordx2 s[40:41], s[0:1], {slot}')
    a(f's_sub_u32 s44, s2, {start}')
    if lab == 'wo':
        a('s_lshr_b32 s45, s44, 1')
        a('s_mul_i32 s45, s45, 20')
        a('s_and_b32 s46, s44, 1')
        a('s_lshl_b32 s46, s46, 2')
        a('s_add_u32 s45, s45, s46')
        a('s_add_u32 s46, s45, 8')
        a('s_sub_u32 s47, s44, 64')
        a('s_mul_i32 s47, s47, 40')
        a('s_add_u32 s47, s47, 16')
        a('s_add_u32 s48, s47, 20')
        a('s_cmp_lt_u32 s44, 64')
        a('s_cselect_b32 s45, s45, s47')
        a('s_cselect_b32 s46, s46, s48')
    else:
        a('s_lshl_b32 s45, s44, 3')
        a('s_add_u32 s46, s45, 4')
    a(f's_mul_i32 s45, s45, {RB}')
    a(f's_mul_i32 s46, s46, {RB}')
    a('s_waitcnt lgkmcnt(0)')
    a.lgq = []
    fin_srd(a, 40, K * N * 2)
    nch = 4 * RB // 1024
    tot = 2 * nch
    a(f's_lshl_b32 s47, s{swave}, 10')
    for i in range((tot + 3) // 4):
        a(f's_add_u32 s48, s47, {4096*i}')
        if 4 * i + 3 >= tot:
            a(f's_min_u32 s48, s48, {(tot-1)*1024}')
        a(f's_add_u32 m0, s48, {lbase}')
        a(f's_sub_u32 s49, s48, {nch*1024}')
        a('s_add_u32 s49, s49, s46')
        a('s_add_u32 s50, s48, s45')
        a(f's_cmp_lt_u32 s48, {nch*1024}')
        a('s_cselect_b32 s49, s50, s49')
        a(f'buffer_load_dwordx4 v{vl16}, s[40:43], s49 offen lds', tag='w')


def tr_out(a, role, swave, vlane, lbase, V0):
    lab, nsl, slot, K, N, kind, dst = role
    KT = K // 32
    RB = N * 2
    NTL = N // 16
    v4, v5, v6, v7 = V0, V0 + 1, V0 + 2, V0 + 3
    a(f'v_lshrrev_b32 v{v4}, 4, v{vlane}')
    a(f'v_bfe_u32 v{v5}, v{vlane}, 2, 2')
    a(f'v_and_b32 v{v6}, 3, v{vlane}')
    a(f'v_mul_u32_u24 v{v5}, {RB}, v{v5}')
    a(f'v_add_u32 v{v5}, {lbase}, v{v5}')
    a(f'v_and_b32 v{v7}, 15, v{vlane}')
    a(f'v_lshlrev_b32 v{v7}, 4, v{v7}')
    a('s_lshr_b32 s45, s44, 2')
    a('s_lshl_b32 s45, s45, 10')
    a('s_and_b32 s46, s44, 3')
    a('s_lshl_b32 s46, s46, 8')
    a('s_add_u32 s45, s45, s46')
    a(f's_add_u32 s45, s45, {dst}')
    a(f's_lshl_b32 s46, s{swave}, 2')
    a(f'v_add_u32 v{v4}, s46, v{v4}')
    nit = (NTL + 15) // 16
    for it in range(nit):
        vb = V0 + 4 + 12 * (it % 3)
        a(f'v_add_u32 v{vb}, {16*it}, v{v4}')
        if 16 * it + 15 >= NTL:
            a(f'v_min_u32 v{vb}, {NTL-1}, v{vb}')
        src_col(a, kind, vb, v6, vb + 1, vb + 2, vb + 3, vb + 4)
        a(f'v_lshl_add_u32 v{vb+1}, v{vb+1}, 1, v{v5}')
        a(f'ds_read_b64_tr_b16 v[{vb+8}:{vb+9}], v{vb+1}', tag='t')
        a(f'ds_read_b64_tr_b16 v[{vb+10}:{vb+11}], v{vb+1} offset:{4*RB}', tag='t')
        a(f'v_mul_u32_u24 v{vb}, {KT*1024}, v{vb}')
        a(f'v_add_u32 v{vb}, v{vb}, v{v7}')
        a.wait(lg_all=True)
        a(f'buffer_store_dwordx4 v[{vb+8}:{vb+11}], v{vb}, s[4:7], s45 offen')


def tr_dispatch(a, name, tag, fn):
    starts = []
    base = 0
    for r in TR_ROLES:
        starts.append(base)
        base += r[1]
    Lend = f'{name}_{tag}_end'
    a(f's_cmp_ge_u32 s2, {base}')
    a.branch(f's_cbranch_scc1 {Lend}')
    for i in reversed(range(1, len(TR_ROLES))):
        a(f's_cmp_ge_u32 s2, {starts[i]}')
        a.branch(f's_cbranch_scc1 {name}_{tag}_{TR_ROLES[i][0]}')
    for i, r in enumerate(TR_ROLES):
        a.label(f'{name}_{tag}_{r[0]}')
        fn(r, starts[i])
        if i + 1 < len(TR_ROLES):
            a.branch(f's_branch {Lend}')
    a.label(Lend)


def gen_attn(name, with_tr=False):
    a = Asm()
    NWG = 512
    begin(a, name)
    if os.environ.get('STAMP_RT'):
        stamp(a, name)
    a(f's_cmp_ge_u32 s2, {NWG}')
    a.branch(f's_cbranch_scc1 {name}_end')
    ws_srd(a, 4)
    SB = 16
    OB = 160
    KV = 176
    QB = 248
    L_KM, L_KT, L_V = 0, 12 * 1024, 15 * 1024
    lds = L_V + 24 * 1024
    L_TR = lds
    if with_tr:
        lds += 24 * 1024
    a('v_lshrrev_b32 v2, 6, v0')
    a('v_readfirstlane_b32 s12, v2')
    a('v_and_b32 v1, 63, v0')
    a('v_and_b32 v3, 31, v1')
    a('v_lshrrev_b32 v4, 5, v1')
    a('v_lshlrev_b32 v5, 5, v3')
    a('v_lshlrev_b32 v6, 4, v4')
    a('v_add_u32 v5, v5, v6')
    a('v_lshlrev_b32 v7, 3, v3')
    a('v_min_u32 v8, 20, v3')
    a('v_lshlrev_b32 v8, 5, v8')
    a('v_add_u32 v8, v8, v6')
    a('v_lshlrev_b32 v15, 4, v1')
    a('s_and_b32 s13, s2, 7')
    a('s_lshl_b32 s13, s13, 2')
    a('s_lshr_b32 s14, s2, 7')
    a('s_add_u32 s13, s13, s14')
    a('s_lshr_b32 s14, s2, 3')
    a('s_and_b32 s14, s14, 15')
    a('s_lshl_b32 s23, s14, 7')
    a('s_lshl_b32 s15, s12, 5')
    a('s_add_u32 s15, s15, s23')
    a('s_lshl_b32 s16, s13, 11')
    a('s_waitcnt lgkmcnt(0)')
    fin_srd(a, 4, WS_SIZE)
    stamp(a, name)
    for i in range(3):
        a(f's_add_i32 s19, s15, {-256 + 128*i}')
        a('s_max_i32 s19, s19, 0')
        a('s_add_u32 s19, s19, s16')
        a('s_lshl_b32 s20, s19, 5')
        a(f's_add_u32 s20, s20, {KM}')
        a(f's_lshl_b32 s21, s12, 10')
        a(f's_add_u32 m0, s21, {L_KM + 4096*i}')
        a('buffer_load_dwordx4 v5, s[4:7], s20 offen lds', tag='k')
    a('s_min_u32 s21, s12, 2')
    a('s_lshl_b32 s19, s21, 7')
    a('s_add_u32 s19, s19, s23')
    a('s_add_i32 s19, s19, -256')
    a('s_max_i32 s19, s19, 0')
    a('s_add_u32 s19, s19, s16')
    a('s_lshl_b32 s20, s19, 3')
    a(f's_add_u32 s20, s20, {KT_}')
    a('s_lshl_b32 s21, s21, 10')
    a(f's_add_u32 m0, s21, {L_KT}')
    a('buffer_load_dwordx4 v15, s[4:7], s20 offen lds', tag='k')
    a('s_add_u32 s17, s16, s15')
    a('s_lshl_b32 s18, s17, 5')
    a(f's_add_u32 s18, s18, {QM}')
    a(f'buffer_load_dwordx4 v[{QB}:{QB+3}], v5, s[4:7], s18 offen', tag='q')
    a('s_lshl_b32 s18, s17, 3')
    a(f's_add_u32 s18, s18, {QT}')
    a(f'buffer_load_dwordx2 v[{QB+4}:{QB+5}], v7, s[4:7], s18 offen', tag='q')
    a('s_lshl_b32 s24, s13, 17')
    a(f's_add_u32 s24, s24, {VT}')
    a('s_lshl_b32 s25, s12, 4')
    a('s_add_u32 s25, s25, s23')
    for i in range(6):
        a(f's_add_i32 s19, s25, {-256 + 64*i}')
        a('s_max_i32 s19, s19, 0')
        a('s_lshl_b32 s19, s19, 6')
        a('s_add_u32 s19, s19, s24')
        a(f's_lshl_b32 s21, s12, 10')
        a(f's_add_u32 m0, s21, {L_V + 4096*i}')
        a('buffer_load_dwordx4 v8, s[4:7], s19 offen lds', tag='v')
    NEG = '0xff7fffff'
    a('v_lshlrev_b32 v9, 2, v4')
    a('v_sub_u32 v9, v3, v9')
    a(f'v_mov_b32 v10, {NEG}')
    for r in range(16):
        c = 8 * (r >> 2) + (r & 3)
        a(f'v_cmp_le_i32 vcc, {c}, v9')
        a(f'v_cndmask_b32_e64 v{SB+8*16+r}, v10, 0, vcc')
        a(f'v_cndmask_b32_e64 v{SB+r}, 0, v10, vcc')
    a('s_lshl_b32 s21, s12, 10')
    a('v_add_u32 v13, s21, v15')
    a('s_lshl_b32 s21, s12, 8')
    a('v_add_u32 v14, s21, v7')
    a('s_lshl_b32 s21, s12, 11')
    a('v_add_u32 v2, s21, v15')
    a.wait(vm='q')
    a('s_barrier')
    stamp(a, name)
    if with_tr:
        tr_dispatch(a, name, 'd', lambda r, st: tr_dma(a, r, st, 12, 15, L_TR))
    for t in range(9):
        a(f'ds_read_b128 v[{KV+8*t}:{KV+8*t+3}], v13 offset:{L_KM + 1024*t}', tag=('k', t))
        a(f'ds_read_b64 v[{KV+8*t+4}:{KV+8*t+5}], v14 offset:{L_KT + 256*t}', tag=('k', t))
        if t == 6:
            break
    a('v_cmp_eq_u32 vcc, 0, v4')
    a(f'v_cndmask_b32_e64 v{QB+4}, 0, v{QB+4}, vcc')
    a(f'v_cndmask_b32_e64 v{QB+5}, 0, v{QB+5}, vcc')
    for t in range(9):
        a.wait(lg=('k', t))
        s0 = SB + 16 * t
        c = f'v[{s0}:{s0+15}]' if t in (0, 8) else '0'
        a(f'v_mfma_f32_32x32x16_bf16 v[{s0}:{s0+15}], v[{KV+8*t}:{KV+8*t+3}], v[{QB}:{QB+3}], {c}')
        a(f'v_mfma_f32_32x32x8_bf16 v[{s0}:{s0+15}], v[{KV+8*t+4}:{KV+8*t+5}], v[{QB+4}:{QB+5}], v[{s0}:{s0+15}]')
        if t < 2:
            t2 = 7 + t
            a(f'ds_read_b128 v[{KV+8*t2}:{KV+8*t2+3}], v13 offset:{L_KM + 1024*t2}', tag=('k', t2))
            a(f'ds_read_b64 v[{KV+8*t2+4}:{KV+8*t2+5}], v14 offset:{L_KT + 256*t2}', tag=('k', t2))
    for t in range(8):
        L = a.newlabel('skip')
        a(f's_cmp_ge_i32 s15, {256 - 32*t}')
        a.branch(f's_cbranch_scc1 {L}')
        for r in range(16):
            a(f'v_mov_b32 v{SB+16*t+r}, v10')
        a.label(L)
    stamp(a, name)
    regs = [SB + i for i in range(144)]
    a(f'v_max3_f32 v11, v{regs[0]}, v{regs[1]}, v{regs[2]}')
    a(f'v_max3_f32 v12, v{regs[3]}, v{regs[4]}, v{regs[5]}')
    i = 6
    k = 0
    while i + 1 < 144:
        d = 11 + (k & 1)
        a(f'v_max3_f32 v{d}, v{d}, v{regs[i]}, v{regs[i+1]}')
        i += 2
        k += 1
    a('v_max_f32 v11, v11, v12')
    a('v_mov_b32 v12, v11')
    a('v_permlane32_swap_b32 v11, v12')
    a('v_max_f32 v11, v11, v12')
    cs = (DH ** -0.5) * LOG2E
    a(f's_mov_b32 s22, {f32hex(cs)}')
    a('v_mul_f32 v12, s22, v11')
    a('v_mov_b32 v13, s22')
    a.wait(vm_all=True)
    a('s_barrier')
    for t in range(9):
        s0 = SB + 16 * t
        for s in range(2):
            a(f'ds_read_b128 v[{KV+8*t+4*s}:{KV+8*t+4*s+3}], v2 offset:{L_V + 2048*t + 1024*s}', tag=('v', t))
        for r in range(0, 16, 2):
            a(f'v_pk_fma_f32 v[{s0+r}:{s0+r+1}], v[{s0+r}:{s0+r+1}], v[12:13], v[12:13] op_sel:[0,1,0] op_sel_hi:[1,1,0] neg_lo:[0,0,1] neg_hi:[0,0,1]')
        for r in range(16):
            a(f'v_exp_f32 v{s0+r}, v{s0+r}')
        for r in range(8):
            a(f'v_cvt_pk_bf16_f32 v{s0+r}, v{s0+2*r}, v{s0+2*r+1}')
        a.wait(lg=('v', t))
        for s in range(2):
            c = '0' if (t == 0 and s == 0) else f'v[{OB}:{OB+15}]'
            a(f'v_mfma_f32_32x32x16_bf16 v[{OB}:{OB+15}], v[{KV+8*t+4*s}:{KV+8*t+4*s+3}], v[{s0+4*s}:{s0+4*s+3}], {c}')
    stamp(a, name)
    a(f'v_mov_b32 v11, v{OB+8}')
    a(f'v_mov_b32 v12, v{OB+8}')
    a('v_permlane32_swap_b32 v11, v12')
    a('v_rcp_f32 v12, v12')
    for r in range(12):
        a(f'v_mul_f32 v{OB+r}, v{OB+r}, v12')
    for r in range(6):
        a(f'v_cvt_pk_bf16_f32 v{OB+r}, v{OB+2*r}, v{OB+2*r+1}')
    a('v_lshrrev_b32 v13, 4, v3')
    a(f'v_mul_u32_u24 v13, {20*1024}, v13')
    a('v_and_b32 v14, 15, v3')
    a('v_lshlrev_b32 v14, 4, v14')
    a('v_add_u32 v13, v13, v14')
    a('v_lshlrev_b32 v14, 8, v4')
    a('v_add_u32 v14, v14, v13')
    a('s_lshr_b32 s17, s15, 4')
    a(f's_mul_i32 s17, s17, {20*1024}')
    a(f's_add_u32 s17, s17, {OF}')
    a('s_lshr_b32 s18, s13, 1')
    a('s_lshl_b32 s18, s18, 10')
    a('s_and_b32 s19, s13, 1')
    a('s_lshl_b32 s20, s19, 9')
    a('s_add_u32 s18, s18, s20')
    a('s_add_u32 s18, s18, s17')
    a(f'buffer_store_dwordx4 v[{OB}:{OB+3}], v14, s[4:7], s18 offen')
    a('s_lshr_b32 s18, s13, 3')
    a('s_add_u32 s18, s18, 16')
    a('s_lshl_b32 s18, s18, 10')
    a('s_lshr_b32 s20, s13, 1')
    a('s_and_b32 s20, s20, 3')
    a('s_lshl_b32 s20, s20, 8')
    a('s_add_u32 s18, s18, s20')
    a('s_lshl_b32 s19, s19, 3')
    a('s_add_u32 s18, s18, s19')
    a('s_add_u32 s18, s18, s17')
    a('s_mov_b32 exec_hi, 0')
    a(f'buffer_store_dwordx2 v[{OB+4}:{OB+5}], v13, s[4:7], s18 offen')
    if with_tr:
        a('s_mov_b64 exec, -1')
        tr_dispatch(a, name, 'o', lambda r, st: tr_out(a, r, 12, 1, L_TR, 16))
    if STAMP == name:
        a.wait(vm_all=True)
        stamp(a, name)
        stamp_out(a, name)
    a.label(f'{name}_end')
    a('s_endpgm')
    kernels.append((name, NWG, 256, lds, 256, 100, a.text()))


def magic(d):
    return (2 ** 32 + d - 1) // d


def map_tile(a, kind, vn0, vT, vi0, t0, t1, t2):
    if kind in 'AGU':
        a(f'v_lshrrev_b32 v{t0}, 5, v{vn0}')
        a(f'v_bfe_u32 v{t1}, v{vn0}, 2, 1')
        a(f'v_bfe_u32 v{vi0}, v{vn0}, 3, 2')
        a(f'v_lshlrev_b32 v{vi0}, 2, v{vi0}')
        sh = 1 if kind == 'A' else 2
        a(f'v_lshlrev_b32 v{vT}, {sh}, v{t0}')
        a(f'v_add_u32 v{vT}, v{vT}, v{t1}')
        if kind == 'U':
            a(f'v_add_u32 v{vT}, 2, v{vT}')
    else:
        a(f's_mov_b32 s30, {magic(640)}')
        a(f'v_mul_hi_u32 v{t0}, v{vn0}, s30')
        a(f'v_mul_u32_u24 v{t1}, 640, v{t0}')
        a(f'v_sub_u32 v{t1}, v{vn0}, v{t1}')
        a('s_mov_b32 s30, 3277')
        a(f'v_mul_lo_u32 v{t2}, v{t1}, s30')
        a(f'v_lshrrev_b32 v{t2}, 16, v{t2}')
        a(f'v_mul_u32_u24 v{vi0}, 20, v{t2}')
        a(f'v_sub_u32 v{vi0}, v{t1}, v{vi0}')
        a(f'v_cmp_gt_u32 vcc, 16, v{vi0}')
        a(f'v_and_b32 v{vT}, 1, v{t2}')
        a(f'v_lshlrev_b32 v{vT}, 4, v{vT}')
        a(f'v_add_u32 v{vi0}, v{vi0}, v{vT}')
        a(f'v_and_b32 v{vT}, 7, v{t2}')
        a(f'v_lshlrev_b32 v{vT}, 2, v{vT}')
        a(f'v_cndmask_b32 v{vi0}, v{vT}, v{vi0}, vcc')
        a(f'v_lshrrev_b32 v{vT}, 3, v{t2}')
        a(f'v_add_u32 v{vT}, 16, v{vT}')
        a(f'v_lshrrev_b32 v{t2}, 1, v{t2}')
        a(f'v_cndmask_b32 v{t2}, v{vT}, v{t2}, vcc')
        a(f'v_lshlrev_b32 v{vT}, 1, v{t2}')
        a(f'v_bfe_u32 v{t2}, v{vi0}, 2, 1')
        a(f'v_add_u32 v{vT}, v{vT}, v{t2}')
        a(f'v_mul_u32_u24 v{t2}, 40, v{t0}')
        a(f'v_add_u32 v{vT}, v{vT}, v{t2}')
        a(f'v_lshrrev_b32 v{vi0}, 3, v{vi0}')
        a(f'v_lshlrev_b32 v{vi0}, 2, v{vi0}')
        a(f'v_cmp_eq_u32 vcc, 2, v{t0}')
        a(f'v_lshrrev_b32 v{t2}, 4, v{t1}')
        a(f'v_add_u32 v{t2}, 80, v{t2}')
        a(f'v_cndmask_b32 v{vT}, v{vT}, v{t2}, vcc')
        a(f'v_and_b32 v{t2}, 15, v{t1}')
        a(f'v_cndmask_b32 v{vi0}, v{vi0}, v{t2}, vcc')


def src_col(a, kind, vT, vc, vout, t0, t1, t2):
    if kind in 'AGU':
        a(f'v_lshrrev_b32 v{t0}, 1, v{vT}')
        a(f'v_and_b32 v{t1}, 1, v{vT}')
        a(f'v_lshlrev_b32 v{vout}, 5, v{t0}')
        a(f'v_lshl_add_u32 v{vout}, v{vc}, 3, v{vout}')
        a(f'v_lshl_add_u32 v{vout}, v{t1}, 2, v{vout}')
        if kind != 'A':
            a(f'v_lshlrev_b32 v{vT}, 2, v{t0}')
            a(f'v_add_u32 v{vT}, v{vT}, v{t1}')
            if kind == 'U':
                a(f'v_add_u32 v{vT}, 2, v{vT}')
    else:
        a(f'v_cmp_le_u32 vcc, 40, v{vT}')
        a(f'v_cndmask_b32_e64 v{t0}, 0, 1, vcc')
        a(f'v_cmp_le_u32 vcc, 80, v{vT}')
        a(f'v_cndmask_b32_e64 v{t0}, v{t0}, 2, vcc')
        a(f'v_mul_u32_u24 v{t1}, 40, v{t0}')
        a(f'v_sub_u32 v{t1}, v{vT}, v{t1}')
        a(f'v_and_b32 v{t2}, 1, v{t1}')
        a(f'v_lshlrev_b32 v{t2}, 2, v{t2}')
        a(f'v_lshl_add_u32 v{t2}, v{vc}, 3, v{t2}')
        a(f'v_and_b32 v{vout}, -2, v{t1}')
        a(f'v_lshrrev_b32 v{t2+1}, 4, v{t2}')
        a(f'v_add_u32 v{vout}, v{vout}, v{t2+1}')
        a(f'v_mul_u32_u24 v{vout}, 20, v{vout}')
        a(f'v_and_b32 v{t2+1}, 15, v{t2}')
        a(f'v_add_u32 v{vout}, v{vout}, v{t2+1}')
        a(f'v_lshrrev_b32 v{t2+1}, 1, v{t1}')
        a(f'v_subrev_u32 v{t2+1}, 16, v{t2+1}')
        a(f'v_lshlrev_b32 v{t2+1}, 3, v{t2+1}')
        a(f'v_lshrrev_b32 v{t2}, 2, v{t2}')
        a(f'v_add_u32 v{t2+1}, v{t2+1}, v{t2}')
        a(f'v_mul_u32_u24 v{t2+1}, 20, v{t2+1}')
        a(f'v_add_u32 v{t2+1}, 16, v{t2+1}')
        a(f'v_cmp_le_u32 vcc, 32, v{t1}')
        a(f'v_cndmask_b32 v{vout}, v{vout}, v{t2+1}, vcc')
        a(f'v_lshlrev_b32 v{t2+1}, 4, v{t1}')
        a(f'v_lshl_add_u32 v{t2+1}, v{vc}, 2, v{t2+1}')
        a(f'v_cmp_eq_u32 vcc, 2, v{t0}')
        a(f'v_cndmask_b32 v{vout}, v{vout}, v{t2+1}, vcc')
        a(f'v_mul_u32_u24 v{t0}, 640, v{t0}')
        a(f'v_add_u32 v{vout}, v{vout}, v{t0}')


def gen_prep(name):
    a = Asm()
    begin(a, name)
    roles = [
        ('wqkv', 80, 8, 640, 1920, 'Q', WQKV),
    ]
    cs_roles = [('csq', 30, 8, 1920, 'Q', CSQ), ('csg', 24, 32, 1536, 'G', CSG), ('csu', 24, 40, 1536, 'U', CSG)]
    NX = 128
    seq = [('x', NX)] + [(r[0], r[1]) for r in cs_roles] + [(r[0], r[1]) for r in roles]
    NWG = sum(n for _, n in seq)
    a(f's_cmp_ge_u32 s2, {NWG}')
    a.branch(f's_cbranch_scc1 {name}_end')
    ws_srd(a, 4)
    base = 0
    starts = {}
    for lab, n in seq:
        starts[lab] = base
        base += n
    for lab, _ in reversed(seq[1:]):
        a(f's_cmp_ge_u32 s2, {starts[lab]}')
        a.branch(f's_cbranch_scc1 {name}_{lab}')
    a.label(f'{name}_x')
    if os.environ.get('PREP_ONLY', 'x') != 'x':
        a('s_endpgm')
    a('s_load_dwordx2 s[8:9], s[0:1], 0')
    a('v_lshrrev_b32 v2, 6, v0')
    a('v_readfirstlane_b32 s12, v2')
    a('v_and_b32 v1, 63, v0')
    a('s_mov_b32 s14, s2')
    a('v_and_b32 v3, 15, v1')
    a('v_mul_u32_u24 v3, 1280, v3')
    a('v_lshrrev_b32 v4, 4, v1')
    a('v_lshlrev_b32 v4, 4, v4')
    a('v_add_u32 v3, v3, v4')
    a(f's_mul_i32 s15, s14, {16*1280}')
    a('s_mul_i32 s16, s12, 320')
    a('s_add_u32 s15, s15, s16')
    a('v_lshlrev_b32 v5, 4, v1')
    a('s_waitcnt lgkmcnt(0)')
    fin_srd(a, 4, WS_SIZE)
    fin_srd(a, 8, S * D * 2)
    for kt in range(5):
        a(f'buffer_load_dwordx4 v[{16+4*kt}:{19+4*kt}], v3, s[8:11], s15 offen offset:{64*kt}', tag=('x', kt))
    a(f's_mul_i32 s16, s14, {20*1024}')
    a(f's_add_u32 s16, s16, {XF[0]}')
    a(f's_mul_i32 s17, s12, {5*1024}')
    a('s_add_u32 s16, s16, s17')
    a(f's_add_u32 s17, s16, 4096')
    a('s_lshl_b32 s18, s2, 8')
    a('v_add_u32 v6, s18, v0')
    a('v_lshrrev_b32 v7, 1, v6')
    a('v_lshlrev_b32 v7, 10, v7')
    a('v_and_b32 v6, 1, v6')
    a('v_lshlrev_b32 v6, 4, v6')
    a('v_add_u32 v7, v7, v6')
    for i in range(4):
        a(f'v_mov_b32 v{40+i}, 0x3f803f80')
    a(f's_mov_b32 s18, {VT + 640}')
    Lx = a.newlabel('noones')
    a('s_cmp_ge_u32 s2, 32')
    a.branch(f's_cbranch_scc1 {Lx}')
    a('buffer_store_dwordx4 v[40:43], v7, s[4:7], s18 offen')
    a.label(Lx)
    a('v_mov_b32 v8, 0')
    a('v_mov_b32 v9, 0')
    a('s_waitcnt vmcnt(0)')
    a.vmq = []
    for kt in range(5):
        if kt < 4:
            a(f'buffer_store_dwordx4 v[{16+4*kt}:{19+4*kt}], v5, s[4:7], s16 offen offset:{1024*kt}')
        else:
            a(f'buffer_store_dwordx4 v[{16+4*kt}:{19+4*kt}], v5, s[4:7], s17 offen')
        for w in range(4):
            a(f'v_lshlrev_b32 v12, 16, v{16+4*kt+w}')
            a(f'v_and_b32 v13, 0xffff0000, v{16+4*kt+w}')
            a('v_add_f32 v8, v8, v12')
            a('v_fma_f32 v9, v12, v12, v9')
            a('v_add_f32 v8, v8, v13')
            a('v_fma_f32 v9, v13, v13, v9')
    for sw in ('v_permlane16_swap_b32', 'v_permlane32_swap_b32'):
        for r in (8, 9):
            a(f'v_mov_b32 v12, v{r}')
            a(f'{sw} v12, v{r}')
            a(f'v_add_f32 v{r}, v{r}, v12')
    a('v_mov_b32 v10, 0')
    a('v_mov_b32 v11, 0')
    a('v_lshlrev_b32 v6, 6, v1')
    a('s_lshl_b32 s17, s14, 10')
    a('s_lshl_b32 s18, s12, 3')
    a('s_add_u32 s17, s17, s18')
    a(f's_add_u32 s17, s17, {ST[0]}')
    a('s_mov_b64 exec, 0xffff')
    a('buffer_store_dwordx2 v[8:9], v6, s[4:7], s17 offen')
    a('buffer_store_dwordx2 v[10:11], v6, s[4:7], s17 offen offset:32')
    a('s_endpgm')
    for (lab, nwg, slot, K, N, kind, dst) in roles:
        a.label(f'{name}_{lab}')
        a.vmq, a.lgq = [], []
        if os.environ.get('PREP_ONLY', lab) != lab:
            a('s_endpgm')
        a(f's_load_dwordx2 s[8:9], s[0:1], {slot}')
        KT = K // 32
        RB = N * 2
        NTL = N // 16
        a('v_lshrrev_b32 v2, 6, v0')
        a('v_readfirstlane_b32 s12, v2')
        a('v_and_b32 v1, 63, v0')
        a('v_lshlrev_b32 v3, 4, v1')
        a(f's_sub_u32 s13, s2, {starts[lab]}')
        if lab == 'wo':
            a('s_lshr_b32 s14, s13, 1')
            a('s_mul_i32 s14, s14, 20')
            a('s_and_b32 s15, s13, 1')
            a('s_lshl_b32 s15, s15, 2')
            a('s_add_u32 s14, s14, s15')
            a('s_add_u32 s15, s14, 8')
            a('s_sub_u32 s16, s13, 64')
            a('s_mul_i32 s16, s16, 40')
            a('s_add_u32 s16, s16, 16')
            a('s_add_u32 s17, s16, 20')
            a('s_cmp_lt_u32 s13, 64')
            a('s_cselect_b32 s14, s14, s16')
            a('s_cselect_b32 s15, s15, s17')
        else:
            a('s_lshl_b32 s14, s13, 3')
            a('s_add_u32 s15, s14, 4')
        a(f's_mul_i32 s14, s14, {RB}')
        a(f's_mul_i32 s15, s15, {RB}')
        a('s_waitcnt lgkmcnt(0)')
        fin_srd(a, 4, WS_SIZE)
        fin_srd(a, 8, K * N * 2)
        nch = 4 * RB // 1024
        tot = 2 * nch
        a('s_lshl_b32 s16, s12, 10')
        for i in range((tot + 3) // 4):
            a(f's_add_u32 s17, s16, {4096*i}')
            if 4 * i + 3 >= tot:
                a(f's_min_u32 s17, s17, {(tot-1)*1024}')
            a('s_mov_b32 m0, s17')
            a(f's_sub_u32 s18, s17, {nch*1024}')
            a('s_add_u32 s18, s18, s15')
            a('s_add_u32 s19, s17, s14')
            a(f's_cmp_lt_u32 s17, {nch*1024}')
            a('s_cselect_b32 s18, s19, s18')
            a('buffer_load_dwordx4 v3, s[8:11], s18 offen lds', tag='w')
        a('v_lshrrev_b32 v4, 4, v1')
        a('v_bfe_u32 v5, v1, 2, 2')
        a('v_and_b32 v6, 3, v1')
        a(f'v_mul_u32_u24 v5, {RB}, v5')
        a('v_and_b32 v7, 15, v1')
        a('v_lshlrev_b32 v7, 4, v7')
        a('s_lshr_b32 s20, s13, 2')
        a('s_lshl_b32 s20, s20, 10')
        a('s_and_b32 s21, s13, 3')
        a('s_lshl_b32 s21, s21, 8')
        a('s_add_u32 s20, s20, s21')
        a(f's_add_u32 s20, s20, {dst}')
        a('s_lshl_b32 s21, s12, 2')
        a('v_add_u32 v4, s21, v4')
        a.wait(vm_all=True)
        a('s_barrier')
        nit = (NTL + 15) // 16
        for it in range(nit):
            vb = 16 + 12 * (it & 1)
            a(f'v_add_u32 v{vb}, {16*it}, v4')
            if 16 * it + 15 >= NTL:
                a(f'v_min_u32 v{vb}, {NTL-1}, v{vb}')
            src_col(a, kind, vb, 6, vb + 1, vb + 2, vb + 3, vb + 4)
            a(f'v_lshl_add_u32 v{vb+1}, v{vb+1}, 1, v5')
            a(f'ds_read_b64_tr_b16 v[{vb+8}:{vb+9}], v{vb+1}', tag='t')
            a(f'ds_read_b64_tr_b16 v[{vb+10}:{vb+11}], v{vb+1} offset:{4*RB}', tag='t')
            a(f'v_mul_u32_u24 v{vb}, {KT*1024}, v{vb}')
            a(f'v_add_u32 v{vb}, v{vb}, v7')
            a.wait(lg_all=True)
            a(f'buffer_store_dwordx4 v[{vb+8}:{vb+11}], v{vb}, s[4:7], s20 offen')
        a('s_endpgm')
    for (lab, nwg, slot, N, kind, dst) in cs_roles:
        a.label(f'{name}_{lab}')
        a.vmq, a.lgq = [], []
        if os.environ.get('PREP_ONLY', lab) != lab:
            a('s_endpgm')
        a(f's_load_dwordx2 s[8:9], s[0:1], {slot}')
        a(f's_sub_u32 s12, s2, {starts[lab]}')
        a('s_lshl_b32 s12, s12, 6')
        a('v_lshrrev_b32 v1, 4, v0')
        a('v_and_b32 v2, 15, v0')
        a(f'v_mul_u32_u24 v3, {40}, v1')
        a(f's_mov_b32 s13, {N*2}')
        a('v_mul_lo_u32 v3, v3, s13')
        a('v_lshlrev_b32 v4, 3, v2')
        a('v_add_u32 v3, v3, v4')
        a('s_lshl_b32 s14, s12, 1')
        a('v_add_u32 v3, s14, v3')
        a('s_waitcnt lgkmcnt(0)')
        fin_srd(a, 4, WS_SIZE)
        fin_srd(a, 8, 640 * N * 2)
        for r in range(40):
            a(f's_mov_b32 s{14+(r&3)}, {r*N*2}')
            a(f'buffer_load_dwordx2 v[{16+2*r}:{17+2*r}], v3, s[8:11], s{14+(r&3)} offen', tag=('c', r))
        for e in range(4):
            a(f'v_mov_b32 v{8+e}, 0')
        for r in range(40):
            a.wait(vm=('c', r))
            for w in range(2):
                a(f'v_lshlrev_b32 v12, 16, v{16+2*r+w}')
                a(f'v_and_b32 v13, 0xffff0000, v{16+2*r+w}')
                a(f'v_add_f32 v{8+2*w}, v{8+2*w}, v12')
                a(f'v_add_f32 v{9+2*w}, v{9+2*w}, v13')
        a('v_lshlrev_b32 v4, 4, v0')
        a('ds_write_b128 v4, v[8:11]')
        a.wait(lg_all=True)
        a('s_barrier')
        a('v_lshlrev_b32 v4, 2, v0')
        for kc in range(16):
            a(f'ds_read_b32 v{16+kc}, v4 offset:{kc*256}', tag='r')
        a('v_lshrrev_b32 v2, 2, v0')
        a('v_lshlrev_b32 v2, 2, v2')
        a('v_add_u32 v2, s12, v2')
        map_tile(a, kind, 2, 5, 6, 7, 8, 9)
        a('v_lshlrev_b32 v5, 4, v5')
        a('v_add_u32 v5, v5, v6')
        a('v_and_b32 v6, 3, v0')
        a('v_add_u32 v5, v5, v6')
        a('v_lshlrev_b32 v5, 2, v5')
        a.wait(lg_all=True)
        for kc in range(1, 16):
            a(f'v_add_f32 v16, v16, v{16+kc}')
        a(f's_mov_b32 s22, {dst}')
        a('v_cmp_gt_u32 vcc, 64, v0')
        a('s_and_saveexec_b64 s[24:25], vcc')
        a.branch(f's_cbranch_execz {name}_end')
        a('buffer_store_dword v16, v5, s[4:7], s22 offen')
        a('s_endpgm')
    a.label(f'{name}_end')
    a('s_endpgm')
    kernels.append((name, NWG, 256, 30720, 128, 40, a.text()))


def build():
    gen_prep('prep_kernel')
    gen_qkv('qkv1_kernel', XF[0], ST[0])
    gen_attn('attn1_kernel', with_tr=True)
    gen_attn('attn_kernel')
    gen_res('wo1_kernel', 640, OF, WO_, XF[0], XF[1], ST[1])
    gen_gu('gu1_kernel', XF[1], ST[1])
    gen_res('dn1_kernel', 1536, HF, WD_, XF[1], XF[2], ST[2])
    gen_qkv('qkv2_kernel', XF[2], ST[2])
    gen_res('wo2_kernel', 640, OF, WO_, XF[2], XF[3], ST[3])
    gen_gu('gu2_kernel', XF[3], ST[3])
    gen_res('dn2_kernel', 1536, HF, WD_, XF[3], None, None, final=True)
    order = ['prep_kernel', 'qkv1_kernel', 'attn1_kernel', 'wo1_kernel', 'gu1_kernel', 'dn1_kernel',
             'qkv2_kernel', 'attn_kernel', 'wo2_kernel', 'gu2_kernel', 'dn2_kernel']
    kd = {k[0]: k for k in kernels}
    hdr = open('interleave_layers__sliding_block__glu_gated_glu__prompt.s.ref').read().split('\n')
    out = [l for l in hdr if l.startswith(';') and '@launch' not in l and 'Override' not in l and 'grid=ceil' not in l]
    for n in order:
        k = kd[n]
        out.append(f'; @launch kernel={n} grid=({k[1]},1,1) block=({k[2]},1,1) lds={k[3]}')
    out.append('.amdgcn_target "amdgcn-amd-amdhsa--gfx950"')
    for k in kernels:
        out.append(k[6])
    out.append('.section .rodata,"a"')
    for k in kernels:
        nv = (k[4] + 7) // 8 * 8
        out.append('.p2align 6')
        out.append(f'.amdhsa_kernel {k[0]}')
        out.append(f'  .amdhsa_next_free_vgpr {nv}')
        out.append(f'  .amdhsa_next_free_sgpr {k[5]}')
        out.append(f'  .amdhsa_accum_offset {min(nv, 256)}')
        out.append('  .amdhsa_group_segment_fixed_size 0')
        out.append('  .amdhsa_kernarg_size 80')
        out.append('  .amdhsa_user_sgpr_count 2')
        out.append('  .amdhsa_user_sgpr_kernarg_segment_ptr 1')
        out.append('  .amdhsa_system_sgpr_workgroup_id_x 1')
        out.append('.end_amdhsa_kernel')
    open(os.environ.get('OUT', 'interleave_layers__sliding_block__glu_gated_glu__prompt.s'), 'w').write('\n'.join(out) + '\n')
    for k in kernels:
        print(k[0], 'grid', k[1], 'lds', k[3], 'vgpr', k[4])


if __name__ == '__main__':
    build()
```
